```python
import torch

def _softmax(x, axis=-1):
    return torch.softmax(x, dim=axis)

def _gelu(x):
    return torch.nn.functional.gelu(x, approximate='tanh')

def _silu(x):
    return torch.nn.functional.silu(x)

def _sigmoid(x):
    return torch.sigmoid(x)

def _layernorm(x, axis=-1, eps=1e-05):
    m = x.mean(dim=axis, keepdim=True)
    v = x.var(dim=axis, keepdim=True, unbiased=False)
    return (x - m) / torch.sqrt(v + eps)

def _scatter_add(tgt, idx, src, axis=0):
    return tgt.clone().index_add_(axis, idx, src)

def _segment_sum(src, seg, n):
    out = torch.zeros((n,) + src.shape[1:], dtype=src.dtype)
    return out.index_add_(0, seg, src)

def _pad(x, pw):
    flat = tuple((v for pair in reversed(pw) for v in pair))
    return torch.nn.functional.pad(x, flat)
kernel_name = 'adaLN_cond__gqa_block_cached__dense_activation_relu__prompt'

def setup_inputs():

    _w = lambda a: (lambda t: t.to(torch.bfloat16) if t.is_floating_point() else t)(torch.as_tensor(a))

    def _A_setup():
        B, Sq, D = (1, 2048, 512)
        Hq, Hkv, Sk, Dh = (32, 8, 2048, 128)
        assert Hq % Hkv == 0, (Hq, Hkv)
        return {'x': _w((lambda *s: torch.randn(*s, dtype=torch.bfloat16) * 0.05)(B, Sq, D)), 'k_cache': _w((lambda *s: torch.randn(*s, dtype=torch.bfloat16) * 3.2)(B, Hkv, Sk, Dh)), 'v_cache': _w((lambda *s: torch.randn(*s, dtype=torch.bfloat16) * 0.4)(B, Hkv, Sk, Dh)), 'wq': _w((lambda *s: torch.randn(*s, dtype=torch.bfloat16) * 3.2)(D, Hq * Dh) * D ** (-0.5)), 'wo': _w((lambda *s: torch.randn(*s, dtype=torch.bfloat16) * 0.4)(Hq * Dh, D) * (Hq * Dh) ** (-0.5))}
    _A_in = _A_setup()

    def _B_setup():
        B, S, D, Dff = (1, 2048, 512, 1792)
        return {'x': _w((lambda *s: torch.randn(*s, dtype=torch.bfloat16) * 0.05)(B, S, D)), 'w1': _w((lambda *s: torch.randn(*s, dtype=torch.bfloat16) * 0.05)(D, Dff)), 'w2': _w((lambda *s: torch.randn(*s, dtype=torch.bfloat16) * 0.05)(Dff, D))}
    _B_in = _B_setup()
    return {'A_x': _A_in['x'], 'A_k_cache': _A_in['k_cache'], 'A_v_cache': _A_in['v_cache'], 'A_wq': _A_in['wq'], 'A_wo': _A_in['wo'], 'B_x': _B_in['x'], 'B_w1': _B_in['w1'], 'B_w2': _B_in['w2'], 'c': _w((lambda *s: torch.randn(*s, dtype=torch.bfloat16) * 0.1)(1, 512) * 8.0), 'w_mod': _w((lambda *s: torch.randn(*s, dtype=torch.bfloat16) * 0.1)(512, 6 * 512) * 512 ** (-0.5) * 8.0)}

def reference(A_x, A_k_cache, A_v_cache, A_wq, A_wo, B_x, B_w1, B_w2, c, w_mod):

    def _A_ref(x, k_cache, v_cache, wq, wo):
        B, Sq, D = x.shape
        Hq, Dh = (32, 128)
        Hkv = k_cache.shape[1]
        rep = Hq // Hkv
        q = (lambda x, *d: x.permute(*d))((x @ wq).reshape(B, Sq, Hq, Dh), 0, 2, 1, 3)
        k = (lambda x, n, axis: torch.repeat_interleave(x, n, dim=axis))(k_cache, rep, axis=1)
        v = (lambda x, n, axis: torch.repeat_interleave(x, n, dim=axis))(v_cache, rep, axis=1)
        scores = torch.einsum('bhqd,bhkd->bhqk', q, k) * Dh ** (-0.5)
        p = _softmax(scores, axis=-1)
        o = torch.einsum('bhqk,bhkd->bhqd', p, v)
        return (lambda x, *d: x.permute(*d))(o, 0, 2, 1, 3).reshape(B, Sq, Hq * Dh) @ wo

    def _B_ref(x, w1, w2):
        h = torch.einsum('bsd,df->bsf', x, w1)
        zero = torch.zeros_like(h)
        h = torch.maximum(h, zero)
        return torch.einsum('bsf,fd->bsd', h, w2)
    x = A_x
    mod = (_silu(c) @ w_mod).reshape(c.shape[0], 6, 1, -1)
    sa, ca, ga, sb, cb, gb = (mod[:, 0].clone(), mod[:, 1].clone(), mod[:, 2].clone(), mod[:, 3].clone(), mod[:, 4].clone(), mod[:, 5].clone())
    h = _layernorm(x, axis=-1) * (1 + ca) + sa
    x = x + ga * _A_ref(h, A_k_cache, A_v_cache, A_wq, A_wo)
    h = _layernorm(x, axis=-1) * (1 + cb) + sb
    x = x + gb * _B_ref(h, B_w1, B_w2)
    return x
```

```python
class Stream:
    def __init__(self):
        self.items = []
    def e(self, text, kind=None, tag=None):
        self.items.append(dict(text=text, kind=kind, tag=tag))
    def lds(self, text, tag=None): self.e(text, 'lds', tag)
    def vm(self, text, tag=None): self.e(text, 'vm', tag)
    def wait(self, lds=None, vm=None):
        self.items.append(dict(text=None, kind='wait', lds=lds, vm=vm))
    def mark(self, name): self.items.append(dict(text=None, kind='mark', name=name))
    def extend(self, other): self.items.extend(other.items)
    def resolve(self):
        out = []
        ldsq = []; vmq = []
        lds_done = 0; vm_done = 0
        for it in self.items:
            k = it['kind']
            if k == 'mark': out.append(('mark', it['name'])); continue
            if k == 'wait':
                parts = []
                for (name, req, q, mx) in (('vmcnt', it['vm'], vmq, 63), ('lgkmcnt', it['lds'], ldsq, 15)):
                    if req is None: continue
                    if req == 'all': n = 0
                    else:
                        last = -1
                        for t in req:
                            idx = [i for i, x in enumerate(q) if x == t]
                            assert idx, f'wait on never-issued tag {t}'
                            last = max(last, idx[-1])
                        n = len(q) - 1 - last
                    assert n <= mx or True
                    n = min(n, mx)
                    parts.append(f'{name}({n})')
                    if name == 'vmcnt': vm_done = max(vm_done, len(q) - n)
                    else: lds_done = max(lds_done, len(q) - n)
                out.append('s_waitcnt ' + ' '.join(parts))
                continue
            if k == 'lds':
                ldsq.append(it['tag'])
                assert len(ldsq) - lds_done <= 64
            if k == 'vm': vmq.append(it['tag'])
            out.append(it['text'])
        return out

def split_marks(res):
    segs = {}; order = []; cur = '_start'; segs[cur] = []; order.append(cur)
    for r in res:
        if isinstance(r, tuple): cur = r[1]; segs[cur] = []; order.append(cur)
        else: segs[cur].append(r)
    return segs, order

def vr(b, n=1): return f'v{b}' if n == 1 else f'v[{b}:{b+n-1}]'
def ar(b, n=1): return f'a{b}' if n == 1 else f'a[{b}:{b+n-1}]'
def sr(b, n=1): return f's{b}' if n == 1 else f's[{b}:{b+n-1}]'

def kd(name, vgpr, accum, sgpr=96, extra=''):
    return f'''.amdhsa_kernel {name}
  .amdhsa_next_free_vgpr {vgpr}
  .amdhsa_next_free_sgpr {sgpr}
  .amdhsa_accum_offset {accum}
  .amdhsa_group_segment_fixed_size 0
  .amdhsa_kernarg_size 104
  .amdhsa_user_sgpr_count 2
  .amdhsa_user_sgpr_kernarg_segment_ptr 1
  .amdhsa_system_sgpr_workgroup_id_x 1
{extra}.end_amdhsa_kernel
'''
```

```python
from asmlib import *
import struct
def f2h(x): return hex(struct.unpack('<I', struct.pack('<f', float(x)))[0])
MF = 'v_mfma_f32_16x16x32_bf16'
KA_X, KA_K, KA_V, KA_WQ, KA_WO, KA_BX, KA_W1, KA_W2, KA_C, KA_WM, KA_OUT, KA_DBG, KA_WS = [8 * i for i in range(13)]
WS_MODA = 0x0; WS_MODB = 0x1000
WS_X1 = 1 << 20; WS_H2 = 4 << 20; WS_H1 = 8 << 20; WS_PART = 16 << 20; WS_STAMP = 64 << 20
QSCALE = 128 ** -0.5 * 1.4426950408889634
SC = ' sc0 sc1'

def srd(e, d, lo, hi, size, off=None):
    if off is None:
        e(f's_mov_b32 s{d}, s{lo}'); e(f's_mov_b32 s{d+1}, s{hi}')
    else:
        e(f's_add_u32 s{d}, s{lo}, {off}'); e(f's_addc_u32 s{d+1}, s{hi}, 0')
    e(f's_mov_b32 s{d+2}, {size}'); e(f's_mov_b32 s{d+3}, 0x20000')

def xlane_reduce(e, regs, tmps, op, which=('32', '16')):
    for sw in which:
        for r, t in zip(regs, tmps): e(f'v_mov_b32 v{t}, v{r}')
        if len(regs) < 3: e('s_nop 1')
        for r, t in zip(regs, tmps): e(f'v_permlane{sw}_swap_b32 v{t}, v{r}')
        if len(regs) < 2: e('s_nop 0')
        for r, t in zip(regs, tmps): e(f'{op} v{r}, v{r}, v{t}')

def header(name):
    return [f'.globl {name}', '.p2align 8', f'.type {name},@function', f'{name}:']
```

```python
from gen_common import *
def gen_k0(name='k0_mod_kernel'):
    st = Stream(); e = st.e
    e('s_cmp_ge_u32 s2, 96'); e('s_cbranch_scc1 L_k0_end')
    e(f's_load_dwordx4 s[4:7], s[0:1], {KA_C}'); e(f's_load_dwordx2 s[20:21], s[0:1], {KA_WS}')
    e('v_lshrrev_b32 v1, 2, v0')
    e('v_and_b32 v2, 3, v0')
    e('v_lshlrev_b32 v3, 1, v1')
    e('s_movk_i32 s22, 6144'); e('v_mul_lo_u32 v4, v1, s22'); e('v_lshl_add_u32 v4, v2, 4, v4')
    e('s_lshl_b32 s23, s2, 6')
    e('s_waitcnt lgkmcnt(0)')
    srd(e, 8, 4, 5, 1024); srd(e, 12, 6, 7, 512 * 6144); srd(e, 16, 20, 21, 0x4000)
    for i in range(8): st.vm(f'buffer_load_ushort v{8+i}, v3, s[8:11], 0 offen offset:{128*i}', 'c')
    for i in range(8):
        st.vm(f'buffer_load_dwordx4 v[{16+4*i}:{19+4*i}], v4, s[12:15], s23 offen', ('w', i))
        if i < 7: e(f's_add_u32 s23, s23, {64*6144}')
    e('s_lshr_b32 s24, s2, 4'); e('s_and_b32 s25, s2, 15')
    e('s_lshl_b32 s26, s25, 7')
    e('s_lshl_b32 s27, s25, 8')
    e(f's_mov_b32 s28, 0'); e(f's_mov_b32 s29, 1.0')
    bases = {2: WS_MODB, 3: WS_MODB + 4096, 4: WS_MODB + 2048, 5: WS_MODB + 6144}
    e(f's_add_u32 s30, s27, {WS_MODA + 128}')
    e('s_cmp_eq_u32 s24, 1'); e(f's_cselect_b32 s30, s27, s30')
    for sg, b in bases.items():
        e(f's_add_u32 s31, s26, {b}'); e(f's_cmp_eq_u32 s24, {sg}'); e('s_cselect_b32 s30, s31, s30')
    e('s_cmp_eq_u32 s24, 1'); e('s_cselect_b32 s28, 1.0, s28')
    e('s_cmp_eq_u32 s24, 4'); e('s_cselect_b32 s28, 1.0, s28')
    e('s_cmp_lt_u32 s24, 2'); e(f's_cselect_b32 s29, {f2h(QSCALE)}, s29')
    st.wait(vm=['c'])
    for i in range(8): e(f'v_lshlrev_b32 v{8+i}, 16, v{8+i}')
    for i in range(8): e(f'v_mul_f32 v{48+i}, {f2h(-1.4426950408889634)}, v{8+i}')
    for i in range(8): e(f'v_exp_f32 v{48+i}, v{48+i}')
    for i in range(8): e(f'v_add_f32 v{48+i}, 1.0, v{48+i}')
    for i in range(8): e(f'v_rcp_f32 v{48+i}, v{48+i}')
    for i in range(8): e(f'v_mul_f32 v{8+i}, v{8+i}, v{48+i}')
    for i in range(8): e(f'v_cvt_pk_bf16_f32 v{8+i}, v{8+i}, v{8+i}')
    for i in range(8): e(f'v_lshlrev_b32 v{8+i}, 16, v{8+i}')
    for j in range(8): e(f'v_mov_b32 v{56+j}, 0')
    for i in range(8):
        st.wait(vm=[('w', i)])
        for j in range(4):
            e(f'v_lshlrev_b32 v48, 16, v{16+4*i+j}'); e(f'v_and_b32 v49, 0xffff0000, v{16+4*i+j}')
            e(f'v_fmac_f32 v{56+2*j}, v48, v{8+i}'); e(f'v_fmac_f32 v{57+2*j}, v49, v{8+i}')
    e('s_nop 1')
    for ror in (4, 8):
        for j in range(8): e(f'v_add_f32_dpp v{56+j}, v{56+j}, v{56+j} row_ror:{ror} row_mask:0xf bank_mask:0xf')
    xlane_reduce(e, list(range(56, 64)), list(range(64, 72)), 'v_add_f32')
    e('v_lshrrev_b32 v5, 6, v0'); e('v_lshlrev_b32 v5, 7, v5'); e('v_lshl_add_u32 v5, v2, 5, v5')
    st.lds('ds_write_b128 v5, v[56:59]'); st.lds('ds_write_b128 v5, v[60:63] offset:16')
    st.wait(lds='all'); e('s_barrier')
    e('v_cmp_gt_u32 vcc, 32, v0'); e('s_and_saveexec_b64 s[32:33], vcc'); e('s_cbranch_execz L_k0_end')
    e('v_lshlrev_b32 v5, 2, v0')
    for wv in range(4): st.lds(f'ds_read_b32 v{8+wv}, v5 offset:{128*wv}')
    st.wait(lds='all')
    e('v_add_f32 v8, v8, v9'); e('v_add_f32 v10, v10, v11'); e('v_add_f32 v8, v8, v10')
    e('v_cvt_pk_bf16_f32 v8, v8, v8'); e('v_lshlrev_b32 v8, 16, v8')
    e('v_add_f32 v8, s28, v8')
    e('v_cvt_pk_bf16_f32 v8, v8, v8'); e('v_lshlrev_b32 v8, 16, v8')
    e('v_mul_f32 v8, s29, v8')
    st.vm(f'buffer_store_dword v8, v5, s[16:19], s30 offen{SC}')
    out = header(name) + st.resolve() + ['L_k0_end:', 's_endpgm']
    return out, kd(name, 72, 72), f'; @launch kernel={name} grid=(96,1,1) block=(256,1,1) lds=512'
```

```python
from gen_common import *

S_X, S_WQ, S_K, S_V, S_WO, S_WS, S_PART = 8, 12, 16, 20, 24, 28, 32
S_G, S_RB, S_W, S_WB = 36, 37, 38, 39
S_OFFK, S_OFFV, S_M0V, S_CNT, S_OFFW, S_FLAG = 40, 41, 43, 44, 45, 46
S_M0K = S_WB
S_T = 48
V_R, V_G, V_PI = 1, 2, 3
V_Q = 16; V_S = [80, 112]; V_P = [144, 160]; V_NEGM = 176; V_FR = 192
V_KA = 224; V_VA = 228; V_DK = 236; V_DV = 240; V_DWO = 242; V_TO = [208, 216]; V_BO = 250
V_ACC = 80
V_DWQ = 16; V_TA = [24, 32]; V_BA = 40; V_MOD = 48; V_HO = 208
A_O = 0; A_AF = 128; A_BF = 160; A_L = 192; A_ONE = 208; A_DUMMY = 212
R0, R1, R2, R3, R4 = 0, 32768, 65536, 98304, 131072
LDS_V = R2
NT = 32

def O(db, qb): return ar(A_O + (db * 4 + qb) * 4, 4)
def Q(qb, ks): return vr(V_Q + (qb * 4 + ks) * 4, 4)
def Lr(qb): return ar(A_L + qb * 4, 4)
def Sreg(buf, kb, qb): return V_S[buf] + (kb * 4 + qb) * 4
def Preg(buf, qb): return V_P[buf] + qb * 4
def ACC(nb, qb): return V_ACC + (nb * 4 + qb) * 4

class Cfg:
    D = 5; wait_every = 2; B = 102; dma_gap = 3; GD = 3; stamps = 0; thr = 2.0 ** 64; prefetch = 1

def quads_A(h, raw=False, slot=None):
    tile, hf = h // 2, h % 2
    if slot is None: slot = tile % 4
    qs = []
    for kb in range(2):
        for ks in range(4):
            off = slot * 16384 + (32 * hf + 16 * kb) * 256
            def mf(fr, kb=kb, ks=ks):
                r = []
                for qb in range(4):
                    s = vr(Sreg(h % 2, kb, qb), 4)
                    c = s if ks else ('0' if raw else vr(V_NEGM + 4 * qb, 4))
                    r.append(f'{MF} {s}, {vr(fr, 4)}, {Q(qb, ks)}, {c}')
                return r
            def rd(fr, ks=ks, off=off): return [f'ds_read_b128 {vr(fr, 4)}, {vr(V_KA + ks)} offset:{off}']
            qs.append(dict(mf=mf, rd=rd, tag=('K', h, kb, ks)))
    return qs

def quads_C(h):
    tile, hf = h // 2, h % 2
    qs = []
    for db in range(8):
        off = (tile % 4) * 16384 + (32 * hf) * 256
        def mf(fr, db=db):
            return [f'{MF} {O(db, qb)}, {vr(fr, 4)}, {vr(Preg(h % 2, qb), 4)}, {O(db, qb)}' for qb in range(4)]
        def rd(fr, db=db, off=off):
            return [f'ds_read_b64_tr_b16 {vr(fr, 2)}, {vr(V_VA + db)} offset:{off}',
                    f'ds_read_b64_tr_b16 {vr(fr + 2, 2)}, {vr(V_VA + db)} offset:{off + 4096}']
        qs.append(dict(mf=mf, rd=rd, tag=('V', h, db)))
    qs.append(dict(mf=lambda fr: [f'{MF} {Lr(qb)}, {ar(A_ONE, 4)}, {vr(Preg(h % 2, qb), 4)}, {Lr(qb)}' for qb in range(4)], rd=None, tag=None))
    return qs

def softmax_ops(h):
    exps = []; posts = []
    for kb in range(2):
        for qb in range(4):
            s = Sreg(h % 2, kb, qb)
            for i in range(4):
                exps.append(f'v_exp_f32 {vr(s + i)}, {vr(s + i)}')
                if i & 1:
                    posts.append((len(exps), f'v_cvt_pk_bf16_f32 {vr(Preg(h % 2, qb) + 2 * kb + i // 2)}, {vr(s + i - 1)}, {vr(s + i)}'))
    return exps, posts

def kv_dma(which, tile):
    slot = tile % 4
    m0, dv, srdr, off, nv = (S_M0K, V_DK, S_K, S_OFFK, 4) if which == 'K' else (S_M0V, V_DV, S_V, S_OFFV, 2)
    ops = [(f's_add_u32 m0, {sr(m0)}, {slot * 16384}', None)]
    for j in range(4):
        ops.append((f'buffer_load_dwordx4 {vr(dv + j % nv)}, {sr(srdr, 4)}, {sr(off)} offen offset:{j * 1024} lds', ('d' + which, tile)))
    ops.append((f's_add_u32 {sr(off)}, {sr(off)}, 16384', None))
    return ops

def w_dma(name, s, region, dv, srdr, step):
    ops = []
    for j in range(8):
        if j % 4 == 0: ops.append((f's_add_u32 m0, {sr(S_WB)}, {region + (j // 4) * 16384}', None))
        ops.append((f'buffer_load_dwordx4 {vr(dv + j)}, {sr(srdr, 4)}, {sr(S_OFFW)} offen offset:{(j % 4) * 1024} lds', (name, s)))
    ops.append((f's_add_u32 {sr(S_OFFW)}, {sr(S_OFFW)}, {step}', None))
    return ops
def is_m0(t): return t.split(',')[0].endswith('m0')
def emit_ops(st, ops):
    for t, tag in ops:
        if tag: st.vm(t, tag)
        else:
            st.e(t)
            if is_m0(t): st.e('s_nop 0')

def attn_main(st, cfg, tail_extra):
    D = cfg.D
    quads = []
    for t in range(NT):
        for sub in range(2):
            p = 2 * t + 1 + sub
            qs = (quads_A(p + 1) if p + 1 < 2 * NT else []) + quads_C(p - 1)
            for i, q in enumerate(qs):
                q.update(it=t, period=p, idx=i, n=len(qs)); quads.append(q)
    c = 0
    for q in quads:
        if q['rd']: q['fr'] = V_FR + 4 * (c % 8); c += 1
        else: q['fr'] = None
    nq = len(quads)
    last_idx = {}
    for i, q in enumerate(quads): last_idx[q['it']] = i
    xpos = {last_idx[t] + 1 - D: t for t in range(NT - 1)}
    def window(t):
        ops = []
        if t + 3 < NT: ops += kv_dma('V', t + 3)
        if t + 4 < NT: ops += kv_dma('K', t + 4)
        return ops + tail_extra(t)
    def run(st, npre0, lastoff):
        pend = window(0)
        pre = pend[:npre0]; pend = pend[npre0:]
        for i in range(D):
            if quads[i]['rd']:
                for txt in quads[i]['rd'](quads[i]['fr']): st.lds(txt, quads[i]['tag'])
        emit_ops(st, pre)
        ex, po = softmax_ops(0)
        k = 0
        for i, x in enumerate(ex):
            st.e(x)
            while k < len(po) and po[k][0] <= i: st.e(po[k][1]); k += 1
        st.e('s_nop 0')
        while k < len(po): st.e(po[k][1]); k += 1
        st.wait(lds=[q['tag'] for q in quads[:cfg.wait_every] if q['tag']])
        waited = cfg.wait_every - 1
        npre = {}; S = dict(cnt=0, m0=False, lastdma=-cfg.dma_gap + lastoff)
        cur_it = -1; cur_p = -1
        exps = []; posts = []; nexp = 0
        for i, q in enumerate(quads):
            if q['it'] != cur_it:
                cur_it = q['it']; st.mark(f'it{cur_it}'); npre[cur_it] = (S['cnt'], S['lastdma'] - i + cfg.dma_gap)
            if q['period'] != cur_p:
                assert not exps and not posts
                cur_p = q['period']; nexp = 0
                if cur_p < 2 * NT: exps, posts = softmax_ops(cur_p)
            if i in xpos:
                t = xpos[i]
                assert not pend, ('dma window not finished', t, pend)
                st.wait(lds='all', vm=[('dV', t + 1)] + ([('dK', t + 2)] if t + 2 < NT else []))
                st.e('s_barrier')
                waited = max(waited, i + D - 1)
                pend = window(t + 1); S['cnt'] = 0
            mfs = q['mf'](q['fr'])
            reads = []
            if i + D < nq and quads[i + D]['rd']:
                z = quads[i + D]; reads = [(txt, z['tag']) for txt in z['rd'](z['fr'])]
            wtags = []
            if i + 1 < nq and i + 1 > waited and (i + 1) not in xpos:
                hi = min(nq, i + 1 + cfg.wait_every)
                wtags = [quads[j]['tag'] for j in range(i + 1, hi) if quads[j]['tag']]
                waited = hi - 1
            rem = q['n'] - q['idx'] - 1
            ne = min(len(exps), max(2, -(-len(exps) // (rem + 1))))
            egap = [0, 0, 0, 0]
            for k in range(ne): egap[k % 3 if ne > 2 else k] += 1
            for g in range(4):
                st.e(mfs[g]); S['m0'] = False
                safe_exp = nexp
                for k in range(egap[g]): st.e(exps.pop(0)); nexp += 1
                slots = 0 if egap[g] else 2
                if g == 3 and wtags: slots -= 1
                while True:
                    ap = bool(posts) and posts[0][0] <= safe_exp
                    must = len(posts) > rem * (1 if q['n'] > 9 else 2)
                    if reads and (slots > 0 or g == 3):
                        txt, tag = reads.pop(0); st.lds(txt, tag); S['m0'] = False
                    elif ap and must and (slots > 0 or g == 3):
                        st.e(posts.pop(0)[1]); S['m0'] = False
                    elif slots > 0 and pend and not S['m0'] and (pend[0][1] is None or i - S['lastdma'] >= cfg.dma_gap):
                        txt, tag = pend.pop(0); S['cnt'] += 1
                        if tag: st.vm(txt, tag); S['lastdma'] = i
                        else: st.e(txt); S['m0'] = is_m0(txt)
                    elif slots > 0 and ap:
                        st.e(posts.pop(0)[1]); S['m0'] = False
                    else: break
                    slots -= 1
                if g == 3 and wtags: st.wait(lds=wtags)
        assert not pend and not exps and not posts
        st.mark('end')
        return npre
    npre = run(Stream(), 0, 0)
    n = npre[2]
    assert all(v == n for k, v in npre.items() if 2 <= k <= NT - 4), npre
    run(st, n[0], n[1])

def gemm(st, cfg, name, ta, joff, vba, baddr, refill, extra, first_ops=()):
    D = cfg.GD; NS = 16; nq = NS * 8
    def rdA(n):
        s, nb = divmod(n, 8); vb, ib = ta(s); fr = A_AF + 4 * (n % 8)
        return [(f'ds_read_b64_tr_b16 {ar(fr, 2)}, {vr(vb + nb)} offset:{ib}', (name + 'A', n)),
                (f'ds_read_b64_tr_b16 {ar(fr + 2, 2)}, {vr(vb + nb)} offset:{ib + joff}', (name + 'A', n))]
    def rdB(ks, qb):
        return (f'ds_read_b128 {ar(A_BF + 16 * (ks % 2) + 4 * qb, 4)}, {vr(vba)} offset:{baddr(ks, qb)}', (name + 'B', ks))
    st.wait(vm=[(name, 0)])
    for qb in range(4): st.lds(*rdB(0, qb))
    for n in range(D):
        for x in rdA(n): st.lds(*x)
    pend = list(first_ops); extra = list(extra)
    st.wait(lds=[(name + 'B', 0), (name + 'A', 0)])
    waited = 0; released = -1; m0 = False
    for n in range(nq):
        ks, nb = divmod(n, 8)
        while released + 1 < NS and waited >= 8 * (released + 1) + 7:
            released += 1; pend += refill(released)
        reads = []
        if n + D < nq:
            if (n + D) % 8 == 0: reads.append(('vmwait', (name, (n + D) // 8)))
            reads += rdA(n + D)
        if ks + 1 < NS and 1 <= nb <= 4: reads.insert(0, rdB(ks + 1, nb - 1))
        wt = []
        if n + 1 < nq and n + 1 > waited:
            hi = min(nq - 1, n + 2 if (n + 1) % 2 == 0 and D >= 3 else n + 1)
            wt = [(name + 'A', j) for j in range(n + 1, hi + 1)]
            if any(j % 8 == 0 for j in range(n + 1, hi + 1)): wt.append((name + 'B', ks + 1))
        ndma = 0
        for g in range(4):
            c = vr(ACC(nb, g), 4)
            st.e(f'{MF} {c}, {ar(A_AF + 4 * (n % 8), 4)}, {ar(A_BF + 16 * (ks % 2) + 4 * g, 4)}, {c if ks else 0}'); m0 = False
            slots = 2 - (1 if g == 3 and wt else 0)
            while slots > 0:
                if reads:
                    t, tag = reads.pop(0)
                    if t == 'vmwait': st.wait(vm=[tag])
                    else: st.lds(t, tag)
                    m0 = False
                elif pend and not m0 and (pend[0][1] is None or ndma < 2):
                    t, tag = pend.pop(0)
                    if tag: st.vm(t, tag); ndma += 1
                    else: st.e(t); m0 = is_m0(t)
                elif extra: st.e(extra.pop(0)); m0 = False
                else: break
                slots -= 1
            if g == 3 and wt: st.wait(lds=wt); waited = hi
        assert not reads
    while released + 1 < NS:
        released += 1; pend += refill(released)
    if m0: st.e('s_nop 0')
    emit_ops(st, pend)
    for x in extra: st.e(x)

def stamp(st, cfg, idx):
    if cfg.stamps:
        st.e(f's_memrealtime s[{64 + 2 * idx}:{65 + 2 * idx}]'); st.e('s_waitcnt lgkmcnt(0)')

def gen_k1(cfg, name='k1_attn_kernel'):
    st = Stream(); e = st.e
    e('s_cmp_ge_u32 s2, 256'); e('s_cbranch_scc1 L_k1_end')
    e(f's_load_dwordx8 s[48:55], s[0:1], {KA_X}')
    e(f's_load_dwordx2 s[56:57], s[0:1], {KA_WO}'); e(f's_load_dwordx2 s[58:59], s[0:1], {KA_WS}')
    if cfg.stamps: e('s_memrealtime s[64:65]')
    e(f's_and_b32 s{S_G}, s2, 7'); e(f's_lshr_b32 s{S_RB}, s2, 3')
    e('v_lshrrev_b32 v4, 6, v0'); e('v_and_b32 v0, 63, v0'); e(f'v_readfirstlane_b32 s{S_W}, v4')
    e(f'v_and_b32 v{V_R}, 15, v0'); e(f'v_lshrrev_b32 v{V_G}, 4, v0')
    e(f'v_and_b32 v4, 1, v{V_G}'); e('v_lshlrev_b32 v4, 1, v4'); e(f'v_lshrrev_b32 v5, 1, v{V_G}'); e(f'v_or_b32 v{V_PI}, v4, v5')
    e(f's_lshl_b32 s{S_WB}, s{S_W}, 12')
    e(f'v_lshlrev_b32 v6, 10, v{V_R}'); e(f'v_lshl_add_u32 v6, v{V_G}, 4, v6')
    e(f's_lshl_b32 s60, s{S_RB}, 16'); e(f's_lshl_b32 s61, s{S_W}, 14'); e('s_add_u32 s60, s60, s61')
    e('s_waitcnt lgkmcnt(0)')
    srd(e, S_X, 48, 49, 2048 * 1024)
    for ks in range(16):
        st.vm(f'buffer_load_dwordx4 {vr(V_ACC + 8 * ks + 4, 4)}, v6, {sr(S_X, 4)}, s60 offen offset:{ks * 64}', ('x', ks))
    srd(e, S_WS, 58, 59, 0x1000)
    e(f's_lshl_b32 s61, s{S_W}, 14'); e(f's_add_u32 m0, s61, {R3 + 12 * 1024}'); e('v_lshlrev_b32 v7, 4, v0')
    for j in range(4): st.vm(f'buffer_load_dwordx4 v7, {sr(S_WS, 4)}, 0 offen offset:{j * 1024} lds', 'mod')
    e(f's_lshl_b32 s62, s{S_G}, 10'); e(f's_sub_u32 s63, {512 * 8192}, s62')
    srd(e, S_WQ, 54, 55, 's63', off='s62')
    e(f's_lshl_b32 s61, s{S_W}, 8'); e(f'v_lshl_add_u32 v8, v{V_G}, 13, s61')
    for hb in range(2):
        e(f'v_add_u32 v4, {4 * hb}, v{V_G}'); e('v_lshlrev_b32 v4, 1, v4'); e(f'v_xor_b32 v4, v4, v{V_R}'); e(f'v_lshl_add_u32 v{9 + hb}, v4, 4, v8')
    for j in range(8): e(f'v_add_u32 {vr(V_DWQ + j)}, {32768 * j - 1024 * (j % 4)}, v{9 + ((j >> 1) & 1)}')
    e(f's_mov_b32 s{S_OFFW}, 0')
    QREG = lambda s: [R0, R2, R1][(s - 13) % 3]
    for s in range(3): emit_ops(st, w_dma('wq', s, QREG(s), V_DWQ, S_WQ, 262144))
    ndum = [0]
    def pf(voff, srdr, soff, imm=0):
        r = A_DUMMY + 4 * (ndum[0] % 11); ndum[0] += 1
        st.vm(f'buffer_load_dwordx4 {ar(r, 4)}, {voff}, {sr(srdr, 4)}, {soff} offen offset:{imm}', 'pf')
    if cfg.prefetch:
        e(f's_lshl_b32 s61, s{S_RB}, 17'); e(f's_lshl_b32 s62, s{S_W}, 15'); e('s_add_u32 s61, s61, s62')
        for i in range(4):
            pf('v7', S_WQ, 's61')
            if i < 3: e('s_add_u32 s61, s61, 8192')
    e(f's_lshl_b32 s62, s{S_G}, 19')
    srd(e, S_K, 50, 51, 524288, off='s62'); srd(e, S_V, 52, 53, 524288, off='s62')
    srd(e, S_WO, 56, 57, 524288, off='s62')
    e(f's_lshl_b32 s62, s{S_G}, 21'); e(f's_add_u32 s62, s62, {WS_PART}')
    srd(e, S_PART, 58, 59, 1 << 21, off='s62')
    e(f's_mov_b32 s{S_OFFK}, 0'); e(f's_mov_b32 s{S_OFFV}, 0'); e(f's_add_u32 s{S_M0V}, s{S_WB}, {LDS_V}'); e(f's_mov_b32 s{S_FLAG}, 0')
    for ks in range(4):
        e(f'v_add_u32 v5, {4 * ks}, v{V_PI}'); e(f'v_xor_b32 v5, v5, v{V_R}'); e('v_lshlrev_b32 v5, 4, v5'); e(f'v_lshl_add_u32 {vr(V_KA + ks)}, v{V_R}, 8, v5')
    e(f'v_lshrrev_b32 v11, 2, v{V_R}'); e(f'v_and_b32 v12, 3, v{V_R}'); e('v_lshlrev_b32 v12, 3, v12')
    e(f'v_lshl_add_u32 v5, v{V_G}, 2, v11'); e('v_and_b32 v13, 7, v5'); e('v_lshl_add_u32 v14, v5, 8, v12'); e(f'v_add_u32 v14, {LDS_V}, v14')
    for db in range(8): e(f'v_xor_b32 v4, {db}, v13'); e(f'v_lshl_add_u32 {vr(V_VA + db)}, v4, 5, v14')
    e(f'v_lshl_add_u32 v9, v{V_G}, 8, s{S_WB}')
    for j in range(4): e(f'v_add_u32 v5, {4 * j}, v{V_G}'); e(f'v_xor_b32 v5, v5, v{V_R}'); e(f'v_lshl_add_u32 {vr(V_DK + j)}, v5, 4, v9')
    for j in range(2): e(f'v_add_u32 v5, {4 * j}, v{V_G}'); e('v_lshlrev_b32 v5, 1, v5'); e(f'v_xor_b32 v5, v5, v{V_R}'); e(f'v_lshl_add_u32 {vr(V_DV + j)}, v5, 4, v9')
    e(f's_lshl_b32 s61, s{S_W}, 8'); e(f'v_lshl_add_u32 v8, v{V_G}, 10, s61')
    for hb in range(2):
        e(f'v_add_u32 v4, {4 * hb}, v{V_G}'); e('v_lshlrev_b32 v4, 1, v4'); e(f'v_xor_b32 v4, v4, v{V_R}'); e(f'v_lshl_add_u32 v{9 + hb}, v4, 4, v8')
    for j in range(8): e(f'v_add_u32 {vr(V_DWO + j)}, {4096 * j - 1024 * (j % 4)}, v{9 + (j & 1)}')
    e(f'v_and_b32 v4, 1, v{V_G}'); e('v_lshl_add_u32 v13, v4, 2, v11'); e('v_lshl_add_u32 v5, v4, 3, v11'); e('v_lshl_add_u32 v14, v5, 8, v12')
    e(f'v_lshrrev_b32 v4, 1, v{V_G}'); e('v_lshl_add_u32 v14, v4, 14, v14'); e(f'v_add_u32 v14, s{S_WB}, v14')
    for nb in range(8):
        e(f'v_xor_b32 v4, {nb}, v13'); e(f'v_lshl_add_u32 {vr(V_TA[0] + nb)}, v4, 5, v14'); e(f'v_add_u32 {vr(V_TA[1] + nb)}, {R2}, {vr(V_TA[0] + nb)}')
    e(f'v_add_u32 {vr(V_BA)}, {R3}, v7')
    e(f's_lshl_b32 s61, s{S_W}, 14'); e(f'v_add_u32 v8, s61, {vr(V_BA)}')
    e(f's_add_u32 s61, s61, {R3 + 12288}'); e(f'v_lshl_add_u32 v9, v{V_G}, 5, s61')
    for ks in range(16):
        b = V_ACC + 8 * ks
        if ks % 2 == 0: st.wait(vm=[('x', ks + 1)])
        for j in range(4):
            e(f'v_lshlrev_b32 v{b + 2 * j}, 16, v{b + 4 + j}'); e(f'v_and_b32 v{b + 2 * j + 1}, 0xffff0000, v{b + 4 + j}')
        for j in range(4):
            if ks == 0: continue
            a = V_HO + 2 * j
            e(f'v_pk_add_f32 {vr(a, 2)}, {vr(b + 2 * j, 2)}, {vr(a, 2) if ks > 1 else vr(V_ACC + 2 * j, 2)}')
    stamp(st, cfg, 1)
    if cfg.prefetch:
        e(f's_lshl_b32 s61, s{S_RB}, 11'); e(f's_and_b32 s62, s{S_W}, 1'); e('s_lshl_b32 s62, s62, 10'); e('s_add_u32 s61, s61, s62')
        pf('v7', S_K, 's61'); pf('v7', S_V, 's61')
        e(f's_lshl_b32 s61, s{S_RB}, 14'); e(f's_add_u32 s61, s61, s{S_WB}')
        for i in range(4): pf('v7', S_WO, 's61', 1024 * i)
    a = V_HO
    e(f'v_pk_add_f32 {vr(a, 2)}, {vr(a, 2)}, {vr(a + 2, 2)}'); e(f'v_pk_add_f32 {vr(a + 4, 2)}, {vr(a + 4, 2)}, {vr(a + 6, 2)}')
    e(f'v_pk_add_f32 {vr(a, 2)}, {vr(a, 2)}, {vr(a + 4, 2)}'); e(f'v_add_f32 v4, v{a}, v{a + 1}')
    xlane_reduce(e, [4], [5], 'v_add_f32')
    e(f'v_mul_f32 v4, {f2h(-1.0 / 512)}, v4')
    for ks in range(16):
        b = V_ACC + 8 * ks
        for j in range(4): e(f'v_pk_add_f32 {vr(b + 2 * j, 2)}, {vr(b + 2 * j, 2)}, v[4:5] op_sel_hi:[1,0]')
        for j in range(4):
            if ks == 0: e(f'v_pk_mul_f32 {vr(a + 2 * j, 2)}, {vr(b + 2 * j, 2)}, {vr(b + 2 * j, 2)}')
            else: e(f'v_pk_fma_f32 {vr(a + 2 * j, 2)}, {vr(b + 2 * j, 2)}, {vr(b + 2 * j, 2)}, {vr(a + 2 * j, 2)}')
    st.wait(vm=['mod'])
    def modrd(ks):
        m = V_MOD + 16 * (ks % 2)
        for j in range(4): st.lds(f'ds_read_b128 {vr(m + 4 * j, 4)}, v9 offset:{ks * 256 + (j // 2) * 128 + (j % 2) * 16}', ('mod', ks))
    modrd(0); modrd(1)
    e(f'v_pk_add_f32 {vr(a, 2)}, {vr(a, 2)}, {vr(a + 2, 2)}'); e(f'v_pk_add_f32 {vr(a + 4, 2)}, {vr(a + 4, 2)}, {vr(a + 6, 2)}')
    e(f'v_pk_add_f32 {vr(a, 2)}, {vr(a, 2)}, {vr(a + 4, 2)}'); e(f'v_add_f32 v4, v{a}, v{a + 1}')
    xlane_reduce(e, [4], [5], 'v_add_f32')
    e(f'v_mov_b32 v5, {f2h(1e-5)}'); e(f'v_fmac_f32 v5, {f2h(1.0 / 512)}, v4'); e('v_rsq_f32 v4, v5'); e('s_nop 0')
    for ks in range(16):
        b = V_ACC + 8 * ks; m = V_MOD + 16 * (ks % 2); ho = V_HO + 4 * (ks % 2)
        for j in range(4): e(f'v_pk_mul_f32 {vr(b + 2 * j, 2)}, {vr(b + 2 * j, 2)}, v[4:5] op_sel_hi:[1,0]')
        st.wait(lds=[('mod', ks)])
        for j in range(4): e(f'v_pk_fma_f32 {vr(b + 2 * j, 2)}, {vr(b + 2 * j, 2)}, {vr(m + 2 * j, 2)}, {vr(m + 8 + 2 * j, 2)}')
        if ks + 2 < 16: modrd(ks + 2)
        for j in range(4): e(f'v_cvt_pk_bf16_f32 v{ho + j}, v{b + 2 * j}, v{b + 2 * j + 1}')
        st.lds(f'ds_write_b128 v8, {vr(ho, 4)} offset:{ks * 1024}', 'hw')
    st.wait(lds='all'); e('s_barrier')
    stamp(st, cfg, 2)
    def ta_q(s):
        r = QREG(s); return (V_TA[1], 0) if r == R2 else (V_TA[0], r)
    def refill_q(s):
        if s + 3 < 16: return w_dma('wq', s + 3, QREG(s + 3), V_DWQ, S_WQ, 262144)
        return {13: kv_dma('K', 0) + kv_dma('K', 1), 14: kv_dma('V', 0) + kv_dma('V', 1), 15: kv_dma('K', 2) + kv_dma('K', 3)}[s]
    zero = [f'v_accvgpr_write_b32 a{A_O + i}, 0' for i in range(128)] + [f'v_accvgpr_write_b32 a{A_L + i}, 0' for i in range(16)]
    zero += ['v_mov_b32 v5, 0x3f803f80'] + [f'v_accvgpr_write_b32 a{A_ONE + i}, v5' for i in range(4)]
    gemm(st, cfg, 'wq', ta_q, 1024, V_BA, lambda ks, qb: qb * 16384 + ks * 1024, refill_q, zero)
    stamp(st, cfg, 3)
    e('s_nop 3')
    for ks in range(4):
        for qb in range(4):
            d = V_Q + (qb * 4 + ks) * 4; a0 = ACC(2 * ks, qb); a1 = ACC(2 * ks + 1, qb)
            e(f'v_cvt_pk_bf16_f32 v{d}, v{a0}, v{a0 + 1}'); e(f'v_cvt_pk_bf16_f32 v{d + 1}, v{a0 + 2}, v{a0 + 3}')
            e(f'v_cvt_pk_bf16_f32 v{d + 2}, v{a1}, v{a1 + 1}'); e(f'v_cvt_pk_bf16_f32 v{d + 3}, v{a1 + 2}, v{a1 + 3}')
        e('s_nop 0')
        for qb in range(4):
            d = V_Q + (qb * 4 + ks) * 4
            e(f'v_permlane16_swap_b32 v{d}, v{d + 2}'); e(f'v_permlane16_swap_b32 v{d + 1}, v{d + 3}')
    st.wait(vm=[('dK', 0)]); e('s_barrier')
    emit_ops(st, kv_dma('V', 2))
    st.mark('attn_start')
    def rawA(qs, st):
        e = st.e
        for i, q in enumerate(qs): q['fr'] = V_FR + 4 * (i % 8)
        for i in range(4): st.lds(qs[i]['rd'](qs[i]['fr'])[0], qs[i]['tag'])
        for i, q in enumerate(qs):
            st.wait(lds=[q['tag']])
            m = q['mf'](q['fr']); e(m[0])
            if i + 4 < len(qs): st.lds(qs[i + 4]['rd'](qs[i + 4]['fr'])[0], qs[i + 4]['tag'])
            e(m[1]); e(m[2]); e(m[3])
    def tile_max(first, st):
        e = st.e
        for qb in range(4):
            regs = [Sreg(b, kb, qb) + i for b in range(2) for kb in range(2) for i in range(4)]
            m = 4 + qb
            if first:
                e(f'v_max3_f32 v{m}, v{regs[0]}, v{regs[1]}, v{regs[2]}')
                for i in range(3, 15, 2): e(f'v_max3_f32 v{m}, v{m}, v{regs[i]}, v{regs[i + 1]}')
                e(f'v_max_f32 v{m}, v{m}, v{regs[15]}')
            else:
                for i in range(0, 16, 2): e(f'v_max3_f32 v{m}, v{m}, v{regs[i]}, v{regs[i + 1]}')
    def make_negm(st):
        e = st.e
        xlane_reduce(e, [4, 5, 6, 7], [8, 9, 10, 11], 'v_max_f32')
        for qb in range(4):
            for i in range(4): e(f'v_sub_f32 {vr(V_NEGM + 4 * qb + i)}, {f2h(-cfg.B)}, v{4 + qb}')
    rawA(quads_A(0, raw=True) + quads_A(1, raw=True), st)
    e(f's_cmp_lg_u32 s{S_FLAG}, 0'); e('s_nop 6'); e('s_cbranch_scc1 L_k1_havemax')
    tile_max(True, st); make_negm(st)
    e('L_k1_havemax:')
    for b in range(2):
        for kb in range(2):
            for qb in range(4):
                s = Sreg(b, kb, qb)
                for i in (0, 2): e(f'v_pk_add_f32 {vr(s + i, 2)}, {vr(s + i, 2)}, {vr(V_NEGM + 4 * qb, 2)}')
    st.wait(lds='all', vm=[('dK', 1), ('dV', 0)]); e('s_barrier')
    OREG = lambda s: [R4, R0, R3][s % 3]
    def tail_extra(t):
        if t == 29: return [(f's_mov_b32 s{S_OFFW}, 0', None)] + w_dma('wo', 0, OREG(0), V_DWO, S_WO, 32768)
        if t == 30: return w_dma('wo', 1, OREG(1), V_DWO, S_WO, 32768)
        return []
    attn_main(st, cfg, tail_extra)
    stamp(st, cfg, 5)
    e('s_setreg_imm32_b32 hwreg(HW_REG_MODE, 4, 2), 3')
    e(f's_sub_u32 s61, s{S_WB}, {LDS_V}'); e(f's_add_u32 s62, s{S_WB}, {R3 - LDS_V}')
    for nb in range(8): e(f'v_add_u32 {vr(V_TO[0] + nb)}, s61, {vr(V_VA + nb)}')
    for nb in range(8): e(f'v_add_u32 {vr(V_TO[1] + nb)}, s62, {vr(V_VA + nb)}')
    for qb in range(4): e(f'v_accvgpr_read_b32 v{4 + qb}, a{A_L + 4 * qb}')
    e(f'v_mov_b32 v12, {f2h(cfg.thr)}')
    e('v_max3_f32 v8, v4, v5, v6'); e('v_max_f32 v8, v8, v7')
    for qb in range(4): e(f'v_add_f32 v{9}, v{4 + qb}, {"v9" if qb else "0"}')
    e('v_cmp_nlt_f32 vcc, v8, v12'); e('v_cmp_u_f32 s[62:63], v9, v9')
    for qb in range(4): e(f'v_rcp_f32 v{4 + qb}, v{4 + qb}')
    e('s_or_b64 vcc, vcc, s[62:63]'); e('s_cmp_lg_u64 vcc, 0'); e('s_cselect_b32 s61, 1, 0')
    e('v_and_b32 v10, 3, v0'); e('v_lshlrev_b32 v10, 12, v10'); e(f's_lshl_b32 s62, s{S_W}, 2'); e(f's_add_u32 s62, s62, {R3}'); e('v_add_u32 v10, s62, v10')
    e('v_mov_b32 v11, s61'); st.lds('ds_write_b32 v10, v11', 'flagw')
    e('v_lshlrev_b32 v14, 4, v0'); e(f's_lshl_b32 s61, s{S_W}, 14'); e(f's_add_u32 s61, s61, {R1}'); e('v_add_u32 v13, s61, v14')
    k = 0
    for qb in range(4):
        for m in range(4):
            t = V_S[0] + 16 * (k % 4); k += 1
            for hb in range(2):
                for i in range(4): e(f'v_accvgpr_read_b32 v{t + 4 * hb + i}, a{A_O + ((2 * m + hb) * 4 + qb) * 4 + i}')
            sel = f'v[{4 + qb}:{5 + qb}] op_sel_hi:[1,0]' if qb % 2 == 0 else f'v[{3 + qb}:{4 + qb}] op_sel:[0,1] op_sel_hi:[1,1]'
            for i in range(4): e(f'v_pk_mul_f32 {vr(t + 2 * i, 2)}, {vr(t + 2 * i, 2)}, {sel}')
            for i in range(4): e(f'v_cvt_pk_bf16_f32 v{t + 8 + i}, v{t + 2 * i}, v{t + 2 * i + 1}')
            st.lds(f'ds_write_b128 v13, {vr(t + 8, 4)} offset:{qb * 4096 + m * 1024}', 'ow')
    e(f'v_add_u32 v{V_BO}, {R1}, v14'); e(f's_add_u32 s61, s{S_WB}, {R3}'); e('v_mov_b32 v10, s61')
    st.wait(lds='all'); e('s_barrier')
    st.lds('ds_read_b128 v[4:7], v10', 'flagr'); st.wait(lds=['flagr'])
    e('v_or3_b32 v4, v4, v5, v6'); e('v_or_b32 v4, v4, v7'); e('s_nop 0'); e('v_readfirstlane_b32 s61, v4'); e('s_nop 3')
    e(f's_andn2_b32 s61, s61, s{S_FLAG}'); e('s_cbranch_scc1 L_k1_slow')
    stamp(st, cfg, 6)
    def ta_o(s):
        r = OREG(s); return (V_TO[0], 0) if r == R0 else (V_TO[1], r - R3)
    def refill_o(s): return w_dma('wo', s + 3, OREG(s + 3), V_DWO, S_WO, 32768) if s + 3 < 16 else []
    sadr = [f'v_lshrrev_b32 v4, 1, v{V_R}', 'v_lshlrev_b32 v4, 11, v4', f'v_lshl_add_u32 v4, v{V_PI}, 5, v4', f'v_and_b32 v5, 1, v{V_R}', 'v_lshl_add_u32 v4, v5, 4, v4',
            f's_lshl_b32 s61, s{S_RB}, 16', f's_lshl_b32 s62, s{S_W}, 9', 's_add_u32 s61, s61, s62']
    gemm(st, cfg, 'wo', ta_o, 16384, V_BO, lambda ks, qb: (ks // 4) * 16384 + qb * 4096 + (ks % 4) * 1024, refill_o, sadr,
         first_ops=w_dma('wo', 2, OREG(2), V_DWO, S_WO, 32768))
    stamp(st, cfg, 7)
    e('s_nop 3')
    for qb in range(4):
        for m in range(4):
            d = V_Q + (qb * 4 + m) * 4; a0 = ACC(2 * m, qb); a1 = ACC(2 * m + 1, qb)
            e(f'v_cvt_pk_bf16_f32 v{d}, v{a0}, v{a0 + 1}'); e(f'v_cvt_pk_bf16_f32 v{d + 1}, v{a0 + 2}, v{a0 + 3}')
            e(f'v_cvt_pk_bf16_f32 v{d + 2}, v{a1}, v{a1 + 1}'); e(f'v_cvt_pk_bf16_f32 v{d + 3}, v{a1 + 2}, v{a1 + 3}')
        e('s_nop 0')
        for m in range(4):
            d = V_Q + (qb * 4 + m) * 4
            e(f'v_permlane16_swap_b32 v{d}, v{d + 2}'); e(f'v_permlane16_swap_b32 v{d + 1}, v{d + 3}')
        for m in range(4):
            d = V_Q + (qb * 4 + m) * 4
            st.vm(f'buffer_store_dwordx4 {vr(d, 4)}, v4, {sr(S_PART, 4)}, s61 offen offset:{m * 128}{SC}', 'st')
        if qb < 3: e('s_add_u32 s61, s61, 16384')
    if cfg.stamps:
        st.wait(vm='all'); stamp(st, cfg, 8)
        srd(e, S_X, 58, 59, 1 << 20, off=WS_STAMP)
        e('s_lshl_b32 s61, s2, 2'); e(f's_add_u32 s61, s61, s{S_W}'); e('s_lshl_b32 s61, s61, 6'); e('v_mov_b32 v1, 0')
        for i in range(9): e(f'v_mov_b32 v{16 + i}, s{64 + 2 * i}')
        for i in range(3): e(f'buffer_store_dwordx4 {vr(16 + 4 * i, 4)}, v1, {sr(S_X, 4)}, s61 offen offset:{16 * i}')
    e('s_endpgm')
    segs, order = split_marks(st.resolve())
    NL = 28
    for t in range(4, NL): assert segs[f'it{t}'] == segs[f'it{t - 4}'], t
    out = header(name) + segs['_start'] + ['L_k1_attn_start:'] + segs['attn_start']
    if cfg.stamps: out += ['s_memrealtime s[72:73]', 's_waitcnt lgkmcnt(0)']
    out += [f's_mov_b32 s{S_CNT}, {NL // 4}', '.p2align 6', 'L_k1_loop:']
    for t in range(4): out += segs[f'it{t}']
    out += [f's_sub_u32 s{S_CNT}, s{S_CNT}, 1', f's_cmp_lg_u32 s{S_CNT}, 0', 's_cbranch_scc1 L_k1_loop']
    for t in range(NL, NT): out += segs[f'it{t}']
    out += segs['end']
    st = Stream(); e = st.e
    e('L_k1_slow:')
    e(f's_mov_b32 s{S_FLAG}, 1'); e('s_setreg_imm32_b32 hwreg(HW_REG_MODE, 4, 2), 0')
    e('s_waitcnt vmcnt(0) lgkmcnt(0)'); e('s_barrier')
    e(f's_mov_b32 s{S_OFFK}, 0'); e(f's_mov_b32 s{S_CNT}, {NT}')
    for qb in range(4): e(f'v_mov_b32 v{4 + qb}, 0xff800000')
    e('L_k1_slow_loop:')
    emit_ops(st, kv_dma('K', 0)); st.wait(vm='all'); e('s_barrier')
    rawA(quads_A(0, raw=True) + quads_A(1, raw=True), st)
    e('s_nop 7'); tile_max(False, st)
    e('s_barrier')
    e(f's_sub_u32 s{S_CNT}, s{S_CNT}, 1'); e(f's_cmp_lg_u32 s{S_CNT}, 0'); e('s_cbranch_scc1 L_k1_slow_loop')
    make_negm(st)
    for z in zero: e(z)
    e(f's_mov_b32 s{S_OFFK}, 0'); e(f's_mov_b32 s{S_OFFV}, 0')
    for w_, t_ in [('K', 0), ('K', 1), ('V', 0), ('V', 1), ('K', 2), ('K', 3), ('V', 2)]: emit_ops(st, kv_dma(w_, t_))
    st.wait(vm='all'); e('s_barrier'); e('s_branch L_k1_attn_start')
    out += st.resolve() + ['L_k1_end:', 's_endpgm']
    return out, kd(name, 512, 256), f'; @launch kernel={name} grid=(256,1,1) block=(256,1,1) lds=163840'
```

```python
from gen_common import *
def gen_k2(cfg, name='k2_ln_kernel'):
    st = Stream(); e = st.e
    e('s_cmp_ge_u32 s2, 256'); e('s_cbranch_scc1 L_k2_end')
    e(f's_load_dwordx2 s[4:5], s[0:1], {KA_X}'); e(f's_load_dwordx2 s[6:7], s[0:1], {KA_WS}')
    e('v_lshrrev_b32 v1, 6, v0'); e('v_and_b32 v0, 63, v0'); e('v_readfirstlane_b32 s3, v1')
    e('v_lshlrev_b32 v1, 4, v0')
    e('v_and_b32 v2, 1, v0'); e('v_lshrrev_b32 v3, 1, v0')
    e('v_lshlrev_b32 v4, 10, v2'); e('v_lshl_add_u32 v4, v3, 4, v4')
    e('v_lshlrev_b32 v5, 5, v3')
    e('s_lshl_b32 s24, s2, 2'); e('s_add_u32 s24, s24, s3'); e('s_lshl_b32 s24, s24, 11')
    e('s_waitcnt lgkmcnt(0)')
    srd(e, 8, 6, 7, 8 << 21, off=WS_PART); srd(e, 12, 4, 5, 2 << 20); srd(e, 16, 6, 7, 8 << 20)
    PB = 16
    e('s_mov_b32 s25, s24')
    for g in range(8):
        for s in range(2): st.vm(f'buffer_load_dwordx4 {vr(PB + 8 * g + 4 * s, 4)}, v1, s[8:11], s25 offen offset:{1024 * s}', ('p', g))
        if g < 7: e(f's_add_u32 s25, s25, {1 << 21}')
        if g == 1:
            for s in range(2): st.vm(f'buffer_load_dwordx4 {vr(80 + 4 * s, 4)}, v4, s[12:15], s24 offen offset:{512 * s}', 'x')
    MB = 88
    e(f's_mov_b32 s26, {WS_MODB}')
    for a in range(3):
        for s in range(2):
            for j in range(2): st.vm(f'buffer_load_dwordx4 {vr(MB + 16 * a + 8 * s + 4 * j, 4)}, v5, s[16:19], s26 offen offset:{1024 * s + 16 * j}', ('m', a))
        if a < 2: e('s_add_u32 s26, s26, 2048')
    AC = 136; T = 152
    for g in range(8):
        st.wait(vm=[('p', g)])
        dst = AC if g == 0 else T
        for j in range(8):
            e(f'v_lshlrev_b32 v{dst + 2 * j}, 16, v{PB + 8 * g + j}'); e(f'v_and_b32 v{dst + 2 * j + 1}, 0xffff0000, v{PB + 8 * g + j}')
        if g:
            for j in range(8): e(f'v_pk_add_f32 {vr(AC + 2 * j, 2)}, {vr(AC + 2 * j, 2)}, {vr(T + 2 * j, 2)}')
    for j in range(8):
        e(f'v_lshlrev_b32 v{T + 2 * j}, 16, v{80 + j}'); e(f'v_and_b32 v{T + 2 * j + 1}, 0xffff0000, v{80 + j}')
    st.wait(vm=[('m', 0)])
    for j in range(8): e(f'v_pk_fma_f32 {vr(AC + 2 * j, 2)}, {vr(AC + 2 * j, 2)}, {vr(MB + 2 * j, 2)}, {vr(T + 2 * j, 2)}')
    X1 = 16
    for j in range(8): e(f'v_cvt_pk_bf16_f32 v{X1 + j}, v{AC + 2 * j}, v{AC + 2 * j + 1}')
    e(f's_add_u32 s25, s24, {WS_X1}')
    for j in range(8):
        e(f'v_lshlrev_b32 v{AC + 2 * j}, 16, v{X1 + j}'); e(f'v_and_b32 v{AC + 2 * j + 1}, 0xffff0000, v{X1 + j}')
    for s in range(2): st.vm(f'buffer_store_dwordx4 {vr(X1 + 4 * s, 4)}, v4, s[16:19], s25 offen offset:{512 * s}{SC}', 'st')
    def rowsum(src, sq):
        if sq:
            for j in range(4): e(f'v_pk_mul_f32 {vr(T + 2 * j, 2)}, {vr(src + 2 * j, 2)}, {vr(src + 2 * j, 2)}')
            for j in range(4): e(f'v_pk_fma_f32 {vr(T + 2 * j, 2)}, {vr(src + 8 + 2 * j, 2)}, {vr(src + 8 + 2 * j, 2)}, {vr(T + 2 * j, 2)}')
        else:
            for j in range(4): e(f'v_pk_add_f32 {vr(T + 2 * j, 2)}, {vr(src + 2 * j, 2)}, {vr(src + 8 + 2 * j, 2)}')
        e(f'v_pk_add_f32 {vr(T, 2)}, {vr(T, 2)}, {vr(T + 2, 2)}'); e(f'v_pk_add_f32 {vr(T + 4, 2)}, {vr(T + 4, 2)}, {vr(T + 6, 2)}')
        e(f'v_pk_add_f32 {vr(T, 2)}, {vr(T, 2)}, {vr(T + 4, 2)}'); e(f'v_add_f32 v6, v{T}, v{T + 1}')
        for ror in (2, 4, 8):
            e('s_nop 1'); e(f'v_add_f32_dpp v6, v6, v6 row_ror:{ror} row_mask:0xf bank_mask:0xf')
        xlane_reduce(e, [6], [7], 'v_add_f32')
    rowsum(AC, False)
    e(f'v_mul_f32 v6, {f2h(-1.0 / 512)}, v6')
    for j in range(8): e(f'v_pk_add_f32 {vr(AC + 2 * j, 2)}, {vr(AC + 2 * j, 2)}, v[6:7] op_sel_hi:[1,0]')
    rowsum(AC, True)
    e(f'v_mov_b32 v7, {f2h(1e-5)}'); e(f'v_fmac_f32 v7, {f2h(1.0 / 512)}, v6'); e('v_rsq_f32 v6, v7'); e(f's_add_u32 s25, s24, {WS_H2}')
    for j in range(8): e(f'v_pk_mul_f32 {vr(AC + 2 * j, 2)}, {vr(AC + 2 * j, 2)}, v[6:7] op_sel_hi:[1,0]')
    st.wait(vm=[('m', 2)])
    for j in range(8): e(f'v_pk_fma_f32 {vr(AC + 2 * j, 2)}, {vr(AC + 2 * j, 2)}, {vr(MB + 16 + 2 * j, 2)}, {vr(MB + 32 + 2 * j, 2)}')
    for j in range(8): e(f'v_cvt_pk_bf16_f32 v{24 + j}, v{AC + 2 * j}, v{AC + 2 * j + 1}')
    for s in range(2): st.vm(f'buffer_store_dwordx4 {vr(24 + 4 * s, 4)}, v4, s[16:19], s25 offen offset:{512 * s}{SC}', 'st')
    out = header(name) + st.resolve() + ['L_k2_end:', 's_endpgm']
    return out, kd(name, 168, 168), f'; @launch kernel={name} grid=(256,1,1) block=(256,1,1) lds=0'
```

```python
from gen_common import *
def gen_k3(cfg, name='k3_ffn1_kernel'):
    st = Stream(); e = st.e
    e('s_cmp_ge_u32 s2, 256'); e('s_cbranch_scc1 L_k3_end')
    e(f's_load_dwordx2 s[4:5], s[0:1], {KA_W1}'); e(f's_load_dwordx2 s[6:7], s[0:1], {KA_WS}')
    e('v_lshrrev_b32 v1, 6, v0'); e('v_and_b32 v0, 63, v0'); e('v_readfirstlane_b32 s3, v1')
    e('v_and_b32 v1, 15, v0'); e('v_lshrrev_b32 v2, 4, v0')
    e('s_and_b32 s20, s2, 7'); e('s_lshr_b32 s21, s2, 3')
    e('s_lshr_b32 s22, s20, 1'); e('s_lshl_b32 s22, s22, 2'); e('s_lshr_b32 s23, s21, 3'); e('s_add_u32 s22, s22, s23')
    e('s_and_b32 s23, s20, 1'); e('s_lshl_b32 s23, s23, 3'); e('s_and_b32 s24, s21, 7'); e('s_add_u32 s23, s23, s24')
    e('v_lshlrev_b32 v3, 10, v1'); e('v_lshl_add_u32 v3, v2, 4, v3')
    e('s_lshl_b32 s24, s22, 17'); e('s_lshl_b32 s25, s3, 15'); e('s_add_u32 s24, s24, s25'); e('s_add_u32 s25, s24, 16384')
    DW = 8
    e('s_movk_i32 s26, 4682'); e('s_movk_i32 s27, 3584')
    for n in range(7):
        e(f'v_add_u32 v4, {64 * n}, v0'); e('v_mul_u32_u24 v5, s26, v4'); e('v_lshrrev_b32 v5, 16, v5')
        e('v_mul_u32_u24 v6, 14, v5'); e('v_sub_u32 v4, v4, v6')
        e('v_and_b32 v6, 0x13, v5'); e('v_bfe_u32 v7, v5, 2, 1'); e('v_lshl_or_b32 v6, v7, 3, v6'); e('v_bfe_u32 v7, v5, 3, 1'); e('v_lshl_or_b32 v6, v7, 2, v6')
        e('v_mul_u32_u24 v6, s27, v6'); e('v_lshl_add_u32 v6, v4, 4, v6'); e(f'v_subrev_u32 v{DW + n}, {1024 * (n % 4)}, v6')
    e('s_mul_i32 s26, s23, 224'); e(f's_mul_i32 s27, s3, {32 * 3584}'); e('s_add_u32 s26, s26, s27')
    e('s_mul_i32 s27, s3, 7168')
    e('s_waitcnt lgkmcnt(0)')
    srd(e, 8, 4, 5, 512 * 3584); srd(e, 12, 6, 7, 2 << 20, off=WS_H2); srd(e, 16, 6, 7, 2048 * 3584, off=WS_H1)
    def Bf(ks, qb): return ar((ks * 2 + qb) * 4, 4)
    for i in range(4):
        for n in range(7):
            if n % 4 == 0: e(f's_add_u32 m0, s27, {i * 4 * 7168 + (n // 4) * 4096}'); e('s_nop 0')
            st.vm(f'buffer_load_dwordx4 v{DW + n}, s[8:11], s26 offen offset:{1024 * (n % 4)} lds', ('w', i))
        if i < 3: e(f's_add_u32 s26, s26, {4 * 32 * 3584}')
        for ks in range(4 * i, 4 * i + 4):
            for qb in range(2): st.vm(f'buffer_load_dwordx4 {Bf(ks, qb)}, v3, s[12:15], s{24 + qb} offen offset:{64 * ks}', ('b', i))
    e('v_lshrrev_b32 v4, 1, v2'); e('v_lshlrev_b32 v4, 4, v4'); e('v_and_b32 v5, 1, v2'); e('v_lshl_add_u32 v4, v5, 2, v4'); e('v_lshrrev_b32 v5, 2, v1'); e('v_add_u32 v4, v4, v5')
    e('v_mul_u32_u24 v4, 0xe0, v4'); e('v_and_b32 v5, 3, v1'); e('v_lshl_add_u32 v16, v5, 3, v4'); e(f'v_add_u32 v17, {8 * 7168}, v16')
    e('v_lshlrev_b32 v18, 4, v0'); e('v_lshlrev_b32 v19, 3, v0')
    e('s_lshl_b32 s28, s22, 3'); e('s_lshl_b32 s29, s3, 1'); e('s_add_u32 s28, s28, s29'); e('s_lshl_b32 s28, s28, 4'); e('s_add_u32 s28, s28, s23'); e('s_mul_i32 s28, s28, 3584')
    e(f's_add_u32 s29, s28, {16 * 3584}')
    ACC = 24; FR = 80; NF = 12; D = 5
    def rdA(u):
        ks, nb = divmod(u, 7); fr = FR + 4 * (u % NF); b = 16 + ks // 8; off = (ks % 8) * 7168 + nb * 32
        st.lds(f'ds_read_b64_tr_b16 {vr(fr, 2)}, v{b} offset:{off}', ('a', u)); st.lds(f'ds_read_b64_tr_b16 {vr(fr + 2, 2)}, v{b} offset:{off + 1792}', ('a', u))
    for i in range(4):
        st.wait(vm=[('w', i), ('b', i)]); e('s_barrier')
        u0, u1 = 28 * i, 28 * i + 28
        for u in range(u0, u0 + D): rdA(u)
        for u in range(u0, u1):
            ks, nb = divmod(u, 7)
            st.wait(lds=[('a', u)])
            for qb in range(2):
                c = vr(ACC + (nb * 2 + qb) * 4, 4)
                e(f'{MF} {c}, {vr(FR + 4 * (u % NF), 4)}, {Bf(ks, qb)}, {c if ks else 0}')
                if qb == 0 and u + D < u1: rdA(u + D)
    e('s_nop 7')
    for qb in range(2):
        for p in range(4):
            d = FR + 16 * qb + 4 * p
            for hb in range(2 if p < 3 else 1):
                a = ACC + ((2 * p + hb) * 2 + qb) * 4
                for i in range(4): e(f'v_max_f32 v{a + i}, 0, v{a + i}')
                e(f'v_cvt_pk_bf16_f32 v{d + 2 * hb}, v{a}, v{a + 1}'); e(f'v_cvt_pk_bf16_f32 v{d + 2 * hb + 1}, v{a + 2}, v{a + 3}')
            if p < 3: st.vm(f'buffer_store_dwordx4 {vr(d, 4)}, v18, s[16:19], s{28 + qb} offen offset:{1024 * p}{SC}', 'st')
            else: st.vm(f'buffer_store_dwordx2 {vr(d, 2)}, v19, s[16:19], s{28 + qb} offen offset:3072{SC}', 'st')
    out = header(name) + st.resolve() + ['L_k3_end:', 's_endpgm']
    return out, kd(name, 256, 128), f'; @launch kernel={name} grid=(256,1,1) block=(256,1,1) lds=114688'
```

```python
from gen_common import *
def gen_k4(cfg, name='k4_ffn2_kernel'):
    st = Stream(); e = st.e
    e('s_cmp_ge_u32 s2, 256'); e('s_cbranch_scc1 L_k4_end')
    e(f's_load_dwordx2 s[4:5], s[0:1], {KA_W2}'); e(f's_load_dwordx2 s[6:7], s[0:1], {KA_WS}'); e(f's_load_dwordx2 s[36:37], s[0:1], {KA_OUT}')
    e('v_lshrrev_b32 v1, 6, v0'); e('v_and_b32 v0, 63, v0'); e('v_readfirstlane_b32 s3, v1')
    e('v_and_b32 v1, 15, v0'); e('v_lshrrev_b32 v2, 4, v0')
    e('s_and_b32 s20, s2, 7'); e('s_lshr_b32 s21, s2, 3')
    e('s_lshr_b32 s22, s20, 1'); e('s_lshl_b32 s22, s22, 3'); e('s_lshr_b32 s23, s21, 2'); e('s_add_u32 s22, s22, s23')
    e('s_and_b32 s23, s20, 1'); e('s_lshl_b32 s23, s23, 2'); e('s_and_b32 s24, s21, 3'); e('s_add_u32 s23, s23, s24')
    e('v_lshlrev_b32 v3, 4, v0'); e('v_lshlrev_b32 v4, 3, v0')
    e('s_lshl_b32 s24, s22, 6'); e('s_lshl_b32 s25, s3, 2'); e('s_add_u32 s24, s24, s25'); e('s_mul_i32 s24, s24, 3584')
    for qb in range(1, 4): e(f's_add_u32 s{24 + qb}, s24, {qb * 16 * 3584}')
    e('v_lshrrev_b32 v5, 3, v0'); e('v_and_b32 v6, 7, v0'); e('v_lshlrev_b32 v7, 1, v2'); e('v_xor_b32 v6, v6, v7')
    e('v_lshlrev_b32 v5, 10, v5'); e('v_lshl_add_u32 v8, v6, 4, v5')
    for n in range(1, 4): e(f'v_add_u32 v{8 + n}, {7168 * n}, v8')
    e(f's_mul_i32 s28, s3, {448 * 1024}'); e('s_lshl_b32 s29, s23, 7'); e('s_add_u32 s28, s28, s29')
    e('s_lshl_b32 s29, s3, 15')
    e('s_waitcnt lgkmcnt(0)')
    srd(e, 8, 4, 5, 1792 * 1024); srd(e, 12, 6, 7, 2048 * 3584, off=WS_H1); srd(e, 16, 6, 7, 4 << 20); srd(e, 32, 36, 37, 2 << 20)
    steps = []
    for u in range(2):
        for c in range(2):
            for p in range(3): steps.append(('pair', 2 * u + c, p))
        steps.append(('single', 2 * u, 0))
    NS = 14; NR = 8
    def Bf(s, qb, h=None):
        b = (s * 4 + qb) * 4
        return ar(b, 4) if h is None else ar(b + 2 * h, 2)
    def load_ops(s):
        kind, c, p = steps[s]; ops = []
        ops.append((f's_add_u32 m0, s29, {(s % NR) * 4096}', None))
        if kind == 'pair':
            ops.append((f's_add_u32 s30, s28, {(112 * c + 32 * p) * 1024}', None))
            for n in range(4): ops.append((f'buffer_load_dwordx4 v{8 + n}, s[8:11], s30 offen offset:{1024 * n} lds', ('w', s)))
            for qb in range(4):
                ops.append((f's_add_u32 s31, s{24 + qb}, {c * 3584}', None))
                ops.append((f'buffer_load_dwordx4 {Bf(s, qb)}, v3, s[12:15], s31 offen offset:{1024 * p}', ('w', s)))
        else:
            ops.append((f's_add_u32 s30, s28, {(112 * c + 96) * 1024}', None))
            for n in range(2): ops.append((f'buffer_load_dwordx4 v{8 + n}, s[8:11], s30 offen offset:{1024 * n} lds', ('w', s)))
            ops.append((f's_add_u32 s30, s28, {(112 * (c + 1) + 96 - 16) * 1024}', None))
            for n in range(2, 4): ops.append((f'buffer_load_dwordx4 v{8 + n}, s[8:11], s30 offen offset:{1024 * n} lds', ('w', s)))
            for qb in range(4):
                for h in range(2):
                    ops.append((f's_add_u32 s31, s{24 + qb}, {(c + h) * 3584}', None))
                    ops.append((f'buffer_load_dwordx2 {Bf(s, qb, h)}, v4, s[12:15], s31 offen offset:3072', ('w', s)))
        return ops
    def emit(ops):
        for t, tag in ops:
            if tag: st.vm(t, tag)
            else: e(t)
    PRE = 6
    for s in range(PRE): emit(load_ops(s))
    e('v_lshrrev_b32 v5, 2, v1'); e('v_lshl_add_u32 v5, v2, 2, v5'); e('v_bfe_u32 v6, v5, 1, 2'); e('v_and_b32 v7, 3, v1'); e('v_lshlrev_b32 v7, 3, v7')
    e('v_lshl_add_u32 v7, v5, 7, v7'); e('v_add_u32 v7, s29, v7')
    for nb in range(4): e(f'v_xor_b32 v5, {nb}, v6'); e(f'v_lshl_add_u32 v{12 + nb}, v5, 5, v7')
    e('v_and_b32 v5, 1, v2'); e('v_lshlrev_b32 v5, 1, v5'); e('v_lshrrev_b32 v6, 1, v2'); e('v_or_b32 v5, v5, v6')
    e('v_lshlrev_b32 v16, 10, v1'); e('v_lshl_add_u32 v16, v5, 4, v16'); e('v_lshlrev_b32 v17, 5, v5')
    e('s_lshl_b32 s38, s22, 16'); e('s_lshl_b32 s39, s3, 14'); e('s_add_u32 s38, s38, s39'); e('s_lshl_b32 s39, s23, 7'); e('s_add_u32 s38, s38, s39')
    e(f's_add_u32 s39, s38, {WS_X1}'); e('s_lshl_b32 s40, s23, 8'); e(f's_add_u32 s40, s40, {WS_MODB + 6144}')
    ACC = 24; FR = 88; EX = 120; EG = 128
    def rdA(s):
        for nb in range(4):
            fr = FR + 16 * (s % 2) + 4 * nb
            st.lds(f'ds_read_b64_tr_b16 {vr(fr, 2)}, v{12 + nb} offset:{(s % NR) * 4096}', ('a', s, nb))
            st.lds(f'ds_read_b64_tr_b16 {vr(fr + 2, 2)}, v{12 + nb} offset:{(s % NR) * 4096 + 2048}', ('a', s, nb))
    st.wait(vm=[('w', 0)]); rdA(0)
    for s in range(NS):
        pend = load_ops(s + PRE) if s + PRE < NS else []
        if s + PRE == NS:
            for m in range(2): pend.append((f'buffer_load_dwordx4 {vr(EX + 4 * m, 4)}, v16, s[16:19], s39 offen offset:{64 * m}', 'ep'))
            for m in range(2):
                for j in range(2): pend.append((f'buffer_load_dwordx4 {vr(EG + 8 * m + 4 * j, 4)}, v17, s[16:19], s40 offen offset:{128 * m + 16 * j}', 'ep'))
        st.wait(lds=[('a', s, 3)])
        for nb in range(4):
            for qb in range(4):
                c = vr(ACC + (nb * 4 + qb) * 4, 4)
                e(f'{MF} {c}, {vr(FR + 16 * (s % 2) + 4 * nb, 4)}, {Bf(s, qb)}, {c if s else 0}')
                k = 0
                while pend and k < 2:
                    emit(pend[:1]); pend = pend[1:]; k += 1
            if nb == 2 and s + 1 < NS:
                emit(pend); pend = []
                st.wait(vm=[('w', s + 1)]); rdA(s + 1)
        emit(pend)
    e('v_add_u32 v18, s29, v3'); e('s_lshl_b32 s41, s3, 12'); e('v_add_u32 v19, s41, v3'); e('v_add_u32 v20, 0x10000, v19'); e('s_nop 4')
    for qb in range(4):
        for nb in range(4): st.lds(f'ds_write_b128 v18, {vr(ACC + (nb * 4 + qb) * 4, 4)} offset:{(qb * 4 + nb) * 1024}', 'rw')
    st.wait(lds='all'); e('s_barrier')
    for w in range(4):
        for nb in range(4): st.lds(f'ds_read_b128 {vr(ACC + 16 * w + 4 * nb, 4)}, v{19 + w // 2} offset:{(w % 2) * 32768 + nb * 1024}', ('rr', w))
    st.wait(lds=[('rr', 1)])
    for j in range(8): e(f'v_pk_add_f32 {vr(ACC + 2 * j, 2)}, {vr(ACC + 2 * j, 2)}, {vr(ACC + 16 + 2 * j, 2)}')
    st.wait(lds=[('rr', 3)])
    for j in range(8): e(f'v_pk_add_f32 {vr(ACC + 32 + 2 * j, 2)}, {vr(ACC + 32 + 2 * j, 2)}, {vr(ACC + 48 + 2 * j, 2)}')
    for j in range(8): e(f'v_pk_add_f32 {vr(ACC + 2 * j, 2)}, {vr(ACC + 2 * j, 2)}, {vr(ACC + 32 + 2 * j, 2)}')
    e('s_nop 0')
    for m in range(2):
        for i in range(4): e(f'v_permlane16_swap_b32 v{ACC + 8 * m + i}, v{ACC + 8 * m + 4 + i}')
    st.wait(vm=['ep'])
    for j in range(8):
        e(f'v_lshlrev_b32 v{ACC + 16 + 2 * j}, 16, v{EX + j}'); e(f'v_and_b32 v{ACC + 17 + 2 * j}, 0xffff0000, v{EX + j}')
    for j in range(8): e(f'v_pk_fma_f32 {vr(ACC + 2 * j, 2)}, {vr(ACC + 2 * j, 2)}, {vr(EG + 2 * j, 2)}, {vr(ACC + 16 + 2 * j, 2)}')
    for j in range(8): e(f'v_cvt_pk_bf16_f32 v{EX + j}, v{ACC + 2 * j}, v{ACC + 2 * j + 1}')
    for m in range(2): st.vm(f'buffer_store_dwordx4 {vr(EX + 4 * m, 4)}, v16, s[32:35], s38 offen offset:{64 * m}', 'st')
    out = header(name) + st.resolve() + ['L_k4_end:', 's_endpgm']
    return out, kd(name, 368, 144), f'; @launch kernel={name} grid=(256,1,1) block=(256,1,1) lds=131072'
```

```python
import sys
from gen_common import *
import k0, k1
cfg = k1.Cfg(); kernels = '01234'
for a in sys.argv[1:]:
    k, v = a.split('=')
    if k == 'kernels': kernels = v
    else: setattr(cfg, k, int(v) if v.lstrip('-').isdigit() else v)
parts = []
if '0' in kernels: parts.append(k0.gen_k0(cfg))
if '1' in kernels: parts.append(k1.gen_k1(cfg))
if '2' in kernels:
    import k2; parts.append(k2.gen_k2(cfg))
if '3' in kernels:
    import k3; parts.append(k3.gen_k3(cfg))
if '4' in kernels:
    import k4; parts.append(k4.gen_k4(cfg))
out = [p[2] for p in parts] + ['.amdgcn_target "amdgcn-amd-amdhsa--gfx950"', '.text']
for p in parts: out += p[0]
out += ['.section .rodata,"a"']
for p in parts: out += ['.p2align 6', p[1]]
print('\n'.join(out))
```

```python
class Stream:
    def __init__(self):
        self.items = []
    def e(self, text, kind=None, tag=None):
        self.items.append(dict(text=text, kind=kind, tag=tag))
    def lds(self, text, tag=None): self.e(text, 'lds', tag)
    def vm(self, text, tag=None): self.e(text, 'vm', tag)
    def wait(self, lds=None, vm=None):
        self.items.append(dict(text=None, kind='wait', lds=lds, vm=vm))
    def mark(self, name): self.items.append(dict(text=None, kind='mark', name=name))
    def extend(self, other): self.items.extend(other.items)
    def resolve(self):
        out = []
        ldsq = []; vmq = []
        lds_done = 0; vm_done = 0
        for it in self.items:
            k = it['kind']
            if k == 'mark': out.append(('mark', it['name'])); continue
            if k == 'wait':
                parts = []
                for (name, req, q, mx) in (('vmcnt', it['vm'], vmq, 63), ('lgkmcnt', it['lds'], ldsq, 15)):
                    if req is None: continue
                    if req == 'all': n = 0
                    else:
                        last = -1
                        for t in req:
                            idx = [i for i, x in enumerate(q) if x == t]
                            assert idx, f'wait on never-issued tag {t}'
                            last = max(last, idx[-1])
                        n = len(q) - 1 - last
                    assert n <= mx or True
                    n = min(n, mx)
                    parts.append(f'{name}({n})')
                    if name == 'vmcnt': vm_done = max(vm_done, len(q) - n)
                    else: lds_done = max(lds_done, len(q) - n)
                out.append('s_waitcnt ' + ' '.join(parts))
                continue
            if k == 'lds':
                ldsq.append(it['tag'])
                assert len(ldsq) - lds_done <= 64
            if k == 'vm': vmq.append(it['tag'])
            out.append(it['text'])
        return out

def split_marks(res):
    segs = {}; order = []; cur = '_start'; segs[cur] = []; order.append(cur)
    for r in res:
        if isinstance(r, tuple): cur = r[1]; segs[cur] = []; order.append(cur)
        else: segs[cur].append(r)
    return segs, order

def vr(b, n=1): return f'v{b}' if n == 1 else f'v[{b}:{b+n-1}]'
def ar(b, n=1): return f'a{b}' if n == 1 else f'a[{b}:{b+n-1}]'
def sr(b, n=1): return f's{b}' if n == 1 else f's[{b}:{b+n-1}]'

def kd(name, vgpr, accum, sgpr=96, extra=''):
    return f'''.amdhsa_kernel {name}
  .amdhsa_next_free_vgpr {vgpr}
  .amdhsa_next_free_sgpr {sgpr}
  .amdhsa_accum_offset {accum}
  .amdhsa_group_segment_fixed_size 0
  .amdhsa_kernarg_size 104
  .amdhsa_user_sgpr_count 2
  .amdhsa_user_sgpr_kernarg_segment_ptr 1
  .amdhsa_system_sgpr_workgroup_id_x 1
{extra}.end_amdhsa_kernel
'''

def interleave(st, body, ops, start=0, every=8):
    ops = list(ops); n = 0; nxt = start
    for it in body.items:
        if ops and n >= nxt:
            t, tag = ops.pop(0)
            if tag: st.vm(t, tag); nxt = n + every
            else:
                st.e(t)
                while ops and ops[0][1] is None: st.e(ops.pop(0)[0])
                nxt = n + 1
        st.items.append(it); n += 1
    return ops
```

```python
from asmlib import *
def is_m0(t): return t.split(',')[0].endswith('m0')
def emit_ops(st, ops):
    for t, tag in ops:
        if tag: st.vm(t, tag)
        else:
            st.e(t)
            if is_m0(t): st.e('s_nop 0')

class Unit:
    def __init__(self, tag, rd, reg=None, gate=None, vm=None, lead=None):
        self.tag = tag; self.rd = rd; self.reg = reg; self.gate = gate; self.vm = vm; self.lead = lead
class Group:
    def __init__(self, mfs, units=(), hold=(), mark=None, barrier=None, wait_next=0, on_start=None):
        self.mfs = mfs; self.units = list(units); self.hold = list(hold); self.mark = mark; self.barrier = barrier
        self.wait_next = wait_next; self.on_start = on_start

def schedule(st, groups, ring, lead, trans=(), posts=(), side_gap=lambda i: 12, state=None, primed=0, check=None, side_per_gap=1, dense_from=1 << 30, max_wide=1, sort_reads=False):
    S = state if state is not None else {}
    S.setdefault('pend', []); S.setdefault('extra', []); S.setdefault('lastdma', -1000); S.setdefault('cnt', 0); S.setdefault('log', {})
    trans = list(trans); posts = list(posts)
    idx = 0; units = []
    for g in groups:
        g.start = idx
        for u in g.units: u.need = idx; u.last = None; units.append(u)
        g.n = len(g.mfs(None)); idx += g.n
    total = idx
    for g in groups:
        for u in g.units + g.hold: u.last = g.start + g.n - 1
    c = 0; prev = {}
    for u in units:
        if u.reg is None: u.reg = ring[c % len(ring)]; c += 1
        u.earliest = u.need - (u.lead if u.lead is not None else lead)
        if u.reg in prev: u.earliest = max(u.earliest, prev[u.reg].last)
        if u.gate is not None: u.earliest = max(u.earliest, u.gate.start)
        assert u.earliest < u.need - 3 or u.need == 0 or units.index(u) < primed, (u.tag, u.earliest, u.need)
        prev[u.reg] = u; u.issued = False; u.waited = False
    rq = []
    for u in units:
        ops = u.rd(u.reg)
        if u.vm is not None: rq.append((u, 'vmwait', False))
        for k, t in enumerate(ops): rq.append((u, t, k == len(ops) - 1))
    rq.sort(key=lambda x: (units.index(x[0]) >= primed, x[0].earliest) if sort_reads else 0)
    def pop_read():
        u, t, last = rq.pop(0)
        if t == 'vmwait': st.wait(vm=[u.vm])
        else: st.lds(t, u.tag)
        if last: u.issued = True
    while rq and units.index(rq[0][0]) < primed: pop_read()
    if 'after_prime' in S: S['after_prime'](st, trans, posts, S)
    ntr = S.get('ntr', 0)
    def wait_tags(gi):
        g = groups[gi]; need = [u for u in g.units if not u.waited]
        if not need: return []
        for k in range(1, g.wait_next + 1):
            if gi + k < len(groups) and not groups[gi + k].barrier: need += [u for u in groups[gi + k].units if not u.waited]
        return need
    w0 = wait_tags(0)
    if w0:
        assert all(u.issued for u in w0)
        st.wait(lds=[u.tag for u in w0])
        for u in w0: u.waited = True
    m0 = False
    for gi, g in enumerate(groups):
        if g.mark: st.mark(g.mark); S['log'][g.mark] = (S['cnt'], S['lastdma'] - g.start, len(trans), len(posts), sum(u.issued for u in units))
        if g.barrier:
            for u in g.barrier.get('units', []): assert u.issued, ('not issued before barrier', u.tag)
            assert not S['pend'], ('side ops left at barrier', S['pend'])
            st.wait(lds='all', vm=g.barrier['vm']); st.e('s_barrier')
            for u in units:
                if u.issued: u.waited = True
            S['pend'] = list(g.barrier.get('then', [])); S['cnt'] = 0; m0 = False
        if g.on_start: g.on_start(S)
        assert all(u.waited for u in g.units), [u.tag for u in g.units if not u.waited]
        mfs = g.mfs([u.reg for u in g.units + g.hold])
        for k, (txt, info) in enumerate(mfs):
            i = g.start + k
            if check: check('mfma', info, i)
            st.e(txt); m0 = False
            lastg = k == g.n - 1
            nxt = groups[gi + 1] if lastg and gi + 1 < len(groups) else None
            wt = wait_tags(gi + 1) if nxt and not nxt.barrier else []
            slots = 2 - (1 if wt else 0) - (2 if nxt and nxt.barrier else 0)
            safe = ntr
            if (i % 2 == 0 or i >= dense_from) and trans and trans[0][0] <= i:
                _, t, key = trans.pop(0); st.e(t); ntr += 1
                if i < dense_from: slots = 0
                if check: check('trans', key, i)
            nside = 0; nwide = 0
            while True:
                ap = bool(posts) and posts[0][0] <= safe
                rd_ok = bool(rq) and rq[0][0].earliest <= i
                force_rd = bool(rq) and wt and any(u is rq[0][0] or not u.issued for u in wt) and rq[0][0].earliest <= i
                if rd_ok and 'b128' in rq[0][1] and nwide >= max_wide and not force_rd: rd_ok = False
                if rd_ok and (slots > 0 or force_rd):
                    if 'b128' in rq[0][1]: nwide += 1
                    pop_read(); m0 = False
                elif ap and slots > 0 and (posts[0][2] <= i or not S['pend']):
                    p = posts.pop(0); st.e(p[1]); m0 = False
                    if check: check('post', p[3], i)
                elif slots > 0 and S['pend'] and not m0 and (S['pend'][0][1] is None or (i - S['lastdma'] >= side_gap(i) and nside < side_per_gap)):
                    t, tag = S['pend'].pop(0); S['cnt'] += 1
                    if tag: st.vm(t, tag); S['lastdma'] = i; nside += 1
                    else: st.e(t); m0 = is_m0(t)
                elif ap and slots > 0:
                    p = posts.pop(0); st.e(p[1]); m0 = False
                    if check: check('post', p[3], i)
                elif slots > 0 and S['extra']:
                    x = S['extra'].pop(0)
                    if isinstance(x, tuple): st.vm(*x)
                    else: st.e(x)
                    m0 = False
                else: break
                slots -= 1
            if wt:
                assert all(u.issued for u in wt), [u.tag for u in wt if not u.issued]
                st.wait(lds=[u.tag for u in wt])
                for u in wt: u.waited = True
    assert not rq and not trans and not posts, (len(rq), len(trans), len(posts))
    if m0: st.e('s_nop 0')
    return S
```

```python
from asmlib import *
import struct
def f2h(x): return hex(struct.unpack('<I', struct.pack('<f', float(x)))[0])
MF = 'v_mfma_f32_16x16x32_bf16'
KA_X, KA_K, KA_V, KA_WQ, KA_WO, KA_BX, KA_W1, KA_W2, KA_C, KA_WM, KA_OUT, KA_DBG, KA_WS = [8 * i for i in range(13)]
WS_MODA = 0x0; WS_MODB = 0x1000
WS_X1 = 1 << 20; WS_H2 = 4 << 20; WS_H1 = 8 << 20; WS_PART = 16 << 20; WS_STAMP = 64 << 20
QSCALE = 128 ** -0.5 * 1.4426950408889634
SC = ' sc0 sc1'

def srd(e, d, lo, hi, size, off=None):
    if off is None:
        e(f's_mov_b32 s{d}, s{lo}'); e(f's_mov_b32 s{d+1}, s{hi}')
    else:
        e(f's_add_u32 s{d}, s{lo}, {off}'); e(f's_addc_u32 s{d+1}, s{hi}, 0')
    e(f's_mov_b32 s{d+2}, {size}'); e(f's_mov_b32 s{d+3}, 0x20000')

def xlane_reduce(e, regs, tmps, op, which=('32', '16')):
    for sw in which:
        for r, t in zip(regs, tmps): e(f'v_mov_b32 v{t}, v{r}')
        if len(regs) < 3: e('s_nop 1')
        for r, t in zip(regs, tmps): e(f'v_permlane{sw}_swap_b32 v{t}, v{r}')
        if len(regs) < 2: e('s_nop 0')
        for r, t in zip(regs, tmps): e(f'{op} v{r}, v{r}, v{t}')

def header(name):
    return [f'.globl {name}', '.p2align 8', f'.type {name},@function', f'{name}:']

def stamp(st, cfg, idx, wait=True):
    if cfg.stamps:
        st.e('s_memrealtime s[88:89]'); st.e('s_memtime s[90:91]'); st.e('s_waitcnt lgkmcnt(0)')
        st.e(f's_mov_b32 s{64 + idx}, s88'); st.e(f's_mov_b32 s{76 + idx}, s90')
def stamp_out(st, cfg, knum, last, ws_lo, s_wave):
    if not cfg.stamps: return
    e = st.e
    st.wait(vm='all'); stamp(st, cfg, last)
    srd(e, 8, ws_lo, ws_lo + 1, 1 << 20, off=WS_STAMP + knum * 131072)
    e('s_lshl_b32 s61, s2, 2'); e(f's_add_u32 s61, s61, s{s_wave}'); e('s_lshl_b32 s61, s61, 7'); e('v_mov_b32 v1, 0')
    for i in range(12): e(f'v_mov_b32 v{16 + i}, s{64 + min(i, last)}'); e(f'v_mov_b32 v{28 + i}, s{76 + min(i, last)}')
    for i in range(6): e(f'buffer_store_dwordx4 {vr(16 + 4 * i, 4)}, v1, s[8:11], s61 offen offset:{16 * i}')

def code_prefetch(st, label_begin, label_end, s_idx, vtmp, vdst, stmp=62):
    e = st.e
    e(f's_getpc_b64 s[{stmp}:{stmp+1}]')
    e(f'L_pc_{label_begin}:')
    e(f's_lshl_b32 s{stmp-1}, s{s_idx}, 10')
    e(f's_min_u32 s{stmp-1}, s{stmp-1}, {label_end}-L_pc_{label_begin}-1024')
    e(f's_add_u32 s{stmp}, s{stmp}, s{stmp-1}'); e(f's_addc_u32 s{stmp+1}, s{stmp+1}, 0')
    e(f'v_lshlrev_b32 v{vtmp}, 4, v0'); e(f'v_mov_b32 v{vtmp+1}, s{stmp+1}')
    e(f'v_add_co_u32 v{vtmp}, vcc, s{stmp}, v{vtmp}'); e('s_nop 1'); e(f'v_addc_co_u32 v{vtmp+1}, vcc, 0, v{vtmp+1}, vcc')
    st.vm(f'global_load_dwordx4 {vdst}, v[{vtmp}:{vtmp+1}], off', 'cpf')
```

```python
from gen_common import *
def gen_k0(cfg, name='k0_mod_kernel'):
    st = Stream(); e = st.e
    NW = 96 + {0: 0, 1: 256, 2: 224}[cfg.k0pf]
    e(f's_cmp_ge_u32 s2, {NW}'); e('s_cbranch_scc1 L_k0_end')
    if cfg.k0pf: e('s_cmp_ge_u32 s2, 96'); e('s_cbranch_scc1 L_k0_pf')
    e(f's_load_dwordx4 s[4:7], s[0:1], {KA_C}'); e(f's_load_dwordx2 s[20:21], s[0:1], {KA_WS}')
    e('v_lshrrev_b32 v1, 2, v0')
    e('v_and_b32 v2, 3, v0')
    e('v_lshlrev_b32 v3, 1, v1')
    e('s_movk_i32 s22, 6144'); e('v_mul_lo_u32 v4, v1, s22'); e('v_lshl_add_u32 v4, v2, 4, v4')
    e('s_lshl_b32 s23, s2, 6')
    e('s_waitcnt lgkmcnt(0)')
    srd(e, 8, 4, 5, 1024); srd(e, 12, 6, 7, 512 * 6144); srd(e, 16, 20, 21, 0x4000)
    for i in range(8): st.vm(f'buffer_load_ushort v{8+i}, v3, s[8:11], 0 offen offset:{128*i}', 'c')
    for i in range(8):
        st.vm(f'buffer_load_dwordx4 v[{16+4*i}:{19+4*i}], v4, s[12:15], s23 offen', ('w', i))
        if i < 7: e(f's_add_u32 s23, s23, {64*6144}')
    e('s_lshr_b32 s24, s2, 4'); e('s_and_b32 s25, s2, 15')
    e('s_lshl_b32 s26, s25, 7')
    e('s_lshl_b32 s27, s25, 8')
    e(f's_mov_b32 s28, 0'); e(f's_mov_b32 s29, 1.0')
    bases = {2: WS_MODB, 3: WS_MODB + 4096, 4: WS_MODB + 2048, 5: WS_MODB + 6144}
    e(f's_add_u32 s30, s27, {WS_MODA + 128}')
    e('s_cmp_eq_u32 s24, 1'); e(f's_cselect_b32 s30, s27, s30')
    for sg, b in bases.items():
        e(f's_add_u32 s31, s26, {b}'); e(f's_cmp_eq_u32 s24, {sg}'); e('s_cselect_b32 s30, s31, s30')
    e('s_cmp_eq_u32 s24, 1'); e('s_cselect_b32 s28, 1.0, s28')
    e('s_cmp_eq_u32 s24, 4'); e('s_cselect_b32 s28, 1.0, s28')
    e('s_cmp_lt_u32 s24, 2'); e(f's_cselect_b32 s29, {f2h(QSCALE)}, s29')
    st.wait(vm=['c'])
    for i in range(8): e(f'v_lshlrev_b32 v{8+i}, 16, v{8+i}')
    for i in range(8): e(f'v_mul_f32 v{48+i}, {f2h(-1.4426950408889634)}, v{8+i}')
    for i in range(8): e(f'v_exp_f32 v{48+i}, v{48+i}')
    for i in range(8): e(f'v_add_f32 v{48+i}, 1.0, v{48+i}')
    for i in range(8): e(f'v_rcp_f32 v{48+i}, v{48+i}')
    for i in range(8): e(f'v_mul_f32 v{8+i}, v{8+i}, v{48+i}')
    for i in range(8): e(f'v_cvt_pk_bf16_f32 v{8+i}, v{8+i}, v{8+i}')
    for i in range(8): e(f'v_lshlrev_b32 v{8+i}, 16, v{8+i}')
    for j in range(8): e(f'v_mov_b32 v{56+j}, 0')
    for i in range(8):
        st.wait(vm=[('w', i)])
        for j in range(4):
            e(f'v_lshlrev_b32 v48, 16, v{16+4*i+j}'); e(f'v_and_b32 v49, 0xffff0000, v{16+4*i+j}')
            e(f'v_fmac_f32 v{56+2*j}, v48, v{8+i}'); e(f'v_fmac_f32 v{57+2*j}, v49, v{8+i}')
    e('s_nop 1')
    for ror in (4, 8):
        for j in range(8): e(f'v_add_f32_dpp v{56+j}, v{56+j}, v{56+j} row_ror:{ror} row_mask:0xf bank_mask:0xf')
    xlane_reduce(e, list(range(56, 64)), list(range(64, 72)), 'v_add_f32')
    e('v_lshrrev_b32 v5, 6, v0'); e('v_lshlrev_b32 v5, 7, v5'); e('v_lshl_add_u32 v5, v2, 5, v5')
    st.lds('ds_write_b128 v5, v[56:59]'); st.lds('ds_write_b128 v5, v[60:63] offset:16')
    st.wait(lds='all'); e('s_barrier')
    e('v_cmp_gt_u32 vcc, 32, v0'); e('s_and_saveexec_b64 s[32:33], vcc'); e('s_cbranch_execz L_k0_end')
    e('v_lshlrev_b32 v5, 2, v0')
    for wv in range(4): st.lds(f'ds_read_b32 v{8+wv}, v5 offset:{128*wv}')
    st.wait(lds='all')
    e('v_add_f32 v8, v8, v9'); e('v_add_f32 v10, v10, v11'); e('v_add_f32 v8, v8, v10')
    e('v_cvt_pk_bf16_f32 v8, v8, v8'); e('v_lshlrev_b32 v8, 16, v8')
    e('v_add_f32 v8, s28, v8')
    e('v_cvt_pk_bf16_f32 v8, v8, v8'); e('v_lshlrev_b32 v8, 16, v8')
    e('v_mul_f32 v8, s29, v8')
    st.vm(f'buffer_store_dword v8, v5, s[16:19], s30 offen{SC}')
    out = header(name) + st.resolve() + ['L_k0_end:', 's_endpgm']
    if cfg.k0pf == 2:
        st = Stream(); e = st.e
        e('L_k0_pf:')
        e(f's_load_dwordx8 s[4:11], s[0:1], {KA_X}')
        e('s_sub_u32 s3, s2, 96'); e('v_lshlrev_b32 v1, 4, v0')
        e('s_waitcnt lgkmcnt(0)')
        e('s_and_b32 s20, s3, 15'); e('s_lshr_b32 s21, s20, 1'); e('s_lshl_b32 s21, s21, 19'); e('s_and_b32 s20, s20, 1'); e('s_lshl_b32 s20, s20, 15'); e('s_add_u32 s20, s20, s21')
        e('s_mov_b32 s12, s8'); e('s_mov_b32 s13, s9'); e('s_mov_b32 s14, 0x400000')
        e('s_cmp_lt_u32 s3, 208'); e('s_cselect_b32 s12, s6, s12'); e('s_cselect_b32 s13, s7, s13')
        e('s_sub_u32 s21, s3, 64'); e('s_lshl_b32 s21, s21, 15')
        e('s_cmp_lt_u32 s3, 192'); e('s_cselect_b32 s12, s10, s12'); e('s_cselect_b32 s13, s11, s13'); e('s_cselect_b32 s20, s21, s20')
        e('s_lshl_b32 s21, s3, 15')
        e('s_cmp_lt_u32 s3, 64'); e('s_cselect_b32 s12, s4, s12'); e('s_cselect_b32 s13, s5, s13'); e('s_cselect_b32 s20, s21, s20'); e('s_cselect_b32 s14, 0x200000, s14')
        e('s_mov_b32 s15, 0x20000')
        for i in range(8):
            e(f'buffer_load_dwordx4 v[{4 + 4 * i}:{7 + 4 * i}], v1, s[12:15], s20 offen'); e('s_add_u32 s20, s20, 4096')
        e('s_waitcnt vmcnt(0)'); e('s_endpgm')
        out += st.resolve()
    if cfg.k0pf == 1:
        st = Stream(); e = st.e
        e('L_k0_pf:')
        e(f's_load_dwordx2 s[4:5], s[0:1], {KA_X}'); e(f's_load_dwordx2 s[6:7], s[0:1], {KA_WQ}')
        e('s_sub_u32 s3, s2, 96'); e('s_and_b32 s20, s3, 7'); e('s_lshr_b32 s21, s3, 3')
        e('v_lshlrev_b32 v1, 4, v0'); e('s_lshl_b32 s22, s21, 16')
        e('v_lshrrev_b32 v2, 6, v0'); e('v_lshlrev_b32 v2, 13, v2'); e('v_and_b32 v3, 63, v0'); e('v_lshl_add_u32 v2, v3, 4, v2')
        e('s_lshl_b32 s23, s21, 17'); e('s_lshl_b32 s24, s20, 10'); e('s_add_u32 s23, s23, s24')
        e('s_waitcnt lgkmcnt(0)')
        srd(e, 8, 4, 5, 2048 * 1024); srd(e, 12, 6, 7, 512 * 8192)
        for i in range(16):
            e(f'buffer_load_dwordx4 v[{4 + 4 * i}:{7 + 4 * i}], v1, s[8:11], s22 offen'); e('s_add_u32 s22, s22, 4096')
        for i in range(4):
            e(f'buffer_load_dwordx4 v[{4 + 4 * i}:{7 + 4 * i}], v2, s[12:15], s23 offen'); e('s_add_u32 s23, s23, 32768')
        e('s_waitcnt vmcnt(0)'); e('s_endpgm')
        out += st.resolve()
    return out, kd(name, 72, 72), f'; @launch kernel={name} grid=({NW},1,1) block=(256,1,1) lds=512'
```

```python
from gen_common import *
from engine import *

S_X, S_WQ, S_K, S_V, S_WO, S_WS, S_PART = 8, 12, 16, 20, 24, 28, 32
S_G, S_RB, S_W, S_WB = 36, 37, 38, 39
S_OFFK, S_OFFV, S_M0V, S_CNT, S_OFFW, S_FLAG = 40, 41, 43, 44, 45, 46
S_M0K = S_WB; S_PF = 47; S_ROT = 42
S_T = 48
V_R, V_G, V_PI = 1, 2, 3
V_Q = 16; V_S = [80, 112]; V_P = 144; V_NEGM = 208
V_KA = 224; V_VA = 228; V_DK = 236; V_DV = 240; V_DWO = 242; V_TO = [208, 212]; V_BO = 250
V_ACC = 80
V_DWQ = 16; V_TA = [24, 28]; V_BA = 40; V_MOD = 48; V_HO = 208
A_O = 0; A_FR = 128; A_BF = 128; A_L = 192; A_ONE = 208; A_AF = 212; A_DUMMY = 244
R0, R1, R2, R3, R4 = 0, 32768, 65536, 98304, 131072
LDS_V = R2
NT = 32
RING = [A_FR + 4 * i for i in range(16)]

def O(db, qb): return ar(A_O + (db * 4 + qb) * 4, 4)
def Q(qb, ks): return vr(V_Q + (qb * 4 + ks) * 4, 4)
def Lr(qb): return ar(A_L + qb * 4, 4)
def Sreg(buf, kb, qb): return V_S[buf] + (kb * 4 + qb) * 4
def Preg(h, qb): return V_P + (h % 4) * 16 + qb * 4
def ACC(nb, qb): return V_ACC + (nb * 4 + qb) * 4

class Cfg:
    lead = 20; spread = 0; xlead = 20; S0 = 62; XG = 6; nodma = 0; strip = ''; blead = 30; mw = 2; B = 102; dma_gap = 12; glead = 14; ggap = 2; bspread = 0; gspread = 0; stamps = 0; thr = 2.0 ** 64; prefetch = 0; cpf = 0; G = 4; pfq = 0; krot = 1; npre = 0
    h2sc = 0; k2nt = 1; k0pf = 0; lnev = 16; rot = 0; k3pre = 2; k4pre = 3; pfw = 1; chain = 1; rotmask = 7; rotsh = 1; ost = 13

def groups_A(h, cfg, raw=False, gate=None):
    tile, hf = h // 2, h % 2
    gs = []
    for kb in range(2):
        off = (tile % 4) * 16384 + (32 * hf + 16 * kb) * 256
        us = [Unit(('K', h, kb, ks), (lambda r, ks=ks, off=off: [f'ds_read_b128 {ar(r, 4)}, {vr(V_KA + ks)} offset:{off}']), gate=gate, lead=cfg.lead + cfg.spread * (3 - ks)) for ks in range(4)]
        def mfs(regs, kb=kb):
            regs = regs or [0] * 4
            order = [(qb, ks if qb % 2 == 0 else 3 - ks, ks == 0, ks == 3) for qb in range(4) for ks in range(4)] if cfg.chain else \
                    [(qb, ks, ks == 0, ks == 3) for ks in range(4) for qb in range(4)]
            r = []
            for qb, ks, first, last in order:
                s = vr(Sreg(h % 2, kb, qb), 4)
                c = ('0' if raw else vr(V_NEGM + 4 * qb, 4)) if first else s
                r.append((f'{MF} {s}, {ar(regs[ks], 4)}, {Q(qb, ks)}, {c}', ('A', h, kb, qb, first, last)))
            return r
        gs.append(Group(mfs, us))
    return gs

def unit_V(h, db):
    off = ((h // 2) % 4) * 16384 + (32 * (h % 2)) * 256
    return Unit(('V', h, db), lambda r: [f'ds_read_b64_tr_b16 {ar(r, 2)}, {vr(V_VA + db)} offset:{off}',
                                          f'ds_read_b64_tr_b16 {ar(r + 2, 2)}, {vr(V_VA + db)} offset:{off + 4096}'])
def groups_C(hs, cfg):
    gs = []
    def order(qb):
        o = list(range(len(hs)))
        return o if qb % 2 == 0 else o[::-1]
    seq = [(qb, k) for qb in range(4) for k in order(qb)] if cfg.chain else [(qb, k) for k in range(len(hs)) for qb in range(4)]
    for db in range(8):
        def mfs(regs, db=db):
            regs = regs or [0] * 2
            return [(f'{MF} {O(db, qb)}, {ar(regs[k], 4)}, {vr(Preg(hs[k], qb), 4)}, {O(db, qb)}', ('C', hs[k], qb)) for qb, k in seq]
        us = [unit_V(h, db) for h in hs]
        for k, u in enumerate(us): u.lead = cfg.lead + cfg.spread * (len(hs) - 1 - k)
        gs.append(Group(mfs, us, wait_next=1 if db % 2 == 0 else 0))
    gs.append(Group(lambda regs: [(f'{MF} {Lr(qb)}, {ar(A_ONE, 4)}, {vr(Preg(hs[k], qb), 4)}, {Lr(qb)}', ('C', hs[k], qb)) for qb, k in seq]))
    return gs

def softmax_ops(h, start, base):
    exps = []; posts = []
    for kb in range(2):
        for qb in range(4):
            s = Sreg(h % 2, kb, qb)
            for i in range(4):
                exps.append((start + 2 * len(exps), f'v_exp_f32 {vr(s + i)}, {vr(s + i)}', (h, kb, qb)))
                if i & 1:
                    posts.append((base + len(exps), f'v_cvt_pk_bf16_f32 {vr(Preg(h, qb) + 2 * kb + i // 2)}, {vr(s + i - 1)}, {vr(s + i)}', start + 2 * len(exps) + 1, (h, kb, qb)))
    return exps, posts

def kv_dma(which, tile):
    slot = tile % 4
    m0, dv, srdr, off, nv = (S_M0K, V_DK, S_K, S_OFFK, 4) if which == 'K' else (S_M0V, V_DV, S_V, S_OFFV, 2)
    ops = [(f's_add_u32 m0, {sr(m0)}, {slot * 16384}', None)]
    for j in range(4):
        ops.append((f'buffer_load_dwordx4 {vr(dv + j % nv)}, {sr(srdr, 4)}, {sr(off)} offen offset:{j * 1024} lds', ('d' + which, tile)))
    ops.append((f's_add_u32 {sr(off)}, {sr(off)}, 16384', None))
    return ops

def w_dma(name, s, region, dv, srdr, soff, post):
    ops = []
    for j in range(8):
        if j % 4 == 0: ops.append((f's_add_u32 m0, {sr(S_WB)}, {region + (j // 4) * 16384}', None))
        ops.append((f'buffer_load_dwordx4 {vr(dv + j)}, {sr(srdr, 4)}, {sr(soff)} offen offset:{(j % 4) * 1024} lds', (name, s)))
    return ops + [(p, None) for p in post]

def attn_main(st, cfg, tail_extra):
    def window(t):
        ops = []
        if t + 3 < NT: ops += kv_dma('V', t + 3)
        if t + 4 < NT: ops += kv_dma('K', t + 4)
        return ops + tail_extra(t)
    def build():
        groups = []; gate = None; idx = 0; exps = []; posts = []
        e0, p0 = softmax_ops(0, -1000, 0); e1, p1 = softmax_ops(1, cfg.S0 + 66 - 136, 32)
        exps += e0 + e1; posts += p0 + p1
        for t in range(NT):
            if t < NT - 1:
                gs = groups_A(2 * t + 2, cfg, gate=gate) + groups_A(2 * t + 3, cfg, gate=gate)
                cs = groups_C([2 * t, 2 * t + 1], cfg)
                x = cs[cfg.XG]
                x.barrier = dict(vm=[('dV', t + 1)] + ([('dK', t + 2)] if t + 2 < NT else []), units=[u for g in cs for u in g.units], then=window(t + 1))
                for g in cs[cfg.XG:8]:
                    for u in g.units: u.lead = max(u.lead, cfg.xlead + 8 * (cs.index(g) - cfg.XG) + (u.lead - cfg.lead) // 2)
                gs += cs; ngate = x
                for k in range(2):
                    ee, pp = softmax_ops(2 * t + 2 + k, idx + cfg.S0 + 66 * k, 32 * (2 * t + 2 + k)); exps += ee; posts += pp
            else:
                gs = groups_C([2 * t], cfg) + groups_C([2 * t + 1], cfg)
                for g in gs:
                    for u in g.units: u.gate = gate; u.lead = min(cfg.lead, 14)
            gs[0].mark = f'it{t}'
            groups += gs; gate = ngate; idx += 136
        return groups, exps, posts
    def check_fn():
        spend = {}; sready = {}; pdone = {};
        def check(kind, key, i):
            if kind == 'mfma' and key[0] == 'A':
                _, h, kb, qb, first, last = key
                if first: assert spend.get((h % 2, kb, qb), 0) == 0, ('S overwritten early', key, i)
                if last: spend[(h % 2, kb, qb)] = 2; sready[(h, kb, qb)] = i
            elif kind == 'mfma' and key[0] == 'C':
                if key[1] >= 2: assert pdone.get((key[1], key[2]), (0, 0))[0] == 4 and pdone[(key[1], key[2])][1] < i - 1, ('P not ready', key, i)
                check.lastC[(key[1] % 4, key[2])] = (key[1], i)
            elif kind == 'trans':
                if key[0] >= 2: assert i >= sready[key] + 8, ('S not ready', key, i)
            elif kind == 'post':
                h, kb, qb = key
                if h >= 2: spend[(h % 2, kb, qb)] -= 1
                c = pdone.get((h, qb), (0, 0)); pdone[(h, qb)] = (c[0] + 1, i)
                if h >= 4: assert check.cnt_c(h - 4, qb), ('P overwritten early', key, i)
        check.lastC = {}
        seen = {}
        def wrap(kind, key, i):
            if kind == 'mfma' and key[0] == 'C': seen[(key[1], key[2])] = seen.get((key[1], key[2]), 0) + 1
            check(kind, key, i)
        check.cnt_c = lambda h, qb: seen.get((h, qb), 0) == 9
        return wrap
    def run(st, pre):
        groups, exps, posts = build()
        npre, lastoff, ntr0, npo0, primed = pre
        def after_prime(st, trans, posts, S):
            emit_ops(st, S['pend'][:npre]); S['pend'] = S['pend'][npre:]
            k = 0
            for n in range(ntr0):
                st.e(trans.pop(0)[1])
                while k < npo0 and posts[0][0] <= n: st.e(posts.pop(0)[1]); k += 1
            st.e('s_nop 0')
            while k < npo0: st.e(posts.pop(0)[1]); k += 1
            S['ntr'] = ntr0
        S = dict(pend=window(0), lastdma=lastoff, after_prime=after_prime)
        nl = 136 * (NT - 1)
        exps = [(min(a, nl), b, c) for a, b, c in exps]
        posts = [(a, b, min(c, nl), d) for a, b, c, d in posts]
        S = schedule(st, groups, RING, cfg.lead, exps, posts, side_gap=lambda i: cfg.dma_gap if i < 136 * 28 else 6, state=S, primed=primed, check=check_fn(), dense_from=nl, max_wide=cfg.mw)
        st.mark('end')
        return S['log'], len(exps), len(posts)
    log, ne, npo = run(Stream(), (3, -1000, 32 + (136 - cfg.S0 - 66 + 1) // 2, 16 + (136 - cfg.S0 - 66 + 1) // 4, 4))
    def norm(t):
        c, ld, nt, npp, rq = log[f'it{t}']
        return (c, ld, ne - nt - 64 * t, npo - npp - 32 * t, rq - 32 * t)
    n = norm(3)
    assert all(norm(t) == n for t in range(3, NT - 4)), [norm(t) for t in range(2, 8)]
    run(st, n)

def gemm(st, cfg, name, stages, ta, joff, vba, baddr, refill, extra, first_ops=(), late=None):
    groups = []; bcur = None; nb_sets = 0; seen = set()
    for s, (kp, half) in enumerate(stages):
        vb, ib = ta(s)
        newb = bcur is None or bcur[0] != kp or stages[s - 1][1] == half
        if newb:
            base = A_BF + 32 * (nb_sets % 2); nb_sets += 1
            bu = [Unit((name + 'B', s, k, qb), (lambda r, k=k, qb=qb, kp=kp: [f'ds_read_b128 {ar(r, 4)}, {vr(vba)} offset:{baddr(2 * kp + k, qb)}']), reg=base + 16 * k + 4 * qb, lead=cfg.blead - cfg.bspread * (2 * qb + k))
                  for qb in range(4) for k in range(2)]
            bcur = (kp, bu)
        bu = bcur[1]
        for n4 in range(4):
            nb = 4 * half + n4
            au = [Unit((name + 'A', s, n4, k), (lambda r, k=k, n4=n4, vb=vb, ib=ib: [f'ds_read_b64_tr_b16 {ar(r, 2)}, {vr(vb + n4)} offset:{ib + 16384 * k}',
                                                                                 f'ds_read_b64_tr_b16 {ar(r + 2, 2)}, {vr(vb + n4)} offset:{ib + 16384 * k + joff}']),
                       vm=(name, s) if n4 == 0 and k == 0 and not (cfg.nodma and s > 2) else None, lead=cfg.glead + cfg.gspread * (1 - k)) for k in range(2)]
            first = nb not in seen; seen.add(nb)
            def mfs(regs, nb=nb, first=first, au=au, bu=bu):
                r = []
                seq = [(qb, k ^ (qb & 1), k == 0) for qb in range(4) for k in range(2)] if cfg.chain else [(qb, k, k == 0) for k in range(2) for qb in range(4)]
                for qb, k, f in seq:
                    c = vr(ACC(nb, qb), 4)
                    r.append((f'{MF} {c}, {ar(au[k].reg or 0, 4)}, {ar(bu[2 * qb + k].reg, 4)}, {0 if first and f else c}', None))
                return r
            if newb and n4 == 0: g = Group(mfs, bu + au)
            else: g = Group(mfs, au, hold=bu)
            if n4 == 3:
                def rel(S, s=s):
                    S['pend'] += refill(s) if not (cfg.nodma and s < 13) else []
                    if late and s == late[0]: S['extra'] += late[1]
                g.on_start = rel
            groups.append(g)
    S = dict(pend=list(first_ops), extra=list(extra))
    S = schedule(st, groups, [A_AF + 4 * i for i in range(8)], cfg.glead, side_gap=lambda i: cfg.ggap, state=S, primed=12, sort_reads=True, max_wide=cfg.mw)
    emit_ops(st, S['pend'])
    for x in S['extra']:
        if isinstance(x, tuple): st.vm(*x)
        else: st.e(x)

def gen_k1(cfg, name='k1_attn_kernel'):
    st = Stream(); e = st.e
    e('s_cmp_ge_u32 s2, 256'); e('s_cbranch_scc1 L_k1_end')
    e(f's_load_dwordx8 s[48:55], s[0:1], {KA_X}')
    e(f's_load_dwordx2 s[56:57], s[0:1], {KA_WO}'); e(f's_load_dwordx2 s[58:59], s[0:1], {KA_WS}'); e(f's_load_dwordx4 s[4:7], s[0:1], {KA_W1}')
    stamp(st, cfg, 0)
    lg = {1: 0, 2: 1, 4: 2, 8: 3}[cfg.G]
    e('s_and_b32 s60, s2, 7'); e('s_lshr_b32 s61, s2, 3')
    e(f's_lshl_b32 s{S_G}, s60, {lg}'); e(f's_and_b32 s{S_G}, s{S_G}, 7'); e(f's_and_b32 s62, s61, {cfg.G - 1}'); e(f's_add_u32 s{S_G}, s{S_G}, s62')
    e(f's_lshr_b32 s60, s60, {3 - lg}'); e(f's_lshl_b32 s60, s60, {5 - lg}'); e(f's_lshr_b32 s{S_PF}, s61, {lg}'); e(f's_add_u32 s{S_RB}, s60, s{S_PF}')
    e('v_lshrrev_b32 v4, 6, v0'); e('v_and_b32 v0, 63, v0'); e(f'v_readfirstlane_b32 s{S_W}, v4')
    e(f'v_and_b32 v{V_R}, 15, v0'); e(f'v_lshrrev_b32 v{V_G}, 4, v0')
    e(f'v_and_b32 v4, 1, v{V_G}'); e('v_lshlrev_b32 v4, 1, v4'); e(f'v_lshrrev_b32 v5, 1, v{V_G}'); e(f'v_or_b32 v{V_PI}, v4, v5')
    e(f's_lshl_b32 s{S_WB}, s{S_W}, 12')
    if cfg.cpf:
        e('s_lshr_b32 s60, s2, 3'); e('s_lshl_b32 s60, s60, 2'); e(f's_add_u32 s60, s60, s{S_W}')
        code_prefetch(st, 'k1', 'L_k1_end', 60, 4, ar(A_DUMMY, 4))
    if not cfg.krot: e(f's_mov_b32 s{S_ROT}, 0')
    else: e(f's_and_b32 s{S_ROT}, s{S_PF}, {cfg.rotmask}'); e(f's_lshl_b32 s{S_ROT}, s{S_ROT}, {cfg.rotsh}')
    e('v_lshlrev_b32 v7, 4, v0'); e(f's_lshl_b32 s62, s{S_ROT}, 2')
    e(f's_lshl_b32 s60, s{S_RB}, 16'); e(f's_lshl_b32 s61, s{S_W}, 14'); e('s_add_u32 s60, s60, s61'); e(f's_add_u32 s61, s61, {R3}')
    for i in range(16):
        e(f'v_xad_u32 v{V_ACC + i}, v0, {i}, s62'); e(f'v_and_b32 v{V_ACC + i}, 63, v{V_ACC + i}'); e(f'v_lshlrev_b32 v{V_ACC + i}, 4, v{V_ACC + i}')
    e('s_waitcnt lgkmcnt(0)')
    srd(e, S_X, 48, 49, 2048 * 1024)
    for i in range(16):
        if i % 4 == 0:
            e(f's_add_u32 m0, s61, {1024 * i}')
            e('s_add_u32 s60, s60, 4096' if i else 's_nop 0')
        st.vm(f'buffer_load_dwordx4 v{V_ACC + i}, {sr(S_X, 4)}, s60 offen offset:{1024 * (i % 4)} lds', 'x')
    QREG = lambda s: [R0, R2, R1][(s - 13) % 3]
    MODL = QREG(2) + 16384
    srd(e, S_WS, 58, 59, 0x1000)
    e(f's_lshl_b32 s62, s{S_ROT}, 8'); e('v_add_u32 v6, s62, v7')
    for j in range(4):
        e(f's_add_u32 m0, s{S_WB}, {MODL + 1024 * j}'); e(f'v_add_u32 v5, {1024 * j}, v6'); e('v_and_b32 v5, 0xfff, v5')
        st.vm(f'buffer_load_dwordx4 v5, {sr(S_WS, 4)}, 0 offen lds', 'mod')
    e(f's_lshl_b32 s62, s{S_G}, 10'); e(f's_sub_u32 s63, {512 * 8192}, s62')
    srd(e, S_WQ, 54, 55, 's63', off='s62')
    e(f's_lshl_b32 s61, s{S_W}, 8'); e('v_lshrrev_b32 v8, 3, v0'); e(f'v_lshl_add_u32 v8, v8, 13, s61')
    e('v_and_b32 v5, 7, v0'); e(f'v_and_b32 v4, 1, v{V_G}'); e('v_lshlrev_b32 v4, 1, v4'); e('v_xor_b32 v4, v4, v5')
    e('v_lshl_add_u32 v9, v4, 4, v8'); e('v_xor_b32 v4, 4, v4'); e('v_lshl_add_u32 v10, v4, 4, v8')
    for j in range(8): e(f'v_add_u32 {vr(V_DWQ + j)}, {65536 * j - 1024 * (j % 4)}, v{9 + (j & 1)}')
    e(f's_lshl_b32 s{S_OFFW}, s{S_ROT}, 18')
    def wq_dma(s):
        if s % 2 == 0: return w_dma('wq', s, QREG(s), V_DWQ, S_WQ, S_OFFW, [f's_add_u32 s3, s{S_OFFW}, 128'])
        return w_dma('wq', s, QREG(s), V_DWQ, S_WQ, 3, [f's_add_u32 s{S_OFFW}, s{S_OFFW}, 524288', f's_and_b32 s{S_OFFW}, s{S_OFFW}, 0x3fffff'])
    def wo_dma(s):
        return w_dma('wo', s, OREG(s), V_DWO, S_WO, S_OFFW, [f's_add_u32 s{S_OFFW}, s{S_OFFW}, {65536 + (128 if s == 7 else 0)}', f's_and_b32 s{S_OFFW}, s{S_OFFW}, 0x7ffff'])
    OREG = lambda s: [R4, R0, R3][s % 3]
    wq_early = wq_dma(0) + wq_dma(1)
    wq2 = wq_dma(2)
    wq_early += wq2[:5]; wq_late = wq2[5:]
    emit_ops(st, wq_early[:cfg.npre]); wq_early = wq_early[cfg.npre:]
    ndum = [0]
    def pf(voff, srdr, soff, imm=0):
        r = A_DUMMY + 4 * (ndum[0] % 3); ndum[0] += 1
        return (f'buffer_load_dwordx4 {ar(r, 4)}, {voff}, {sr(srdr, 4)}, {soff} offen offset:{imm}', 'pf')
    pfo = []
    if cfg.pfq:
        pfo += [(f's_lshl_b32 s5, s{S_PF}, {17 + lg}', None), (f's_lshl_b32 s6, s{S_W}, {15 + lg}', None), ('s_add_u32 s5, s5, s6', None)]
        for i in range(4 * cfg.G): pfo += [pf('v7', S_WQ, 's5'), ('s_add_u32 s5, s5, 8192', None)]
    if cfg.prefetch:
        pfo += [(f's_lshl_b32 s5, s{S_PF}, {11 + lg}', None), (f's_lshl_b32 s6, s{S_W}, {9 + lg}', None), ('s_add_u32 s5, s5, s6', None)]
        for i in range(max(1, cfg.G // 2)): pfo += [pf('v7', S_K, 's5', 1024 * i), pf('v7', S_V, 's5', 1024 * i)]
    pfwo = [(f's_lshl_b32 s5, s{S_RB}, 14', None), (f's_add_u32 s5, s5, s{S_WB}', None)] + [pf('v252', S_WO, 's5', 1024 * i) for i in range(4)]
    e(f's_lshl_b32 s62, s{S_G}, 19')
    srd(e, S_K, 50, 51, 524288, off='s62'); srd(e, S_V, 52, 53, 524288, off='s62')
    srd(e, S_WO, 56, 57, 524288, off='s62')
    e(f's_lshl_b32 s62, s{S_G}, 21'); e(f's_add_u32 s62, s62, {WS_PART}')
    srd(e, S_PART, 58, 59, 1 << 21, off='s62')
    e('s_and_b32 s61, s2, 1'); e('s_mul_i32 s62, s61, 1792'); e(f's_sub_u32 s63, {512 * 3584}, s62'); srd(e, 92, 4, 5, 's63', off='s62')
    e('s_lshl_b32 s62, s61, 9'); e(f's_sub_u32 s63, {512 * 3584}, s62'); srd(e, 96, 6, 7, 's63', off='s62')
    e('s_lshr_b32 s4, s2, 3'); e('s_lshl_b32 s4, s4, 2'); e(f's_add_u32 s4, s4, s{S_W}'); e(f's_mul_i32 s7, s4, {14 * 1024}'); e(f's_mul_i32 s4, s4, {4 * 3584}')
    e('v_lshrrev_b32 v251, 5, v0'); e('v_lshlrev_b32 v251, 10, v251'); e('v_and_b32 v4, 31, v0'); e('v_lshl_add_u32 v251, v4, 4, v251')
    e('v_lshlrev_b32 v252, 4, v0')
    e(f's_mov_b32 s{S_OFFK}, 0'); e(f's_mov_b32 s{S_OFFV}, 0'); e(f's_add_u32 s{S_M0V}, s{S_WB}, {LDS_V}'); e(f's_mov_b32 s{S_FLAG}, 0')
    for ks in range(4):
        e(f'v_add_u32 v5, {4 * ks}, v{V_PI}'); e(f'v_xor_b32 v5, v5, v{V_R}'); e('v_lshlrev_b32 v5, 4, v5'); e(f'v_lshl_add_u32 {vr(V_KA + ks)}, v{V_R}, 8, v5')
    e(f'v_lshrrev_b32 v11, 2, v{V_R}'); e(f'v_and_b32 v12, 3, v{V_R}'); e('v_lshlrev_b32 v12, 3, v12')
    e(f'v_lshl_add_u32 v5, v{V_G}, 2, v11'); e('v_and_b32 v13, 7, v5'); e('v_lshl_add_u32 v14, v5, 8, v12'); e(f'v_add_u32 v14, {LDS_V}, v14')
    for db in range(8): e(f'v_xor_b32 v4, {db}, v13'); e(f'v_lshl_add_u32 {vr(V_VA + db)}, v4, 5, v14')
    e(f'v_lshl_add_u32 v9, v{V_G}, 8, s{S_WB}')
    for j in range(4): e(f'v_add_u32 v5, {4 * j}, v{V_G}'); e(f'v_xor_b32 v5, v5, v{V_R}'); e(f'v_lshl_add_u32 {vr(V_DK + j)}, v5, 4, v9')
    for j in range(2): e(f'v_add_u32 v5, {4 * j}, v{V_G}'); e('v_lshlrev_b32 v5, 1, v5'); e(f'v_xor_b32 v5, v5, v{V_R}'); e(f'v_lshl_add_u32 {vr(V_DV + j)}, v5, 4, v9')
    e(f's_lshl_b32 s61, s{S_W}, 8'); e('v_lshrrev_b32 v8, 3, v0'); e(f'v_lshl_add_u32 v8, v8, 10, s61')
    e('v_and_b32 v5, 7, v0'); e(f'v_lshlrev_b32 v4, 1, v{V_G}'); e('v_xor_b32 v4, v4, v5'); e(f'v_lshl_add_u32 {vr(V_DWO)}, v4, 4, v8')
    for j in range(1, 8): e(f'v_add_u32 {vr(V_DWO + j)}, {8192 * j - 1024 * (j % 4)}, {vr(V_DWO)}')
    e(f'v_and_b32 v4, 1, v{V_G}'); e(f'v_lshrrev_b32 v13, 3, v{V_R}'); e('v_lshl_add_u32 v13, v4, 1, v13')
    e(f'v_lshl_add_u32 v5, v{V_G}, 3, v11'); e('v_lshl_add_u32 v14, v5, 7, v12'); e(f'v_add_u32 v14, s{S_WB}, v14')
    for nb in range(4):
        e(f'v_xor_b32 v4, {nb}, v13'); e(f'v_lshl_add_u32 {vr(V_TA[0] + nb)}, v4, 5, v14'); e(f'v_add_u32 {vr(V_TA[1] + nb)}, {R2}, {vr(V_TA[0] + nb)}')
    e(f'v_add_u32 {vr(V_BA)}, {R3}, v7')
    e(f's_lshl_b32 s61, s{S_W}, 14'); e(f'v_add_u32 v8, s61, {vr(V_BA)}')
    e(f's_add_u32 s62, s{S_WB}, {MODL}'); e(f'v_lshl_add_u32 v9, v{V_G}, 5, s62')
    e(f's_add_u32 s61, s61, {R3}'); e(f'v_lshl_add_u32 v14, v{V_R}, 10, s61')
    for k in range(4): e(f'v_add_u32 v4, {4 * k}, v{V_G}'); e(f'v_xor_b32 v4, v4, v{V_R}'); e(f'v_lshl_add_u32 v{10 + k}, v4, 4, v14')
    main = st; st = Stream(); e = st.e
    main.wait(vm=['x'])
    for ks in range(16): main.lds(f'ds_read_b128 {vr(V_ACC + 8 * ks + 4, 4)}, v{10 + ks % 4} offset:{(ks // 4) * 256}', ('x', ks))
    stamp(main, cfg, 1)
    for ks in range(16):
        b = V_ACC + 8 * ks
        if ks % 2 == 0: st.wait(lds=[('x', ks + 1)])
        for j in range(4):
            e(f'v_lshlrev_b32 v{b + 2 * j}, 16, v{b + 4 + j}'); e(f'v_and_b32 v{b + 2 * j + 1}, 0xffff0000, v{b + 4 + j}')
        for j in range(4):
            if ks == 0: continue
            a = V_HO + 2 * j
            e(f'v_pk_add_f32 {vr(a, 2)}, {vr(b + 2 * j, 2)}, {vr(a, 2) if ks > 1 else vr(V_ACC + 2 * j, 2)}')
    a = V_HO
    e(f'v_pk_add_f32 {vr(a, 2)}, {vr(a, 2)}, {vr(a + 2, 2)}'); e(f'v_pk_add_f32 {vr(a + 4, 2)}, {vr(a + 4, 2)}, {vr(a + 6, 2)}')
    e(f'v_pk_add_f32 {vr(a, 2)}, {vr(a, 2)}, {vr(a + 4, 2)}'); e(f'v_add_f32 v4, v{a}, v{a + 1}')
    xlane_reduce(e, [4], [5], 'v_add_f32')
    e(f'v_mul_f32 v4, {f2h(-1.0 / 512)}, v4')
    for ks in range(16):
        b = V_ACC + 8 * ks
        for j in range(4): e(f'v_pk_add_f32 {vr(b + 2 * j, 2)}, {vr(b + 2 * j, 2)}, v[4:5] op_sel_hi:[1,0]')
        for j in range(4):
            if ks == 0: e(f'v_pk_mul_f32 {vr(a + 2 * j, 2)}, {vr(b + 2 * j, 2)}, {vr(b + 2 * j, 2)}')
            else: e(f'v_pk_fma_f32 {vr(a + 2 * j, 2)}, {vr(b + 2 * j, 2)}, {vr(b + 2 * j, 2)}, {vr(a + 2 * j, 2)}')
    st.wait(vm=['mod'])
    def modrd(ks):
        m = V_MOD + 16 * (ks % 2)
        for j in range(4): st.lds(f'ds_read_b128 {vr(m + 4 * j, 4)}, v9 offset:{ks * 256 + (j // 2) * 128 + (j % 2) * 16}', ('mod', ks))
    modrd(0); modrd(1)
    e(f'v_pk_add_f32 {vr(a, 2)}, {vr(a, 2)}, {vr(a + 2, 2)}'); e(f'v_pk_add_f32 {vr(a + 4, 2)}, {vr(a + 4, 2)}, {vr(a + 6, 2)}')
    e(f'v_pk_add_f32 {vr(a, 2)}, {vr(a, 2)}, {vr(a + 4, 2)}'); e(f'v_add_f32 v4, v{a}, v{a + 1}')
    xlane_reduce(e, [4], [5], 'v_add_f32')
    e(f'v_mov_b32 v5, {f2h(1e-5)}'); e(f'v_fmac_f32 v5, {f2h(1.0 / 512)}, v4'); e('v_rsq_f32 v4, v5'); e('s_nop 0')
    for ks in range(16):
        b = V_ACC + 8 * ks; m = V_MOD + 16 * (ks % 2); ho = V_HO + 4 * (ks % 2)
        for j in range(4): e(f'v_pk_mul_f32 {vr(b + 2 * j, 2)}, {vr(b + 2 * j, 2)}, v[4:5] op_sel_hi:[1,0]')
        st.wait(lds=[('mod', ks)])
        for j in range(4): e(f'v_pk_fma_f32 {vr(b + 2 * j, 2)}, {vr(b + 2 * j, 2)}, {vr(m + 2 * j, 2)}, {vr(m + 8 + 2 * j, 2)}')
        if ks + 2 < 16: modrd(ks + 2)
        for j in range(4): e(f'v_cvt_pk_bf16_f32 v{ho + j}, v{b + 2 * j}, v{b + 2 * j + 1}')
        st.lds(f'ds_write_b128 v8, {vr(ho, 4)} offset:{ks * 1024}', 'hw')
    body = st; st = main; e = st.e
    left = interleave(st, body, wq_early + pfo, 0, cfg.lnev)
    emit_ops(st, left + wq_late)
    st.wait(lds='all'); e('s_barrier')
    stamp(st, cfg, 2)
    def ta_q(s):
        r = QREG(s); return (V_TA[1], 0) if r == R2 else (V_TA[0], r)
    def refill_q(s):
        if s + 3 < 16: return wq_dma(s + 3)
        return {13: kv_dma('K', 0) + kv_dma('K', 1), 14: kv_dma('V', 0) + kv_dma('V', 1), 15: kv_dma('K', 2) + kv_dma('K', 3)}[s]
    zero = [f'v_accvgpr_write_b32 a{A_O + i}, 0' for i in range(128)] + [f'v_accvgpr_write_b32 a{A_L + i}, 0' for i in range(16)]
    zero += ['v_mov_b32 v5, 0x3f803f80'] + [f'v_accvgpr_write_b32 a{A_ONE + i}, v5' for i in range(4)]
    gemm(st, cfg, 'wq', [(s // 2, s % 2) for s in range(16)], ta_q, 512, V_BA, lambda ks, qb: qb * 16384 + ks * 1024, refill_q, zero)
    stamp(st, cfg, 3)
    e('s_nop 3')
    for ks in range(4):
        for qb in range(4):
            d = V_Q + (qb * 4 + ks) * 4; a0 = ACC(2 * ks, qb); a1 = ACC(2 * ks + 1, qb)
            e(f'v_cvt_pk_bf16_f32 v{d}, v{a0}, v{a0 + 1}'); e(f'v_cvt_pk_bf16_f32 v{d + 1}, v{a0 + 2}, v{a0 + 3}')
            e(f'v_cvt_pk_bf16_f32 v{d + 2}, v{a1}, v{a1 + 1}'); e(f'v_cvt_pk_bf16_f32 v{d + 3}, v{a1 + 2}, v{a1 + 3}')
        e('s_nop 0')
        for qb in range(4):
            d = V_Q + (qb * 4 + ks) * 4
            e(f'v_permlane16_swap_b32 v{d}, v{d + 2}'); e(f'v_permlane16_swap_b32 v{d + 1}, v{d + 3}')
    st.wait(vm=[('dK', 0)]); e('s_barrier')
    emit_ops(st, kv_dma('V', 2))
    st.mark('attn_start')
    def rawA(st): schedule(st, groups_A(0, cfg, raw=True) + groups_A(1, cfg, raw=True), RING, 16, primed=8)
    def tile_max(first, st):
        e = st.e
        for qb in range(4):
            regs = [Sreg(b, kb, qb) + i for b in range(2) for kb in range(2) for i in range(4)]
            m = 4 + qb
            if first:
                e(f'v_max3_f32 v{m}, v{regs[0]}, v{regs[1]}, v{regs[2]}')
                for i in range(3, 15, 2): e(f'v_max3_f32 v{m}, v{m}, v{regs[i]}, v{regs[i + 1]}')
                e(f'v_max_f32 v{m}, v{m}, v{regs[15]}')
            else:
                for i in range(0, 16, 2): e(f'v_max3_f32 v{m}, v{m}, v{regs[i]}, v{regs[i + 1]}')
    def make_negm(st):
        e = st.e
        xlane_reduce(e, [4, 5, 6, 7], [8, 9, 10, 11], 'v_max_f32')
        for qb in range(4):
            for i in range(4): e(f'v_sub_f32 {vr(V_NEGM + 4 * qb + i)}, {f2h(-cfg.B)}, v{4 + qb}')
    rawA(st)
    e(f's_cmp_lg_u32 s{S_FLAG}, 0'); e('s_nop 6'); e('s_cbranch_scc1 L_k1_havemax')
    tile_max(True, st); make_negm(st)
    e('L_k1_havemax:')
    for b in range(2):
        for kb in range(2):
            for qb in range(4):
                s = Sreg(b, kb, qb)
                for i in (0, 2): e(f'v_pk_add_f32 {vr(s + i, 2)}, {vr(s + i, 2)}, {vr(V_NEGM + 4 * qb, 2)}')
    st.wait(lds='all', vm=[('dK', 1), ('dV', 0)]); e('s_barrier')
    pfw1 = []; pfw2 = []
    for r in range(4):
        pfw1 += [(f's_add_u32 s5, s4, {r * 3584}', None), pf('v252', 92, 's5'), pf('v252', 92, 's5', 768)]
    for r in range(7):
        pfw2 += [(f's_add_u32 s5, s7, {r * 2048}', None), pf('v251', 96, 's5')]
    def tail_extra(t):
        if t == 28: return pfwo + (pfw1[:6] if cfg.pfw else [])
        if t == 29: return [(f's_lshl_b32 s{S_OFFW}, s{S_ROT}, 15', None)] + wo_dma(0) + (pfw2 if cfg.pfw else [])
        if t == 30: return wo_dma(1) + (pfw1[6:] if cfg.pfw else [])
        return []
    attn_main(st, cfg, tail_extra)
    stamp(st, cfg, 5)
    e('s_setreg_imm32_b32 hwreg(HW_REG_MODE, 4, 2), 3')
    e(f'v_lshrrev_b32 v5, 2, v{V_R}'); e(f'v_lshl_add_u32 v5, v{V_G}, 2, v5'); e('v_bfe_u32 v6, v5, 1, 2'); e(f'v_and_b32 v7, 3, v{V_R}'); e('v_lshlrev_b32 v7, 3, v7')
    e('v_lshl_add_u32 v7, v5, 7, v7'); e(f'v_add_u32 v7, s{S_WB}, v7')
    for nb in range(4): e(f'v_xor_b32 v5, {nb}, v6'); e(f'v_lshl_add_u32 {vr(V_TO[0] + nb)}, v5, 5, v7'); e(f'v_add_u32 {vr(V_TO[1] + nb)}, {R3}, {vr(V_TO[0] + nb)}')
    for qb in range(4): e(f'v_accvgpr_read_b32 v{4 + qb}, a{A_L + 4 * qb}')
    e(f'v_mov_b32 v12, {f2h(cfg.thr)}')
    e('v_max3_f32 v8, v4, v5, v6'); e('v_max_f32 v8, v8, v7')
    for qb in range(4): e(f'v_add_f32 v{9}, v{4 + qb}, {"v9" if qb else "0"}')
    e('v_cmp_nlt_f32 vcc, v8, v12'); e('v_cmp_u_f32 s[62:63], v9, v9')
    for qb in range(4): e(f'v_rcp_f32 v{4 + qb}, v{4 + qb}')
    e('s_or_b64 vcc, vcc, s[62:63]'); e('s_cmp_lg_u64 vcc, 0'); e('s_cselect_b32 s61, 1, 0')
    e('v_and_b32 v10, 3, v0'); e('v_lshlrev_b32 v10, 12, v10'); e(f's_lshl_b32 s62, s{S_W}, 2'); e(f's_add_u32 s62, s62, {R3}'); e('v_add_u32 v10, s62, v10')
    e('v_mov_b32 v11, s61'); st.lds('ds_write_b32 v10, v11', 'flagw')
    e('v_lshlrev_b32 v14, 4, v0'); e(f's_lshl_b32 s61, s{S_W}, 2'); e(f's_sub_u32 s61, s61, s{S_ROT}')
    for m in range(4):
        e(f's_add_u32 s62, s61, {m}'); e('s_and_b32 s62, s62, 15'); e('s_lshl_b32 s62, s62, 12'); e(f's_add_u32 s62, s62, {R1}'); e(f'v_add_u32 v{V_P + m}, s62, v14')
    k = 0
    for qb in range(4):
        for m in range(4):
            t = V_S[0] + 16 * (k % 4); k += 1
            for hb in range(2):
                for i in range(4): e(f'v_accvgpr_read_b32 v{t + 4 * hb + i}, a{A_O + ((2 * m + hb) * 4 + qb) * 4 + i}')
            sel = f'v[{4 + qb}:{5 + qb}] op_sel_hi:[1,0]' if qb % 2 == 0 else f'v[{3 + qb}:{4 + qb}] op_sel:[0,1] op_sel_hi:[1,1]'
            for i in range(4): e(f'v_pk_mul_f32 {vr(t + 2 * i, 2)}, {vr(t + 2 * i, 2)}, {sel}')
            for i in range(4): e(f'v_cvt_pk_bf16_f32 v{t + 8 + i}, v{t + 2 * i}, v{t + 2 * i + 1}')
            st.lds(f'ds_write_b128 v{V_P + m}, {vr(t + 8, 4)} offset:{qb * 1024}', 'ow')
    e(f'v_add_u32 v{V_BO}, {R1}, v14'); e(f's_add_u32 s61, s{S_WB}, {R3}'); e('v_mov_b32 v10, s61')
    st.wait(lds='all'); e('s_barrier')
    st.lds('ds_read_b128 v[4:7], v10', 'flagr'); st.wait(lds=['flagr'])
    e('v_or3_b32 v4, v4, v5, v6'); e('v_or_b32 v4, v4, v7'); e('s_nop 0'); e('v_readfirstlane_b32 s61, v4'); e('s_nop 3')
    e(f's_andn2_b32 s61, s61, s{S_FLAG}'); e('s_cbranch_scc1 L_k1_slow')
    stamp(st, cfg, 6)
    def ta_o(s):
        r = OREG(s); return (V_TO[0], 0) if r == R0 else (V_TO[1], r - R3)
    def refill_o(s): return wo_dma(s + 3) if s + 3 < 16 else []
    sadr = [f'v_lshrrev_b32 v4, 1, v{V_R}', 'v_lshlrev_b32 v4, 11, v4', f'v_lshl_add_u32 v4, v{V_PI}, 5, v4', f'v_and_b32 v5, 1, v{V_R}', 'v_lshl_add_u32 v4, v5, 4, v4',
            f's_lshl_b32 s48, s{S_RB}, 16', f's_lshl_b32 s62, s{S_W}, 9', 's_add_u32 s48, s48, s62'] + [f's_add_u32 s{48 + qb}, s48, {16384 * qb}' for qb in range(1, 4)]
    def out_half(h):
        ops = []
        for qb in range(4):
            for m in (2 * h, 2 * h + 1):
                d = V_Q + (qb * 4 + m) * 4; a0 = ACC(2 * m, qb); a1 = ACC(2 * m + 1, qb)
                ops += [f'v_cvt_pk_bf16_f32 v{d}, v{a0}, v{a0 + 1}', f'v_cvt_pk_bf16_f32 v{d + 1}, v{a0 + 2}, v{a0 + 3}',
                        f'v_cvt_pk_bf16_f32 v{d + 2}, v{a1}, v{a1 + 1}', f'v_cvt_pk_bf16_f32 v{d + 3}, v{a1 + 2}, v{a1 + 3}']
            for m in (2 * h, 2 * h + 1):
                d = V_Q + (qb * 4 + m) * 4
                ops += [f'v_permlane16_swap_b32 v{d}, v{d + 2}', f'v_permlane16_swap_b32 v{d + 1}, v{d + 3}']
            for m in (2 * h, 2 * h + 1):
                ops.append((f'buffer_store_dwordx4 {vr(V_Q + (qb * 4 + m) * 4, 4)}, v4, {sr(S_PART, 4)}, s{48 + qb} offen offset:{m * 128}{SC}', 'st'))
        return ops
    gemm(st, cfg, 'wo', [(s % 8, s // 8) for s in range(16)], ta_o, 2048, V_BO, lambda ks, qb: ks * 4096 + qb * 1024, refill_o, sadr,
         first_ops=wo_dma(2), late=(cfg.ost, out_half(0)))
    stamp(st, cfg, 7)
    e('s_nop 7')
    for x in out_half(1):
        if isinstance(x, tuple): st.vm(*x)
        else: e(x)
    stamp_out(st, cfg, 1, 8, 58, S_W)
    e('s_endpgm')
    segs, order = split_marks(st.resolve())
    NL = 28
    for t in range(4, NL):
        if segs[f'it{t}'] != segs[f'it{t - 4}']:
            import difflib, sys
            sys.stderr.write('\n'.join(list(difflib.unified_diff(segs[f'it{t - 4}'], segs[f'it{t}'], lineterm='', n=2))[:60]) + '\n')
            raise SystemExit(f'iteration {t} differs')
    if cfg.strip:
        import re
        pat = re.compile(cfg.strip.replace('+', '|'))
        for t in range(NL): segs[f'it{t}'] = [x for x in segs[f'it{t}'] if not pat.match(x)]
    out = header(name) + segs['_start'] + ['L_k1_attn_start:'] + segs['attn_start']
    tmp = Stream(); stamp(tmp, cfg, 4); out += tmp.resolve()
    out += [f's_mov_b32 s{S_CNT}, {NL // 4}', '.p2align 6', 'L_k1_loop:']
    for t in range(4): out += segs[f'it{t}']
    out += [f's_sub_u32 s{S_CNT}, s{S_CNT}, 1', f's_cmp_lg_u32 s{S_CNT}, 0', 's_cbranch_scc1 L_k1_loop']
    for t in range(NL, NT): out += segs[f'it{t}']
    out += segs['end']
    st = Stream(); e = st.e
    e('L_k1_slow:')
    e(f's_mov_b32 s{S_FLAG}, 1'); e('s_setreg_imm32_b32 hwreg(HW_REG_MODE, 4, 2), 0')
    e('s_waitcnt vmcnt(0) lgkmcnt(0)'); e('s_barrier')
    e(f's_mov_b32 s{S_OFFK}, 0'); e(f's_mov_b32 s{S_CNT}, {NT}')
    for qb in range(4): e(f'v_mov_b32 v{4 + qb}, 0xff800000')
    e('L_k1_slow_loop:')
    emit_ops(st, kv_dma('K', 0)); st.wait(vm='all'); e('s_barrier')
    rawA(st)
    e('s_nop 7'); tile_max(False, st)
    e('s_barrier')
    e(f's_sub_u32 s{S_CNT}, s{S_CNT}, 1'); e(f's_cmp_lg_u32 s{S_CNT}, 0'); e('s_cbranch_scc1 L_k1_slow_loop')
    make_negm(st)
    for z in zero: e(z)
    e(f's_mov_b32 s{S_OFFK}, 0'); e(f's_mov_b32 s{S_OFFV}, 0')
    for w_, t_ in [('K', 0), ('K', 1), ('V', 0), ('V', 1), ('K', 2), ('K', 3), ('V', 2)]: emit_ops(st, kv_dma(w_, t_))
    st.wait(vm='all'); e('s_barrier'); e('s_branch L_k1_attn_start')
    out += st.resolve() + ['L_k1_end:', 's_endpgm']
    return out, kd(name, 512, 256, 102), f'; @launch kernel={name} grid=(256,1,1) block=(256,1,1) lds=163840'
```

```python
from gen_common import *
def gen_k2(cfg, name='k2_ln_kernel'):
    st = Stream(); e = st.e
    cfg.sv = 170
    e('s_cmp_ge_u32 s2, 256'); e('s_cbranch_scc1 L_k2_end')
    e(f's_load_dwordx2 s[4:5], s[0:1], {KA_X}'); e(f's_load_dwordx2 s[6:7], s[0:1], {KA_WS}')
    stamp(st, cfg, 0, False)
    e('v_lshrrev_b32 v1, 6, v0'); e('v_and_b32 v0, 63, v0'); e('v_readfirstlane_b32 s3, v1')
    e('v_lshlrev_b32 v1, 4, v0')
    e('v_and_b32 v2, 1, v0'); e('v_lshrrev_b32 v3, 1, v0')
    e('v_lshlrev_b32 v4, 10, v2'); e('v_lshl_add_u32 v4, v3, 4, v4')
    e('v_lshlrev_b32 v5, 5, v3')
    e('s_lshl_b32 s24, s2, 2'); e('s_add_u32 s24, s24, s3'); e('s_lshl_b32 s24, s24, 11')
    e('v_lshrrev_b32 v8, 3, v0'); e('v_lshlrev_b32 v8, 10, v8'); e('v_and_b32 v9, 3, v3'); e('v_lshl_add_u32 v8, v9, 8, v8'); e('v_lshl_add_u32 v8, v2, 4, v8')
    e('s_lshr_b32 s27, s2, 1'); e('s_lshl_b32 s27, s27, 14'); e('s_and_b32 s28, s2, 1'); e('s_lshl_b32 s28, s28, 7'); e('s_add_u32 s28, s28, s27'); e('s_lshl_b32 s27, s3, 5'); e('s_add_u32 s28, s28, s27')
    e(f's_add_u32 s27, s28, {WS_H2}')
    e('s_waitcnt lgkmcnt(0)')
    srd(e, 8, 6, 7, 8 << 21, off=WS_PART); srd(e, 12, 4, 5, 2 << 20); srd(e, 16, 6, 7, 8 << 20)
    PB = 16
    e('s_mov_b32 s25, s24')
    for g in range(8):
        for s in range(2): st.vm(f'buffer_load_dwordx4 {vr(PB + 8 * g + 4 * s, 4)}, v1, s[8:11], s25 offen offset:{1024 * s}{" nt" if cfg.k2nt else ""}', ('p', g))
        if g < 7: e(f's_add_u32 s25, s25, {1 << 21}')
        if g == 1:
            for s in range(2): st.vm(f'buffer_load_dwordx4 {vr(80 + 4 * s, 4)}, v4, s[12:15], s24 offen offset:{512 * s}', 'x')
    MB = 88
    e(f's_mov_b32 s26, {WS_MODB}')
    for a in range(3):
        for s in range(2):
            for j in range(2): st.vm(f'buffer_load_dwordx4 {vr(MB + 16 * a + 8 * s + 4 * j, 4)}, v5, s[16:19], s26 offen offset:{1024 * s + 16 * j}', ('m', a))
        if a < 2: e('s_add_u32 s26, s26, 2048')
    AC = 136; T = 152
    stamp(st, cfg, 1)
    for g in range(8):
        st.wait(vm=[('p', g)])
        dst = AC if g == 0 else T
        for j in range(8):
            e(f'v_lshlrev_b32 v{dst + 2 * j}, 16, v{PB + 8 * g + j}'); e(f'v_and_b32 v{dst + 2 * j + 1}, 0xffff0000, v{PB + 8 * g + j}')
        if g:
            for j in range(8): e(f'v_pk_add_f32 {vr(AC + 2 * j, 2)}, {vr(AC + 2 * j, 2)}, {vr(T + 2 * j, 2)}')
    for j in range(8):
        e(f'v_lshlrev_b32 v{T + 2 * j}, 16, v{80 + j}'); e(f'v_and_b32 v{T + 2 * j + 1}, 0xffff0000, v{80 + j}')
    st.wait(vm=[('m', 0)]); stamp(st, cfg, 2)
    for j in range(8): e(f'v_pk_fma_f32 {vr(AC + 2 * j, 2)}, {vr(AC + 2 * j, 2)}, {vr(MB + 2 * j, 2)}, {vr(T + 2 * j, 2)}')
    X1 = 16
    for j in range(8): e(f'v_cvt_pk_bf16_f32 v{X1 + j}, v{AC + 2 * j}, v{AC + 2 * j + 1}')
    e(f's_add_u32 s25, s24, {WS_X1}')
    for j in range(8):
        e(f'v_lshlrev_b32 v{AC + 2 * j}, 16, v{X1 + j}'); e(f'v_and_b32 v{AC + 2 * j + 1}, 0xffff0000, v{X1 + j}')
    for s in range(2): st.vm(f'buffer_store_dwordx4 {vr(X1 + 4 * s, 4)}, v1, s[16:19], s25 offen offset:{1024 * s}{SC}', 'st')
    def rowsum(src, sq):
        if sq:
            for j in range(4): e(f'v_pk_mul_f32 {vr(T + 2 * j, 2)}, {vr(src + 2 * j, 2)}, {vr(src + 2 * j, 2)}')
            for j in range(4): e(f'v_pk_fma_f32 {vr(T + 2 * j, 2)}, {vr(src + 8 + 2 * j, 2)}, {vr(src + 8 + 2 * j, 2)}, {vr(T + 2 * j, 2)}')
        else:
            for j in range(4): e(f'v_pk_add_f32 {vr(T + 2 * j, 2)}, {vr(src + 2 * j, 2)}, {vr(src + 8 + 2 * j, 2)}')
        e(f'v_pk_add_f32 {vr(T, 2)}, {vr(T, 2)}, {vr(T + 2, 2)}'); e(f'v_pk_add_f32 {vr(T + 4, 2)}, {vr(T + 4, 2)}, {vr(T + 6, 2)}')
        e(f'v_pk_add_f32 {vr(T, 2)}, {vr(T, 2)}, {vr(T + 4, 2)}'); e(f'v_add_f32 v6, v{T}, v{T + 1}')
        for ror in (2, 4, 8):
            e('s_nop 1'); e(f'v_add_f32_dpp v6, v6, v6 row_ror:{ror} row_mask:0xf bank_mask:0xf')
        xlane_reduce(e, [6], [7], 'v_add_f32')
    rowsum(AC, False)
    e(f'v_mul_f32 v6, {f2h(-1.0 / 512)}, v6')
    for j in range(8): e(f'v_pk_add_f32 {vr(AC + 2 * j, 2)}, {vr(AC + 2 * j, 2)}, v[6:7] op_sel_hi:[1,0]')
    rowsum(AC, True)
    e(f'v_mov_b32 v7, {f2h(1e-5)}'); e(f'v_fmac_f32 v7, {f2h(1.0 / 512)}, v6'); e('v_rsq_f32 v6, v7'); e(f's_add_u32 s25, s28, {WS_H2 + 8192}')
    for j in range(8): e(f'v_pk_mul_f32 {vr(AC + 2 * j, 2)}, {vr(AC + 2 * j, 2)}, v[6:7] op_sel_hi:[1,0]')
    st.wait(vm=[('m', 2)])
    for j in range(8): e(f'v_pk_fma_f32 {vr(AC + 2 * j, 2)}, {vr(AC + 2 * j, 2)}, {vr(MB + 16 + 2 * j, 2)}, {vr(MB + 32 + 2 * j, 2)}')
    for j in range(8): e(f'v_cvt_pk_bf16_f32 v{24 + j}, v{AC + 2 * j}, v{AC + 2 * j + 1}')
    for s in range(2): st.vm(f'buffer_store_dwordx4 {vr(24 + 4 * s, 4)}, v8, s[16:19], s{(27, 25)[s]} offen{SC if cfg.h2sc else ""}', 'st')
    stamp(st, cfg, 3); stamp_out(st, cfg, 2, 4, 6, 3)
    out = header(name) + st.resolve() + ['L_k2_end:', 's_endpgm']
    return out, kd(name, 172, 172), f'; @launch kernel={name} grid=(256,1,1) block=(256,1,1) lds=0'
```

```python
from gen_common import *
def gen_k3(cfg, name='k3_ffn1_kernel'):
    st = Stream(); e = st.e
    cfg.sv = 126
    e('s_cmp_ge_u32 s2, 256'); e('s_cbranch_scc1 L_k3_end')
    e(f's_load_dwordx2 s[4:5], s[0:1], {KA_W1}'); e(f's_load_dwordx2 s[6:7], s[0:1], {KA_WS}')
    stamp(st, cfg, 0, False)
    e('v_lshrrev_b32 v1, 6, v0'); e('v_and_b32 v0, 63, v0'); e('v_readfirstlane_b32 s3, v1')
    e('v_and_b32 v1, 15, v0'); e('v_lshrrev_b32 v2, 4, v0')
    e('s_and_b32 s20, s2, 7'); e('s_lshr_b32 s21, s2, 3')
    e('s_lshr_b32 s22, s20, 1'); e('s_lshl_b32 s22, s22, 2'); e('s_lshr_b32 s23, s21, 3'); e('s_add_u32 s22, s22, s23')
    e('s_and_b32 s23, s20, 1'); e('s_lshl_b32 s23, s23, 3'); e('s_and_b32 s24, s21, 7'); e('s_add_u32 s23, s23, s24')
    e('v_lshlrev_b32 v3, 4, v0')
    e('s_lshl_b32 s24, s22, 17'); e('s_lshl_b32 s25, s3, 15'); e('s_add_u32 s24, s24, s25'); e('s_add_u32 s25, s24, 16384')
    DW = 8
    e('s_movk_i32 s26, 4682'); e('s_movk_i32 s27, 3584')
    for n in range(7):
        e(f'v_add_u32 v4, {64 * n}, v0'); e('v_mul_u32_u24 v5, s26, v4'); e('v_lshrrev_b32 v5, 16, v5')
        e('v_mul_u32_u24 v6, 14, v5'); e('v_sub_u32 v4, v4, v6')
        e('v_and_b32 v6, 0x13, v5'); e('v_bfe_u32 v7, v5, 2, 1'); e('v_lshl_or_b32 v6, v7, 3, v6'); e('v_bfe_u32 v7, v5, 3, 1'); e('v_lshl_or_b32 v6, v7, 2, v6')
        e('v_mul_u32_u24 v6, s27, v6'); e('v_lshl_add_u32 v6, v4, 4, v6'); e(f'v_subrev_u32 v{DW + n}, {1024 * (n % 4)}, v6')
    e('s_lshr_b32 s30, s21, 3'); e('s_add_u32 s30, s30, s21')
    e('s_mul_i32 s26, s23, 224'); e(f's_mul_i32 s27, s3, {32 * 3584}'); e('s_add_u32 s26, s26, s27')
    for i in range(4):
        e(f's_add_u32 s31, s30, {i}'); e('s_and_b32 s31, s31, 3' if cfg.rot else f's_mov_b32 s31, {i}')
        e(f's_mul_i32 s40, s31, {4 * 32 * 3584}'); e(f's_add_u32 s{32 + i}, s26, s40')
        e('s_lshl_b32 s31, s31, 12'); e(f's_add_u32 s{36 + i}, s24, s31'); e(f's_add_u32 s{44 + i}, s25, s31')
    e('s_mul_i32 s27, s3, 7168')
    e('s_waitcnt lgkmcnt(0)')
    srd(e, 8, 4, 5, 512 * 3584); srd(e, 12, 6, 7, 2 << 20, off=WS_H2); srd(e, 16, 6, 7, 2048 * 3584, off=WS_H1)
    stamp(st, cfg, 1)
    def Bf(ks, qb): return ar((ks * 2 + qb) * 4, 4)
    def load_ops(i):
        ops = []
        bl = [(f'buffer_load_dwordx4 {Bf(4 * i + k, qb)}, v3, s[12:15], s{(36, 44)[qb] + i} offen offset:{1024 * k}', ('g', i)) for k in range(4) for qb in range(2)]
        for n in range(7):
            if n % 4 == 0: ops.append((f's_add_u32 m0, s27, {i * 4 * 7168 + (n // 4) * 4096}', None))
            ops.append(bl.pop(0))
            ops.append((f'buffer_load_dwordx4 v{DW + n}, s[8:11], s{32 + i} offen offset:{1024 * (n % 4)} lds', ('g', i)))
        return ops + bl
    def emit(ops):
        for t, tag in ops:
            if tag: st.vm(t, tag)
            else: e(t)
    PRE = cfg.k3pre
    for i in range(PRE): emit(load_ops(i))
    e('v_lshrrev_b32 v4, 1, v2'); e('v_lshlrev_b32 v4, 4, v4'); e('v_and_b32 v5, 1, v2'); e('v_lshl_add_u32 v4, v5, 2, v4'); e('v_lshrrev_b32 v5, 2, v1'); e('v_add_u32 v4, v4, v5')
    e('v_mul_u32_u24 v4, 0xe0, v4'); e('v_and_b32 v5, 3, v1'); e('v_lshl_add_u32 v16, v5, 3, v4'); e(f'v_add_u32 v17, {8 * 7168}, v16')
    e('v_lshlrev_b32 v18, 4, v0'); e('v_lshlrev_b32 v19, 3, v0')
    e('s_lshl_b32 s28, s22, 3'); e('s_lshl_b32 s29, s3, 1'); e('s_add_u32 s28, s28, s29'); e('s_lshl_b32 s28, s28, 4'); e('s_add_u32 s28, s28, s23'); e('s_mul_i32 s28, s28, 3584')
    e(f's_add_u32 s29, s28, {16 * 3584}')
    ACC = 24; FR = 80; NF = 11; D = 5
    stamp(st, cfg, 2)
    def rdA(u):
        ks, nb = divmod(u, 7); fr = FR + 4 * (u % NF); b = 16 + ks // 8; off = (ks % 8) * 7168 + nb * 32
        st.lds(f'ds_read_b64_tr_b16 {vr(fr, 2)}, v{b} offset:{off}', ('a', u)); st.lds(f'ds_read_b64_tr_b16 {vr(fr + 2, 2)}, v{b} offset:{off + 1792}', ('a', u))
    for i in range(4):
        st.wait(vm=[('g', i)]); e('s_barrier'); stamp(st, cfg, 3 + i)
        pend = load_ops(i + PRE) if i + PRE < 4 else []
        u0, u1 = 28 * i, 28 * i + 28
        for u in range(u0, u0 + D): rdA(u)
        for u in range(u0, u1):
            ks, nb = divmod(u, 7)
            st.wait(lds=[('a', u)])
            for qb in range(2):
                c = vr(ACC + (nb * 2 + qb) * 4, 4)
                e(f'{MF} {c}, {vr(FR + 4 * (u % NF), 4)}, {Bf(ks, qb)}, {c if ks else 0}')
                if qb == 0 and u + D < u1: rdA(u + D)
                if qb == 1 and pend: emit(pend[:1]); pend = pend[1:]
        assert not pend
    stamp(st, cfg, 7); e('s_nop 7')
    for qb in range(2):
        for p in range(4):
            d = FR + 16 * qb + 4 * p
            for hb in range(2 if p < 3 else 1):
                a = ACC + ((2 * p + hb) * 2 + qb) * 4
                for i in range(4): e(f'v_max_f32 v{a + i}, 0, v{a + i}')
                e(f'v_cvt_pk_bf16_f32 v{d + 2 * hb}, v{a}, v{a + 1}'); e(f'v_cvt_pk_bf16_f32 v{d + 2 * hb + 1}, v{a + 2}, v{a + 3}')
            if p < 3: st.vm(f'buffer_store_dwordx4 {vr(d, 4)}, v18, s[16:19], s{28 + qb} offen offset:{1024 * p}{SC}', 'st')
            else: st.vm(f'buffer_store_dwordx2 {vr(d, 2)}, v19, s[16:19], s{28 + qb} offen offset:3072{SC}', 'st')
    stamp(st, cfg, 8); stamp_out(st, cfg, 3, 9, 6, 3)
    out = header(name) + st.resolve() + ['L_k3_end:', 's_endpgm']
    return out, kd(name, 256, 128), f'; @launch kernel={name} grid=(256,1,1) block=(256,1,1) lds=114688'
```

```python
from gen_common import *
def gen_k4(cfg, name='k4_ffn2_kernel'):
    st = Stream(); e = st.e
    cfg.sv = 156
    e('s_cmp_ge_u32 s2, 256'); e('s_cbranch_scc1 L_k4_end')
    e(f's_load_dwordx2 s[4:5], s[0:1], {KA_W2}'); e(f's_load_dwordx2 s[6:7], s[0:1], {KA_WS}'); e(f's_load_dwordx2 s[36:37], s[0:1], {KA_OUT}')
    stamp(st, cfg, 0, False)
    e('v_lshrrev_b32 v1, 6, v0'); e('v_and_b32 v0, 63, v0'); e('v_readfirstlane_b32 s3, v1')
    e('v_and_b32 v1, 15, v0'); e('v_lshrrev_b32 v2, 4, v0')
    e('s_and_b32 s20, s2, 7'); e('s_lshr_b32 s21, s2, 3')
    e('s_lshr_b32 s22, s20, 1'); e('s_lshl_b32 s22, s22, 3'); e('s_lshr_b32 s23, s21, 2'); e('s_add_u32 s22, s22, s23')
    e('s_and_b32 s23, s20, 1'); e('s_lshl_b32 s23, s23, 2'); e('s_and_b32 s24, s21, 3'); e('s_add_u32 s23, s23, s24')
    e('v_lshlrev_b32 v3, 4, v0'); e('v_lshlrev_b32 v4, 3, v0')
    e('s_lshl_b32 s24, s22, 6'); e('s_lshl_b32 s25, s3, 2'); e('s_add_u32 s24, s24, s25'); e('s_mul_i32 s24, s24, 3584')
    e('v_lshrrev_b32 v5, 3, v0'); e('v_and_b32 v6, 7, v0'); e('v_lshlrev_b32 v7, 1, v2'); e('v_xor_b32 v6, v6, v7')
    e('v_lshlrev_b32 v5, 10, v5'); e('v_lshl_add_u32 v8, v6, 4, v5')
    for n in range(1, 4): e(f'v_add_u32 v{8 + n}, {7168 * n}, v8')
    e(f's_mul_i32 s28, s3, {448 * 1024}'); e('s_lshl_b32 s29, s23, 7'); e('s_add_u32 s28, s28, s29')
    e('s_lshl_b32 s29, s3, 15')
    e('s_waitcnt lgkmcnt(0)')
    srd(e, 8, 4, 5, 1792 * 1024); srd(e, 12, 6, 7, 2048 * 3584, off=WS_H1); srd(e, 16, 6, 7, 4 << 20); srd(e, 32, 36, 37, 2 << 20)
    if cfg.rot:
        e('s_lshr_b32 s41, s21, 2'); e('s_add_u32 s41, s41, s21')
        e('s_and_b32 s50, s41, 3')
        e('s_lshr_b32 s51, s21, 3'); e('s_cmp_eq_u32 s51, 3'); e('s_cselect_b32 s51, 1, s51')
    else:
        e('s_mov_b32 s50, 0'); e('s_mov_b32 s51, 0')
    for t in range(4):
        e(f's_xor_b32 s41, s50, {t}'); e(f's_mul_i32 s{42 + t}, s41, {112 * 1024}'); e(f's_add_u32 s{42 + t}, s{42 + t}, s28'); e(f's_mul_i32 s{52 + t}, s41, 3584')
    for p in range(3):
        e(f's_add_u32 s41, s51, {p}'); e('s_cmp_ge_u32 s41, 3'); e('s_cselect_b32 s59, 3, 0'); e('s_sub_u32 s41, s41, s59')
        e(f's_lshl_b32 s{46 + p}, s41, 15'); e(f's_lshl_b32 s{56 + p}, s41, 10')
    steps = []
    for u in range(2):
        for c in range(2):
            for p in range(3): steps.append(('pair', 2 * u + c, p))
        steps.append(('single', 2 * u, 0))
    NS = 14; NR = 8
    def Bf(s, qb, h=None):
        b = (s * 4 + qb) * 4
        return ar(b, 4) if h is None else ar(b + 2 * h, 2)
    for qb in range(4): e(f'v_add_u32 v{144 + qb}, {qb * 16 * 3584}, v3'); e(f'v_add_u32 v{148 + qb}, {qb * 16 * 3584}, v4')
    def load_ops(s):
        kind, c, p = steps[s]; ops = []
        ops.append((f's_add_u32 m0, s29, {(s % NR) * 4096}', None))
        if kind == 'pair':
            ops.append((f's_add_u32 s30, s{42 + c}, s{46 + p}', None))
            ops.append((f's_add_u32 s31, s{52 + c}, s{56 + p}', None)); ops.append(('s_add_u32 s31, s31, s24', None))
            for n in range(4):
                ops.append((f'buffer_load_dwordx4 v{8 + n}, s[8:11], s30 offen offset:{1024 * n} lds', ('w', s)))
                ops.append((f'buffer_load_dwordx4 {Bf(s, n)}, v{144 + n}, s[12:15], s31 offen', ('w', s)))
        else:
            for h in range(2):
                ops.append((f's_add_u32 s30, s{42 + c + h}, {(96 - 16 * h) * 1024}', None))
                ops.append((f's_add_u32 s31, s{52 + c + h}, s24', None))
                for n in range(2 * h, 2 * h + 2): ops.append((f'buffer_load_dwordx4 v{8 + n}, s[8:11], s30 offen offset:{1024 * n} lds', ('w', s)))
                for qb in range(4): ops.append((f'buffer_load_dwordx2 {Bf(s, qb, h)}, v{148 + qb}, s[12:15], s31 offen offset:3072', ('w', s)))
        return ops
    def emit(ops):
        for t, tag in ops:
            if tag: st.vm(t, tag)
            else: e(t)
    PRE = cfg.k4pre
    stamp(st, cfg, 1)
    for s in range(PRE): emit(load_ops(s))
    e('v_lshrrev_b32 v5, 2, v1'); e('v_lshl_add_u32 v5, v2, 2, v5'); e('v_bfe_u32 v6, v5, 1, 2'); e('v_and_b32 v7, 3, v1'); e('v_lshlrev_b32 v7, 3, v7')
    e('v_lshl_add_u32 v7, v5, 7, v7'); e('v_add_u32 v7, s29, v7')
    for nb in range(4): e(f'v_xor_b32 v5, {nb}, v6'); e(f'v_lshl_add_u32 v{12 + nb}, v5, 5, v7')
    e('v_lshrrev_b32 v5, 3, v0'); e('v_and_b32 v6, 7, v0')
    e('v_lshlrev_b32 v16, 10, v5'); e('v_lshl_add_u32 v16, v6, 4, v16')
    e('v_lshrrev_b32 v7, 1, v5'); e('v_lshlrev_b32 v21, 11, v7'); e('v_lshl_add_u32 v21, v6, 5, v21'); e('v_and_b32 v7, 1, v5'); e('v_lshl_add_u32 v21, v7, 4, v21')
    e('v_lshlrev_b32 v17, 5, v6')
    e('v_lshlrev_b32 v7, 1, v6'); e('v_xor_b32 v7, v7, v5'); e('v_lshlrev_b32 v19, 4, v7'); e('v_lshl_add_u32 v19, v6, 9, v19'); e('s_lshl_b32 s41, s3, 12'); e('v_add_u32 v19, s41, v19')
    e('v_xor_b32 v20, 0x80, v19'); e('v_add_u32 v22, 0x10000, v19'); e('v_add_u32 v23, 0x10000, v20')
    e('v_lshrrev_b32 v5, 1, v2'); e('v_lshlrev_b32 v5, 1, v5'); e('v_xor_b32 v5, v5, v1'); e('v_lshl_add_u32 v6, v2, 8, s29')
    for nb in range(4): e(f'v_xor_b32 v7, {4 * nb}, v5'); e(f'v_lshl_add_u32 v{152 + nb}, v7, 4, v6')
    e('s_lshl_b32 s38, s22, 16'); e('s_lshl_b32 s39, s3, 14'); e('s_add_u32 s38, s38, s39'); e('s_lshl_b32 s40, s23, 8'); e('s_add_u32 s39, s38, s40'); e(f's_add_u32 s39, s39, {WS_X1}')
    e('s_lshl_b32 s41, s23, 7'); e('s_add_u32 s38, s38, s41'); e(f's_add_u32 s40, s40, {WS_MODB + 6144}'); e('s_add_u32 s60, s38, 8192'); e('s_add_u32 s61, s39, 8192')
    ACC = 24; FR = 88; EX = 120; EG = 128
    def rdA(s):
        for nb in range(4):
            fr = FR + 16 * (s % 2) + 4 * nb
            st.lds(f'ds_read_b64_tr_b16 {vr(fr, 2)}, v{12 + nb} offset:{(s % NR) * 4096}', ('a', s, nb))
            st.lds(f'ds_read_b64_tr_b16 {vr(fr + 2, 2)}, v{12 + nb} offset:{(s % NR) * 4096 + 2048}', ('a', s, nb))
    stamp(st, cfg, 2); st.wait(vm=[('w', 0)]); stamp(st, cfg, 3); rdA(0)
    for s in range(NS):
        pend = load_ops(s + PRE) if s + PRE < NS else []
        if s + PRE == NS:
            for m in range(2): pend.append((f'buffer_load_dwordx4 {vr(EX + 4 * m, 4)}, v21, s[16:19], s{(39, 61)[m]} offen', 'ep'))
            for j in range(2): pend.append((f'buffer_load_dwordx4 {vr(EG + 4 * j, 4)}, v17, s[16:19], s40 offen offset:{16 * j}', 'ep'))
        st.wait(lds=[('a', s, 3)])
        if s in (4, 8, 12): stamp(st, cfg, 3 + s // 4)
        for nb in range(4):
            for qb in range(4):
                c = vr(ACC + (nb * 4 + qb) * 4, 4)
                e(f'{MF} {c}, {vr(FR + 16 * (s % 2) + 4 * nb, 4)}, {Bf(s, qb)}, {c if s else 0}')
                k = 0
                while pend and k < 2:
                    emit(pend[:1]); pend = pend[1:]; k += 1
            if nb == 2 and s + 1 < NS:
                emit(pend); pend = []
                st.wait(vm=[('w', s + 1)]); rdA(s + 1)
        emit(pend)
    stamp(st, cfg, 7)
    e('s_nop 7')
    for qb in range(4):
        for nb in range(4): st.lds(f'ds_write_b128 v{152 + nb}, {vr(ACC + (nb * 4 + qb) * 4, 4)} offset:{(qb * 4 + nb) * 1024}', 'rw')
    st.wait(lds='all'); e('s_barrier')
    for w in range(4):
        for i in range(2):
            for h in range(2): st.lds(f'ds_read_b128 {vr(ACC + 16 * w + 8 * i + 4 * h, 4)}, v{(19, 20, 22, 23)[2 * (w // 2) + i]} offset:{(w % 2) * 32768 + 256 * h}', ('rr', w))
    st.wait(vm=['ep']); stamp(st, cfg, 8)
    XU = 136
    for j in range(8):
        e(f'v_lshlrev_b32 v{XU + 2 * j}, 16, v{EX + j}'); e(f'v_and_b32 v{XU + 1 + 2 * j}, 0xffff0000, v{EX + j}')
    st.wait(lds=[('rr', 1)])
    for j in range(8): e(f'v_pk_add_f32 {vr(ACC + 2 * j, 2)}, {vr(ACC + 2 * j, 2)}, {vr(ACC + 16 + 2 * j, 2)}')
    st.wait(lds=[('rr', 3)])
    for j in range(8): e(f'v_pk_add_f32 {vr(ACC + 32 + 2 * j, 2)}, {vr(ACC + 32 + 2 * j, 2)}, {vr(ACC + 48 + 2 * j, 2)}')
    for j in range(8): e(f'v_pk_add_f32 {vr(ACC + 2 * j, 2)}, {vr(ACC + 2 * j, 2)}, {vr(ACC + 32 + 2 * j, 2)}')
    for j in range(8): e(f'v_pk_fma_f32 {vr(ACC + 2 * j, 2)}, {vr(ACC + 2 * j, 2)}, {vr(EG + 2 * (j % 4), 2)}, {vr(XU + 2 * j, 2)}')
    for j in range(8): e(f'v_cvt_pk_bf16_f32 v{EX + j}, v{ACC + 2 * j}, v{ACC + 2 * j + 1}')
    for m in range(2): st.vm(f'buffer_store_dwordx4 {vr(EX + 4 * m, 4)}, v16, s[32:35], s{(38, 60)[m]} offen', 'st')
    stamp_out(st, cfg, 4, 9, 6, 3)
    out = header(name) + st.resolve() + ['L_k4_end:', 's_endpgm']
    return out, kd(name, 384, 160), f'; @launch kernel={name} grid=(256,1,1) block=(256,1,1) lds=131072'
```

```python
class Stream:
    def __init__(self):
        self.items = []
    cond = False
    def e(self, text, kind=None, tag=None):
        self.items.append(dict(text=text, kind=kind, tag=tag, cond=self.cond))
    def lds(self, text, tag=None): self.e(text, 'lds', tag)
    def vm(self, text, tag=None): self.e(text, 'vm', tag)
    def wait(self, lds=None, vm=None):
        self.items.append(dict(text=None, kind='wait', lds=lds, vm=vm, cond=self.cond))
    def mark(self, name): self.items.append(dict(text=None, kind='mark', name=name))
    def extend(self, other): self.items.extend(other.items)
    def resolve(self):
        out = []
        ldsq = []; vmq = []
        lds_done = 0; vm_done = 0
        for it in self.items:
            k = it['kind']
            if k == 'mark': out.append(('mark', it['name'])); continue
            if k == 'wait':
                parts = []
                for (name, req, q, mx) in (('vmcnt', it['vm'], vmq, 63), ('lgkmcnt', it['lds'], ldsq, 15)):
                    if req is None: continue
                    if req == 'all': n = 0
                    else:
                        last = -1
                        for t in req:
                            idx = [i for i, x in enumerate(q) if x[0] == t]
                            assert idx, f'wait on never-issued tag {t}'
                            last = max(last, idx[-1])
                        n = sum(1 for x in q[last + 1:] if not x[1] or x[1] == it['cond'])
                    assert n <= mx or True
                    n = min(n, mx)
                    parts.append(f'{name}({n})')
                    if name == 'vmcnt': vm_done = max(vm_done, len(q) - n)
                    else: lds_done = max(lds_done, len(q) - n)
                out.append('s_waitcnt ' + ' '.join(parts))
                continue
            if k == 'lds':
                ldsq.append((it['tag'], it['cond']))
            if k == 'vm': vmq.append((it['tag'], it['cond']))
            out.append(it['text'])
        return out

def split_marks(res):
    segs = {}; order = []; cur = '_start'; segs[cur] = []; order.append(cur)
    for r in res:
        if isinstance(r, tuple): cur = r[1]; segs[cur] = []; order.append(cur)
        else: segs[cur].append(r)
    return segs, order

def vr(b, n=1): return f'v{b}' if n == 1 else f'v[{b}:{b+n-1}]'
def ar(b, n=1): return f'a{b}' if n == 1 else f'a[{b}:{b+n-1}]'
def sr(b, n=1): return f's{b}' if n == 1 else f's[{b}:{b+n-1}]'

def kd(name, vgpr, accum, sgpr=96, extra=''):
    return f'''.amdhsa_kernel {name}
  .amdhsa_next_free_vgpr {vgpr}
  .amdhsa_next_free_sgpr {sgpr}
  .amdhsa_accum_offset {accum}
  .amdhsa_group_segment_fixed_size 0
  .amdhsa_kernarg_size 104
  .amdhsa_user_sgpr_count 2
  .amdhsa_user_sgpr_kernarg_segment_ptr 1
  .amdhsa_system_sgpr_workgroup_id_x 1
{extra}.end_amdhsa_kernel
'''

def interleave(st, body, ops, start=0, every=8):
    ops = list(ops); n = 0; nxt = start
    for it in body.items:
        if ops and n >= nxt and not it.get('cond') and not (it['text'] or '').startswith(('s_cbranch', 'L_')):
            t, tag = ops.pop(0)
            if tag: st.vm(t, tag); nxt = n + every
            else:
                st.e(t)
                while ops and ops[0][1] is None: st.e(ops.pop(0)[0])
                nxt = n + 1
        st.items.append(it); n += 1
    return ops
```

```python
from asmlib import *
def is_m0(t): return t.split(',')[0].endswith('m0')
def emit_ops(st, ops):
    for t, tag in ops:
        if tag: st.vm(t, tag)
        else:
            st.e(t)
            if is_m0(t): st.e('s_nop 0')

class Unit:
    def __init__(self, tag, rd, reg=None, gate=None, vm=None, lead=None):
        self.tag = tag; self.rd = rd; self.reg = reg; self.gate = gate; self.vm = vm; self.lead = lead
class Group:
    def __init__(self, mfs, units=(), hold=(), mark=None, barrier=None, wait_next=0, on_start=None, vmwait=None):
        self.mfs = mfs; self.units = list(units); self.hold = list(hold); self.mark = mark; self.barrier = barrier
        self.wait_next = wait_next; self.on_start = on_start; self.vmwait = vmwait

def schedule(st, groups, ring, lead, trans=(), posts=(), side_gap=lambda i: 12, state=None, primed=0, check=None, side_per_gap=1, dense_from=1 << 30, max_wide=1, sort_reads=False):
    S = state if state is not None else {}
    S.setdefault('pend', []); S.setdefault('extra', []); S.setdefault('lastdma', -1000); S.setdefault('cnt', 0); S.setdefault('log', {})
    trans = list(trans); posts = list(posts)
    idx = 0; units = []
    for g in groups:
        g.start = idx
        for u in g.units: u.need = idx; u.last = None; units.append(u)
        g.n = len(g.mfs(None)); idx += g.n
    total = idx
    for g in groups:
        for u in g.units + g.hold: u.last = g.start + g.n - 1
    c = 0; prev = {}
    for u in units:
        if u.reg is None: u.reg = ring[c % len(ring)]; c += 1
        u.earliest = u.need - (u.lead if u.lead is not None else lead)
        if u.reg in prev: u.earliest = max(u.earliest, prev[u.reg].last)
        if u.gate is not None: u.earliest = max(u.earliest, u.gate.start)
        assert u.earliest < u.need - 3 or u.need == 0 or units.index(u) < primed, (u.tag, u.earliest, u.need)
        prev[u.reg] = u; u.issued = False; u.waited = False
    rq = []
    for u in units:
        ops = u.rd(u.reg)
        if u.vm is not None: rq.append((u, 'vmwait', False))
        for k, t in enumerate(ops): rq.append((u, t, k == len(ops) - 1))
    rq.sort(key=lambda x: (units.index(x[0]) >= primed, x[0].earliest) if sort_reads else 0)
    def pop_read():
        u, t, last = rq.pop(0)
        if t == 'vmwait': st.wait(vm=[u.vm])
        else: st.lds(t, u.tag)
        if last: u.issued = True
    while rq and units.index(rq[0][0]) < primed: pop_read()
    if 'after_prime' in S: S['after_prime'](st, trans, posts, S)
    ntr = S.get('ntr', 0)
    def wait_tags(gi):
        g = groups[gi]; need = [u for u in g.units if not u.waited]
        if not need: return []
        for k in range(1, g.wait_next + 1):
            if gi + k < len(groups) and not groups[gi + k].barrier: need += [u for u in groups[gi + k].units if not u.waited]
        return need
    w0 = wait_tags(0)
    if w0:
        assert all(u.issued for u in w0)
        st.wait(lds=[u.tag for u in w0], vm=groups[0].vmwait)
        for u in w0: u.waited = True
    m0 = False
    for gi, g in enumerate(groups):
        if g.mark: st.mark(g.mark); S['log'][g.mark] = (S['cnt'], S['lastdma'] - g.start, len(trans), len(posts), sum(u.issued for u in units))
        if g.barrier:
            for u in g.barrier.get('units', []): assert u.issued, ('not issued before barrier', u.tag)
            assert not S['pend'], ('side ops left at barrier', S['pend'])
            st.wait(lds='all', vm=g.barrier['vm']); st.e('s_barrier')
            for u in units:
                if u.issued: u.waited = True
            S['pend'] = list(g.barrier.get('then', [])); S['cnt'] = 0; m0 = False
        if g.on_start: g.on_start(S)
        assert all(u.waited for u in g.units), [u.tag for u in g.units if not u.waited]
        mfs = g.mfs([u.reg for u in g.units + g.hold])
        for k, (txt, info) in enumerate(mfs):
            i = g.start + k
            if check: check('mfma', info, i)
            st.e(txt); m0 = False
            lastg = k == g.n - 1
            nxt = groups[gi + 1] if lastg and gi + 1 < len(groups) else None
            wt = wait_tags(gi + 1) if nxt and not nxt.barrier else []
            vw = nxt.vmwait if nxt else None
            slots = 2 - (1 if wt or vw else 0) - (2 if nxt and nxt.barrier else 0)
            safe = ntr
            if (i % 2 == 0 or i >= dense_from) and trans and trans[0][0] <= i:
                _, t, key = trans.pop(0); st.e(t); ntr += 1
                if i < dense_from: slots = 0
                if check: check('trans', key, i)
            nside = 0; nwide = 0
            while True:
                ap = bool(posts) and posts[0][0] <= safe
                rd_ok = bool(rq) and rq[0][0].earliest <= i
                force_rd = bool(rq) and wt and any(u is rq[0][0] or not u.issued for u in wt) and rq[0][0].earliest <= i
                if rd_ok and 'b128' in rq[0][1] and nwide >= max_wide and not force_rd: rd_ok = False
                if rd_ok and (slots > 0 or force_rd):
                    if 'b128' in rq[0][1]: nwide += 1
                    pop_read(); m0 = False
                elif ap and slots > 0 and (posts[0][2] <= i or not S['pend']):
                    p = posts.pop(0); st.e(p[1]); m0 = False
                    if check: check('post', p[3], i)
                elif slots > 0 and S['pend'] and not m0 and (S['pend'][0][1] is None or (i - S['lastdma'] >= side_gap(i) and nside < side_per_gap)):
                    t, tag = S['pend'].pop(0); S['cnt'] += 1
                    if tag: st.vm(t, tag); S['lastdma'] = i; nside += 1
                    else: st.e(t); m0 = is_m0(t)
                elif ap and slots > 0:
                    p = posts.pop(0); st.e(p[1]); m0 = False
                    if check: check('post', p[3], i)
                elif slots > 0 and S['extra']:
                    x = S['extra'].pop(0)
                    if isinstance(x, tuple): st.vm(*x)
                    else: st.e(x)
                    m0 = False
                else: break
                slots -= 1
            if wt or vw:
                assert all(u.issued for u in wt), [u.tag for u in wt if not u.issued]
                st.wait(lds=[u.tag for u in wt] or None, vm=vw)
                for u in wt: u.waited = True
    assert not rq and not trans and not posts, (len(rq), len(trans), len(posts))
    if m0: st.e('s_nop 0')
    return S
```

```python
from asmlib import *
import struct
def f2h(x): return hex(struct.unpack('<I', struct.pack('<f', float(x)))[0])
MF = 'v_mfma_f32_16x16x32_bf16'
KA_X, KA_K, KA_V, KA_WQ, KA_WO, KA_BX, KA_W1, KA_W2, KA_C, KA_WM, KA_OUT, KA_DBG, KA_WS = [8 * i for i in range(13)]
WS_MODA = 0x0; WS_MODB = 0x1000
WS_CNT = 0x4000
WS_X1 = 1 << 20; WS_H2 = 4 << 20; WS_H1 = 8 << 20; WS_PART = 16 << 20; WS_STAMP = 64 << 20
QSCALE = 128 ** -0.5 * 1.4426950408889634
SC = ' sc0 sc1'

def srd(e, d, lo, hi, size, off=None):
    if off is None:
        e(f's_mov_b32 s{d}, s{lo}'); e(f's_mov_b32 s{d+1}, s{hi}')
    else:
        e(f's_add_u32 s{d}, s{lo}, {off}'); e(f's_addc_u32 s{d+1}, s{hi}, 0')
    e(f's_mov_b32 s{d+2}, {size}'); e(f's_mov_b32 s{d+3}, 0x20000')

def xlane_reduce(e, regs, tmps, op, which=('32', '16')):
    for sw in which:
        for r, t in zip(regs, tmps): e(f'v_mov_b32 v{t}, v{r}')
        if len(regs) < 3: e('s_nop 1')
        for r, t in zip(regs, tmps): e(f'v_permlane{sw}_swap_b32 v{t}, v{r}')
        if len(regs) < 2: e('s_nop 0')
        for r, t in zip(regs, tmps): e(f'{op} v{r}, v{r}, v{t}')

def header(name):
    return [f'.globl {name}', '.p2align 8', f'.type {name},@function', f'{name}:']

def stamp(st, cfg, idx, wait=True):
    if cfg.stamps:
        sv = getattr(cfg, 'sv', 253)
        if cfg.fused == 2: idx = {2: 4, 3: 5, 4: 6, 5: 7, 6: 8, 7: 9, 8: 10}.get(idx, idx)
        if cfg.fused == 1: idx = {9: 2, 10: 3, 2: 4, 3: 5, 4: 6, 5: 7, 6: 8, 7: 9, 8: 10}.get(idx, idx)
        st.e('s_memrealtime s[88:89]'); st.e('s_memtime s[90:91]'); st.e('s_waitcnt lgkmcnt(0)')
        st.e(f'v_writelane_b32 v{sv}, s88, {idx}'); st.e(f'v_writelane_b32 v{sv + 1}, s90, {idx}')
def stamp_out(st, cfg, knum, last, ws_lo, s_wave):
    if not cfg.stamps: return
    e = st.e; sv = getattr(cfg, 'sv', 253)
    st.wait(vm='all'); stamp(st, cfg, last)
    srd(e, 8, ws_lo, ws_lo + 1, 4 << 20, off=WS_STAMP + knum * 524288)
    e('s_lshl_b32 s61, s2, 2'); e(f's_add_u32 s61, s61, s{s_wave}'); e('s_lshl_b32 s61, s61, 9'); e('v_lshlrev_b32 v1, 2, v0')
    e(f'v_writelane_b32 v{sv}, {last + 1}, 63')
    e(f'buffer_store_dword v{sv}, v1, s[8:11], s61 offen'); e(f'buffer_store_dword v{sv + 1}, v1, s[8:11], s61 offen offset:256')

def code_prefetch(st, label_begin, label_end, s_idx, vtmp, vdst, stmp=62):
    e = st.e
    e(f's_getpc_b64 s[{stmp}:{stmp+1}]')
    e(f'L_pc_{label_begin}:')
    e(f's_lshl_b32 s{stmp-1}, s{s_idx}, 10')
    e(f's_min_u32 s{stmp-1}, s{stmp-1}, {label_end}-L_pc_{label_begin}-1024')
    e(f's_add_u32 s{stmp}, s{stmp}, s{stmp-1}'); e(f's_addc_u32 s{stmp+1}, s{stmp+1}, 0')
    e(f'v_lshlrev_b32 v{vtmp}, 4, v0'); e(f'v_mov_b32 v{vtmp+1}, s{stmp+1}')
    e(f'v_add_co_u32 v{vtmp}, vcc, s{stmp}, v{vtmp}'); e('s_nop 1'); e(f'v_addc_co_u32 v{vtmp+1}, vcc, 0, v{vtmp+1}, vcc')
    st.vm(f'global_load_dwordx4 {vdst}, v[{vtmp}:{vtmp+1}], off', 'cpf')
```

```python
from gen_common import *
def gen_k0(cfg, name='k0_mod_kernel'):
    st = Stream(); e = st.e
    NW = 96 + {0: 0, 1: 256, 2: 224, 3: 32}[cfg.k0pf]
    e(f's_cmp_ge_u32 s2, {NW}'); e('s_cbranch_scc1 L_k0_end')
    if cfg.k0pf: e('s_cmp_ge_u32 s2, 96'); e('s_cbranch_scc1 L_k0_pf')
    e(f's_load_dwordx4 s[4:7], s[0:1], {KA_C}'); e(f's_load_dwordx2 s[20:21], s[0:1], {KA_WS}')
    e('v_lshrrev_b32 v1, 2, v0')
    e('v_and_b32 v2, 3, v0')
    e('v_lshlrev_b32 v3, 1, v1')
    e('s_movk_i32 s22, 6144'); e('v_mul_lo_u32 v4, v1, s22'); e('v_lshl_add_u32 v4, v2, 4, v4')
    e('s_lshl_b32 s23, s2, 6')
    e('s_waitcnt lgkmcnt(0)')
    srd(e, 8, 4, 5, 1024); srd(e, 12, 6, 7, 512 * 6144); srd(e, 16, 20, 21, 0x8000)
    for i in range(8): st.vm(f'buffer_load_ushort v{8+i}, v3, s[8:11], 0 offen offset:{128*i}', 'c')
    for i in range(8):
        st.vm(f'buffer_load_dwordx4 v[{16+4*i}:{19+4*i}], v4, s[12:15], s23 offen', ('w', i))
        if i < 7: e(f's_add_u32 s23, s23, {64*6144}')
    if cfg.fused == 2:
        e('s_cmp_lg_u32 s2, 95'); e('s_cbranch_scc1 L_k0_noclr')
        e('v_and_b32 v5, 63, v0'); e('v_lshlrev_b32 v5, 7, v5'); e('v_mov_b32 v6, 0'); e(f's_mov_b32 s24, {WS_CNT}')
        e(f'buffer_store_dword v6, v5, s[16:19], s24 offen{SC}')
        e('L_k0_noclr:')
    e('s_lshr_b32 s24, s2, 4'); e('s_and_b32 s25, s2, 15')
    e('s_lshl_b32 s26, s25, 7')
    e('s_lshl_b32 s27, s25, 8')
    e(f's_mov_b32 s28, 0'); e(f's_mov_b32 s29, 1.0')
    bases = {2: WS_MODB, 3: WS_MODB + 4096, 4: WS_MODB + 2048, 5: WS_MODB + 6144}
    e(f's_add_u32 s30, s27, {WS_MODA + 128}')
    e('s_cmp_eq_u32 s24, 1'); e(f's_cselect_b32 s30, s27, s30')
    for sg, b in bases.items():
        e(f's_add_u32 s31, s26, {b}'); e(f's_cmp_eq_u32 s24, {sg}'); e('s_cselect_b32 s30, s31, s30')
    e('s_cmp_eq_u32 s24, 1'); e('s_cselect_b32 s28, 1.0, s28')
    e('s_cmp_eq_u32 s24, 4'); e('s_cselect_b32 s28, 1.0, s28')
    e('s_cmp_lt_u32 s24, 2'); e(f's_cselect_b32 s29, {f2h(QSCALE)}, s29')
    st.wait(vm=['c'])
    for i in range(8): e(f'v_lshlrev_b32 v{8+i}, 16, v{8+i}')
    for i in range(8): e(f'v_mul_f32 v{48+i}, {f2h(-1.4426950408889634)}, v{8+i}')
    for i in range(8): e(f'v_exp_f32 v{48+i}, v{48+i}')
    for i in range(8): e(f'v_add_f32 v{48+i}, 1.0, v{48+i}')
    for i in range(8): e(f'v_rcp_f32 v{48+i}, v{48+i}')
    for i in range(8): e(f'v_mul_f32 v{8+i}, v{8+i}, v{48+i}')
    for i in range(8): e(f'v_cvt_pk_bf16_f32 v{8+i}, v{8+i}, v{8+i}')
    for i in range(8): e(f'v_lshlrev_b32 v{8+i}, 16, v{8+i}')
    for j in range(8): e(f'v_mov_b32 v{56+j}, 0')
    for i in range(8):
        st.wait(vm=[('w', i)])
        for j in range(4):
            e(f'v_lshlrev_b32 v48, 16, v{16+4*i+j}'); e(f'v_and_b32 v49, 0xffff0000, v{16+4*i+j}')
            e(f'v_fmac_f32 v{56+2*j}, v48, v{8+i}'); e(f'v_fmac_f32 v{57+2*j}, v49, v{8+i}')
    e('s_nop 1')
    for ror in (4, 8):
        for j in range(8): e(f'v_add_f32_dpp v{56+j}, v{56+j}, v{56+j} row_ror:{ror} row_mask:0xf bank_mask:0xf')
    xlane_reduce(e, list(range(56, 64)), list(range(64, 72)), 'v_add_f32')
    e('v_lshrrev_b32 v5, 6, v0'); e('v_lshlrev_b32 v5, 7, v5'); e('v_lshl_add_u32 v5, v2, 5, v5')
    st.lds('ds_write_b128 v5, v[56:59]'); st.lds('ds_write_b128 v5, v[60:63] offset:16')
    st.wait(lds='all'); e('s_barrier')
    e('v_cmp_gt_u32 vcc, 32, v0'); e('s_and_saveexec_b64 s[32:33], vcc'); e('s_cbranch_execz L_k0_end')
    e('v_lshlrev_b32 v5, 2, v0')
    for wv in range(4): st.lds(f'ds_read_b32 v{8+wv}, v5 offset:{128*wv}')
    st.wait(lds='all')
    e('v_add_f32 v8, v8, v9'); e('v_add_f32 v10, v10, v11'); e('v_add_f32 v8, v8, v10')
    e('v_cvt_pk_bf16_f32 v8, v8, v8'); e('v_lshlrev_b32 v8, 16, v8')
    e('v_add_f32 v8, s28, v8')
    e('v_cvt_pk_bf16_f32 v8, v8, v8'); e('v_lshlrev_b32 v8, 16, v8')
    e('v_mul_f32 v8, s29, v8')
    st.vm(f'buffer_store_dword v8, v5, s[16:19], s30 offen{SC}')
    out = header(name) + st.resolve() + ['L_k0_end:', 's_endpgm']
    if cfg.k0pf == 3:
        st = Stream(); e = st.e
        e('L_k0_pf:')
        e(f's_load_dwordx16 s[4:19], s[0:1], {KA_X}'); e(f's_load_dwordx2 s[20:21], s[0:1], {KA_OUT}'); e(f's_load_dwordx2 s[22:23], s[0:1], {KA_WS}')
        e('s_sub_u32 s3, s2, 96'); e('s_lshr_b32 s3, s3, 3'); e('v_lshrrev_b32 v1, 6, v0'); e('s_nop 0'); e('v_readfirstlane_b32 s24, v1'); e('v_and_b32 v2, 63, v0'); e('v_lshlrev_b32 v2, 16, v2')
        e('s_lshl_b32 s3, s3, 2'); e('s_add_u32 s3, s3, s24')
        e('s_waitcnt lgkmcnt(0)')
        tab = [(6, 4 << 20, 0), (8, 4 << 20, 0), (10, 4 << 20, 0), (12, 4 << 20, 0), (4, 2 << 20, 0), (16, 512 * 3584, 0), (18, 512 * 3584, 0), (20, 2 << 20, 0)] + [(22, 32 << 20, (4 << 20) * i) for i in range(8)]
        e('s_mov_b32 s28, s6'); e('s_mov_b32 s29, s7'); e(f's_mov_b32 s30, {4 << 20}'); e('s_mov_b32 s31, 0x20000'); e('s_mov_b32 s25, 0')
        for i, (p, sz, off) in enumerate(tab):
            if i == 0: continue
            e(f's_cmp_eq_u32 s3, {i}'); e(f's_cselect_b32 s28, s{p}, s28'); e(f's_cselect_b32 s29, s{p + 1}, s29'); e(f's_cselect_b32 s30, {sz}, s30'); e(f's_cselect_b32 s25, {off}, s25')
        e('buffer_load_dword v4, v2, s[28:31], s25 offen')
        e('s_waitcnt vmcnt(0)' if cfg.k0wait else 's_nop 0'); e('s_endpgm')
        out += st.resolve()
    if cfg.k0pf == 2:
        st = Stream(); e = st.e
        e('L_k0_pf:')
        e(f's_load_dwordx8 s[4:11], s[0:1], {KA_X}')
        e('s_sub_u32 s3, s2, 96'); e('v_lshlrev_b32 v1, 4, v0')
        e('s_waitcnt lgkmcnt(0)')
        e('s_and_b32 s20, s3, 15'); e('s_lshr_b32 s21, s20, 1'); e('s_lshl_b32 s21, s21, 19'); e('s_and_b32 s20, s20, 1'); e('s_lshl_b32 s20, s20, 15'); e('s_add_u32 s20, s20, s21')
        e('s_mov_b32 s12, s8'); e('s_mov_b32 s13, s9'); e('s_mov_b32 s14, 0x400000')
        e('s_cmp_lt_u32 s3, 208'); e('s_cselect_b32 s12, s6, s12'); e('s_cselect_b32 s13, s7, s13')
        e('s_sub_u32 s21, s3, 64'); e('s_lshl_b32 s21, s21, 15')
        e('s_cmp_lt_u32 s3, 192'); e('s_cselect_b32 s12, s10, s12'); e('s_cselect_b32 s13, s11, s13'); e('s_cselect_b32 s20, s21, s20')
        e('s_lshl_b32 s21, s3, 15')
        e('s_cmp_lt_u32 s3, 64'); e('s_cselect_b32 s12, s4, s12'); e('s_cselect_b32 s13, s5, s13'); e('s_cselect_b32 s20, s21, s20'); e('s_cselect_b32 s14, 0x200000, s14')
        e('s_mov_b32 s15, 0x20000')
        for i in range(8):
            e(f'buffer_load_dwordx4 v[{4 + 4 * i}:{7 + 4 * i}], v1, s[12:15], s20 offen'); e('s_add_u32 s20, s20, 4096')
        e('s_waitcnt vmcnt(0)' if cfg.k0wait else 's_nop 0'); e('s_endpgm')
        out += st.resolve()
    if cfg.k0pf == 1:
        st = Stream(); e = st.e
        e('L_k0_pf:')
        e(f's_load_dwordx2 s[4:5], s[0:1], {KA_X}'); e(f's_load_dwordx2 s[6:7], s[0:1], {KA_WQ}')
        e('s_sub_u32 s3, s2, 96'); e('s_and_b32 s20, s3, 7'); e('s_lshr_b32 s21, s3, 3')
        e('v_lshlrev_b32 v1, 4, v0'); e('s_lshl_b32 s22, s21, 16')
        e('v_lshrrev_b32 v2, 6, v0'); e('v_lshlrev_b32 v2, 13, v2'); e('v_and_b32 v3, 63, v0'); e('v_lshl_add_u32 v2, v3, 4, v2')
        e('s_lshl_b32 s23, s21, 17'); e('s_lshl_b32 s24, s20, 10'); e('s_add_u32 s23, s23, s24')
        e('s_waitcnt lgkmcnt(0)')
        srd(e, 8, 4, 5, 2048 * 1024); srd(e, 12, 6, 7, 512 * 8192)
        for i in range(16):
            e(f'buffer_load_dwordx4 v[{4 + 4 * i}:{7 + 4 * i}], v1, s[8:11], s22 offen'); e('s_add_u32 s22, s22, 4096')
        for i in range(4):
            e(f'buffer_load_dwordx4 v[{4 + 4 * i}:{7 + 4 * i}], v2, s[12:15], s23 offen'); e('s_add_u32 s23, s23, 32768')
        e('s_waitcnt vmcnt(0)' if cfg.k0wait else 's_nop 0'); e('s_endpgm')
        out += st.resolve()
    return out, kd(name, 72, 72), f'; @launch kernel={name} grid=({NW},1,1) block=(256,1,1) lds=512'
```

```python
from gen_common import *
from engine import *

S_X, S_WQ, S_K, S_V, S_WO, S_WS, S_PART = 8, 12, 16, 20, 24, 28, 32
S_G, S_RB, S_W, S_WB = 36, 37, 38, 39
S_OFFK, S_OFFV, S_M0V, S_CNT, S_OFFW, S_FLAG = 40, 41, 43, 44, 45, 46
S_M0K = S_WB; S_PF = 47; S_ROT = 42
S_T = 48
V_R, V_G, V_PI = 1, 2, 3
V_Q = 16; V_S = [80, 112]; V_P = 144; V_NEGM = 208
V_KA = 224; V_VA = 228; V_DK = 236; V_DV = 240; V_DWO = 242; V_TO = [208, 212]; V_BO = 250
V_ACC = 80
V_DWQ = 16; V_TA = [24, 28]; V_BA = 40; V_MOD = 48; V_HO = 208
A_O = 0; A_FR = 128; A_BF = 128; A_L = 192; A_ONE = 208; A_AF = 212; A_DUMMY = 244
R0, R1, R2, R3, R4 = 0, 32768, 65536, 98304, 131072
LDS_V = R2
NT = 32
RING = [A_FR + 4 * i for i in range(16)]

def O(db, qb): return ar(A_O + (db * 4 + qb) * 4, 4)
def Q(qb, ks): return vr(V_Q + (qb * 4 + ks) * 4, 4)
def Lr(qb): return ar(A_L + qb * 4, 4)
def Sreg(buf, kb, qb): return V_S[buf] + (kb * 4 + qb) * 4
def Preg(h, qb): return V_P + (h % 4) * 16 + qb * 4
def ACC(nb, qb): return V_ACC + (nb * 4 + qb) * 4

class Cfg:
    lead = 20; spread = 0; xlead = 20; S0 = 62; XG = 6; nodma = 0; strip = ''; blead = 30; mw = 2; B = 102; dma_gap = 12; glead = 14; ggap = 1; bspread = 0; gspread = 0; stamps = 0; thr = 2.0 ** 64; prefetch = 0; cpf = 0; G = 4; pfq = 0; krot = 1; npre = 0
    h2sc = 0; k2nt = 1; k0pf = 0; lnev = 16; rot = 0; k3pre = 2; k4pre = 3; pfw = 1; chain = 1; fused = 0; k0wait = 1; zearly = 1; w1early = 16; f1gap = 3; nprod = 96; wqlate = 0; f1pre = 12; f2pre = 2; rnt = 1; rotmask = 7; rotsh = 1; ost = 13

def groups_A(h, cfg, raw=False, gate=None):
    tile, hf = h // 2, h % 2
    gs = []
    for kb in range(2):
        off = (tile % 4) * 16384 + (32 * hf + 16 * kb) * 256
        us = [Unit(('K', h, kb, ks), (lambda r, ks=ks, off=off: [f'ds_read_b128 {ar(r, 4)}, {vr(V_KA + ks)} offset:{off}']), gate=gate, lead=cfg.lead + cfg.spread * (3 - ks)) for ks in range(4)]
        def mfs(regs, kb=kb):
            regs = regs or [0] * 4
            order = [(qb, ks if qb % 2 == 0 else 3 - ks, ks == 0, ks == 3) for qb in range(4) for ks in range(4)] if cfg.chain else \
                    [(qb, ks, ks == 0, ks == 3) for ks in range(4) for qb in range(4)]
            r = []
            for qb, ks, first, last in order:
                s = vr(Sreg(h % 2, kb, qb), 4)
                c = ('0' if raw else vr(V_NEGM + 4 * qb, 4)) if first else s
                r.append((f'{MF} {s}, {ar(regs[ks], 4)}, {Q(qb, ks)}, {c}', ('A', h, kb, qb, first, last)))
            return r
        gs.append(Group(mfs, us))
    return gs

def unit_V(h, db):
    off = ((h // 2) % 4) * 16384 + (32 * (h % 2)) * 256
    return Unit(('V', h, db), lambda r: [f'ds_read_b64_tr_b16 {ar(r, 2)}, {vr(V_VA + db)} offset:{off}',
                                          f'ds_read_b64_tr_b16 {ar(r + 2, 2)}, {vr(V_VA + db)} offset:{off + 4096}'])
def groups_C(hs, cfg):
    gs = []
    def order(qb):
        o = list(range(len(hs)))
        return o if qb % 2 == 0 else o[::-1]
    seq = [(qb, k) for qb in range(4) for k in order(qb)] if cfg.chain else [(qb, k) for k in range(len(hs)) for qb in range(4)]
    for db in range(8):
        def mfs(regs, db=db):
            regs = regs or [0] * 2
            return [(f'{MF} {O(db, qb)}, {ar(regs[k], 4)}, {vr(Preg(hs[k], qb), 4)}, {O(db, qb)}', ('C', hs[k], qb)) for qb, k in seq]
        us = [unit_V(h, db) for h in hs]
        for k, u in enumerate(us): u.lead = cfg.lead + cfg.spread * (len(hs) - 1 - k)
        gs.append(Group(mfs, us, wait_next=1 if db % 2 == 0 else 0))
    gs.append(Group(lambda regs: [(f'{MF} {Lr(qb)}, {ar(A_ONE, 4)}, {vr(Preg(hs[k], qb), 4)}, {Lr(qb)}', ('C', hs[k], qb)) for qb, k in seq]))
    return gs

def softmax_ops(h, start, base):
    exps = []; posts = []
    for kb in range(2):
        for qb in range(4):
            s = Sreg(h % 2, kb, qb)
            for i in range(4):
                exps.append((start + 2 * len(exps), f'v_exp_f32 {vr(s + i)}, {vr(s + i)}', (h, kb, qb)))
                if i & 1:
                    posts.append((base + len(exps), f'v_cvt_pk_bf16_f32 {vr(Preg(h, qb) + 2 * kb + i // 2)}, {vr(s + i - 1)}, {vr(s + i)}', start + 2 * len(exps) + 1, (h, kb, qb)))
    return exps, posts

def kv_dma(which, tile):
    slot = tile % 4
    m0, dv, srdr, off, nv = (S_M0K, V_DK, S_K, S_OFFK, 4) if which == 'K' else (S_M0V, V_DV, S_V, S_OFFV, 2)
    ops = [(f's_add_u32 m0, {sr(m0)}, {slot * 16384}', None)]
    for j in range(4):
        ops.append((f'buffer_load_dwordx4 {vr(dv + j % nv)}, {sr(srdr, 4)}, {sr(off)} offen offset:{j * 1024} lds', ('d' + which, tile)))
    ops.append((f's_add_u32 {sr(off)}, {sr(off)}, 16384', None))
    return ops

def w_dma(name, s, region, dv, srdr, soff, post):
    ops = []
    for j in range(8):
        if j % 4 == 0: ops.append((f's_add_u32 m0, {sr(S_WB)}, {region + (j // 4) * 16384}', None))
        ops.append((f'buffer_load_dwordx4 {vr(dv + j)}, {sr(srdr, 4)}, {sr(soff)} offen offset:{(j % 4) * 1024} lds', (name, s)))
    return ops + [(p, None) for p in post]

def attn_main(st, cfg, tail_extra):
    def window(t):
        ops = []
        if t + 3 < NT: ops += kv_dma('V', t + 3)
        if t + 4 < NT: ops += kv_dma('K', t + 4)
        return ops + tail_extra(t)
    def build():
        groups = []; gate = None; idx = 0; exps = []; posts = []
        e0, p0 = softmax_ops(0, -1000, 0); e1, p1 = softmax_ops(1, cfg.S0 + 66 - 136, 32)
        exps += e0 + e1; posts += p0 + p1
        for t in range(NT):
            if t < NT - 1:
                gs = groups_A(2 * t + 2, cfg, gate=gate) + groups_A(2 * t + 3, cfg, gate=gate)
                cs = groups_C([2 * t, 2 * t + 1], cfg)
                x = cs[cfg.XG]
                x.barrier = dict(vm=[('dV', t + 1)] + ([('dK', t + 2)] if t + 2 < NT else []), units=[u for g in cs for u in g.units], then=window(t + 1))
                for g in cs[cfg.XG:8]:
                    for u in g.units: u.lead = max(u.lead, cfg.xlead + 8 * (cs.index(g) - cfg.XG) + (u.lead - cfg.lead) // 2)
                gs += cs; ngate = x
                for k in range(2):
                    ee, pp = softmax_ops(2 * t + 2 + k, idx + cfg.S0 + 66 * k, 32 * (2 * t + 2 + k)); exps += ee; posts += pp
            else:
                gs = groups_C([2 * t], cfg) + groups_C([2 * t + 1], cfg)
                for g in gs:
                    for u in g.units: u.gate = gate; u.lead = min(cfg.lead, 14)
            gs[0].mark = f'it{t}'
            groups += gs; gate = ngate; idx += 136
        return groups, exps, posts
    def check_fn():
        spend = {}; sready = {}; pdone = {};
        def check(kind, key, i):
            if kind == 'mfma' and key[0] == 'A':
                _, h, kb, qb, first, last = key
                if first: assert spend.get((h % 2, kb, qb), 0) == 0, ('S overwritten early', key, i)
                if last: spend[(h % 2, kb, qb)] = 2; sready[(h, kb, qb)] = i
            elif kind == 'mfma' and key[0] == 'C':
                if key[1] >= 2: assert pdone.get((key[1], key[2]), (0, 0))[0] == 4 and pdone[(key[1], key[2])][1] < i - 1, ('P not ready', key, i)
                check.lastC[(key[1] % 4, key[2])] = (key[1], i)
            elif kind == 'trans':
                if key[0] >= 2: assert i >= sready[key] + 8, ('S not ready', key, i)
            elif kind == 'post':
                h, kb, qb = key
                if h >= 2: spend[(h % 2, kb, qb)] -= 1
                c = pdone.get((h, qb), (0, 0)); pdone[(h, qb)] = (c[0] + 1, i)
                if h >= 4: assert check.cnt_c(h - 4, qb), ('P overwritten early', key, i)
        check.lastC = {}
        seen = {}
        def wrap(kind, key, i):
            if kind == 'mfma' and key[0] == 'C': seen[(key[1], key[2])] = seen.get((key[1], key[2]), 0) + 1
            check(kind, key, i)
        check.cnt_c = lambda h, qb: seen.get((h, qb), 0) == 9
        return wrap
    def run(st, pre):
        groups, exps, posts = build()
        npre, lastoff, ntr0, npo0, primed = pre
        def after_prime(st, trans, posts, S):
            emit_ops(st, S['pend'][:npre]); S['pend'] = S['pend'][npre:]
            k = 0
            for n in range(ntr0):
                st.e(trans.pop(0)[1])
                while k < npo0 and posts[0][0] <= n: st.e(posts.pop(0)[1]); k += 1
            st.e('s_nop 0')
            while k < npo0: st.e(posts.pop(0)[1]); k += 1
            S['ntr'] = ntr0
        S = dict(pend=window(0), lastdma=lastoff, after_prime=after_prime)
        nl = 136 * (NT - 1)
        exps = [(min(a, nl), b, c) for a, b, c in exps]
        posts = [(a, b, min(c, nl), d) for a, b, c, d in posts]
        S = schedule(st, groups, RING, cfg.lead, exps, posts, side_gap=lambda i: cfg.dma_gap if i < 136 * 28 else 6, state=S, primed=primed, check=check_fn(), dense_from=nl, max_wide=cfg.mw)
        st.mark('end')
        return S['log'], len(exps), len(posts)
    log, ne, npo = run(Stream(), (3, -1000, 32 + (136 - cfg.S0 - 66 + 1) // 2, 16 + (136 - cfg.S0 - 66 + 1) // 4, 4))
    def norm(t):
        c, ld, nt, npp, rq = log[f'it{t}']
        return (c, ld, ne - nt - 64 * t, npo - npp - 32 * t, rq - 32 * t)
    n = norm(3)
    assert all(norm(t) == n for t in range(3, NT - 4)), [norm(t) for t in range(2, 8)]
    run(st, n)

def gemm(st, cfg, name, stages, ta, joff, vba, baddr, refill, extra, first_ops=(), late=None):
    groups = []; bcur = None; nb_sets = 0; seen = set()
    for s, (kp, half) in enumerate(stages):
        vb, ib = ta(s)
        newb = bcur is None or bcur[0] != kp or stages[s - 1][1] == half
        if newb:
            base = A_BF + 32 * (nb_sets % 2); nb_sets += 1
            bu = [Unit((name + 'B', s, k, qb), (lambda r, k=k, qb=qb, kp=kp: [f'ds_read_b128 {ar(r, 4)}, {vr(vba)} offset:{baddr(2 * kp + k, qb)}']), reg=base + 16 * k + 4 * qb, lead=cfg.blead - cfg.bspread * (2 * qb + k))
                  for qb in range(4) for k in range(2)]
            bcur = (kp, bu)
        bu = bcur[1]
        for n4 in range(4):
            nb = 4 * half + n4
            au = [Unit((name + 'A', s, n4, k), (lambda r, k=k, n4=n4, vb=vb, ib=ib: [f'ds_read_b64_tr_b16 {ar(r, 2)}, {vr(vb + n4)} offset:{ib + 16384 * k}',
                                                                                 f'ds_read_b64_tr_b16 {ar(r + 2, 2)}, {vr(vb + n4)} offset:{ib + 16384 * k + joff}']),
                       vm=(name, s) if n4 == 0 and k == 0 and not (cfg.nodma and s > 2) else None, lead=cfg.glead + cfg.gspread * (1 - k)) for k in range(2)]
            first = nb not in seen; seen.add(nb)
            def mfs(regs, nb=nb, first=first, au=au, bu=bu):
                r = []
                seq = [(qb, k ^ (qb & 1), k == 0) for qb in range(4) for k in range(2)] if cfg.chain else [(qb, k, k == 0) for k in range(2) for qb in range(4)]
                for qb, k, f in seq:
                    c = vr(ACC(nb, qb), 4)
                    r.append((f'{MF} {c}, {ar(au[k].reg or 0, 4)}, {ar(bu[2 * qb + k].reg, 4)}, {0 if first and f else c}', None))
                return r
            if newb and n4 == 0: g = Group(mfs, bu + au)
            else: g = Group(mfs, au, hold=bu)
            if n4 == 3:
                def rel(S, s=s):
                    S['pend'] += refill(s) if not (cfg.nodma and s < 13) else []
                    if late and s == late[0]: S['extra'] += late[1]
                g.on_start = rel
            groups.append(g)
    S = dict(pend=list(first_ops), extra=list(extra))
    S = schedule(st, groups, [A_AF + 4 * i for i in range(8)], cfg.glead, side_gap=lambda i: cfg.ggap, state=S, primed=12, sort_reads=True, max_wide=cfg.mw)
    emit_ops(st, S['pend'])
    for x in S['extra']:
        if isinstance(x, tuple): st.vm(*x)
        else: st.e(x)

def gen_k1(cfg, name='k1_attn_kernel'):
    F = cfg.fused == 1; FT = cfg.fused > 0
    if FT: import tail
    if F: name = 'adaLN_cond__gqa_block_cached__dense_activation_relu__prompt_kernel'
    st = Stream(); e = st.e
    cfg.sv = 253
    e('s_cmp_ge_u32 s2, 256'); e('s_cbranch_scc1 L_k1_end')
    e(f's_load_dwordx8 s[48:55], s[0:1], {KA_X}')
    e(f's_load_dwordx2 s[56:57], s[0:1], {KA_WO}'); e(f's_load_dwordx2 s[58:59], s[0:1], {KA_WS}'); e(f's_load_dwordx4 s[4:7], s[0:1], {KA_W1}')
    if FT: e(f's_load_dwordx8 s[64:71], s[0:1], {KA_C}'); e('v_mov_b32 v15, v0'); e('s_and_b32 s84, s2, 7'); e('s_lshr_b32 s85, s2, 3')
    stamp(st, cfg, 0)
    lg = {1: 0, 2: 1, 4: 2, 8: 3}[cfg.G]
    e('s_and_b32 s60, s2, 7'); e('s_lshr_b32 s61, s2, 3')
    e(f's_lshl_b32 s{S_G}, s60, {lg}'); e(f's_and_b32 s{S_G}, s{S_G}, 7'); e(f's_and_b32 s62, s61, {cfg.G - 1}'); e(f's_add_u32 s{S_G}, s{S_G}, s62')
    e(f's_lshr_b32 s60, s60, {3 - lg}'); e(f's_lshl_b32 s60, s60, {5 - lg}'); e(f's_lshr_b32 s{S_PF}, s61, {lg}'); e(f's_add_u32 s{S_RB}, s60, s{S_PF}')
    e('v_lshrrev_b32 v4, 6, v0'); e('v_and_b32 v0, 63, v0'); e(f'v_readfirstlane_b32 s{S_W}, v4')
    e(f'v_and_b32 v{V_R}, 15, v0'); e(f'v_lshrrev_b32 v{V_G}, 4, v0')
    e(f'v_and_b32 v4, 1, v{V_G}'); e('v_lshlrev_b32 v4, 1, v4'); e(f'v_lshrrev_b32 v5, 1, v{V_G}'); e(f'v_or_b32 v{V_PI}, v4, v5')
    e(f's_lshl_b32 s{S_WB}, s{S_W}, 12')
    if cfg.cpf:
        e('s_lshr_b32 s60, s2, 3'); e('s_lshl_b32 s60, s60, 2'); e(f's_add_u32 s60, s60, s{S_W}')
        code_prefetch(st, 'k1', 'L_k1_end', 60, 4, ar(A_DUMMY, 4))
    if not cfg.krot: e(f's_mov_b32 s{S_ROT}, 0')
    else: e(f's_and_b32 s{S_ROT}, s{S_PF}, {cfg.rotmask}'); e(f's_lshl_b32 s{S_ROT}, s{S_ROT}, {cfg.rotsh}')
    e('v_lshlrev_b32 v7, 4, v0'); e(f's_lshl_b32 s62, s{S_ROT}, 2')
    e(f's_lshl_b32 s60, s{S_RB}, 16'); e(f's_lshl_b32 s61, s{S_W}, 14'); e('s_add_u32 s60, s60, s61'); e(f's_add_u32 s61, s61, {R3}')
    for i in range(16):
        e(f'v_xad_u32 v{V_ACC + i}, v0, {i}, s62'); e(f'v_and_b32 v{V_ACC + i}, 63, v{V_ACC + i}'); e(f'v_lshlrev_b32 v{V_ACC + i}, 4, v{V_ACC + i}')
    e('s_waitcnt lgkmcnt(0)')
    QREG = lambda s: [R0, R2, R1][(s - 13) % 3]
    MODL = QREG(2) + 16384
    if F:
        srd(e, S_WS, 58, 59, WS_PART); srd(e, 80, 70, 71, 256)
        tail.mod_loads(st, cfg); tail.clear_counters(st, cfg)
    srd(e, S_X, 48, 49, 2048 * 1024)
    def x_dma(st):
        st.e('s_mov_b32 s76, s77')
        for i in range(16):
            if i % 4 == 0:
                st.e(f's_add_u32 m0, s78, {1024 * i}')
                st.e('s_add_u32 s76, s76, 4096' if i else 's_nop 0')
            st.vm(f'buffer_load_dwordx4 v{V_ACC + i}, {sr(S_X, 4)}, s76 offen offset:{1024 * (i % 4)} lds', 'x')
    e('s_mov_b32 s77, s60'); e('s_mov_b32 s78, s61')
    if F:
        e(f's_cmp_lt_u32 s2, {cfg.nprod}'); e('s_cbranch_scc1 L_f_xlate'); st.cond = 'xearly'
    x_dma(st)
    if F: st.cond = False; e('L_f_xlate:')
    if not F:
        srd(e, S_WS, 58, 59, WS_PART if FT else 0x1000)
        e(f's_lshl_b32 s62, s{S_ROT}, 8'); e('v_add_u32 v6, s62, v7')
        for j in range(4):
            e(f's_add_u32 m0, s{S_WB}, {MODL + 1024 * j}'); e(f'v_add_u32 v5, {1024 * j}, v6'); e('v_and_b32 v5, 0xfff, v5')
            st.vm(f'buffer_load_dwordx4 v5, {sr(S_WS, 4)}, 0 offen lds', 'mod')
    e(f's_lshl_b32 s62, s{S_G}, 10'); e(f's_sub_u32 s63, {512 * 8192}, s62')
    srd(e, S_WQ, 54, 55, 's63', off='s62')
    e(f's_lshl_b32 s61, s{S_W}, 8'); e('v_lshrrev_b32 v8, 3, v0'); e(f'v_lshl_add_u32 v8, v8, 13, s61')
    e('v_and_b32 v5, 7, v0'); e(f'v_and_b32 v4, 1, v{V_G}'); e('v_lshlrev_b32 v4, 1, v4'); e('v_xor_b32 v4, v4, v5')
    e('v_lshl_add_u32 v9, v4, 4, v8'); e('v_xor_b32 v4, 4, v4'); e('v_lshl_add_u32 v10, v4, 4, v8')
    for j in range(8): e(f'v_add_u32 {vr(V_DWQ + j)}, {65536 * j - 1024 * (j % 4)}, v{9 + (j & 1)}')
    e(f's_lshl_b32 s{S_OFFW}, s{S_ROT}, 18')
    def wq_dma(s):
        if s % 2 == 0: return w_dma('wq', s, QREG(s), V_DWQ, S_WQ, S_OFFW, [f's_add_u32 s3, s{S_OFFW}, 128'])
        return w_dma('wq', s, QREG(s), V_DWQ, S_WQ, 3, [f's_add_u32 s{S_OFFW}, s{S_OFFW}, 524288', f's_and_b32 s{S_OFFW}, s{S_OFFW}, 0x3fffff'])
    def wo_dma(s):
        return w_dma('wo', s, OREG(s), V_DWO, S_WO, S_OFFW, [f's_add_u32 s{S_OFFW}, s{S_OFFW}, {65536 + (128 if s == 7 else 0)}', f's_and_b32 s{S_OFFW}, s{S_OFFW}, 0x7ffff'])
    OREG = lambda s: [R4, R0, R3][s % 3]
    wq_early = wq_dma(0) + wq_dma(1)
    wq2 = wq_dma(2)
    wq_early += wq2[:5]; wq_late = wq2[5:]
    emit_ops(st, wq_early[:cfg.npre]); wq_early = wq_early[cfg.npre:]
    ndum = [0]
    def pf(voff, srdr, soff, imm=0):
        r = A_DUMMY + 4 * (ndum[0] % 3); ndum[0] += 1
        return (f'buffer_load_dwordx4 {ar(r, 4)}, {voff}, {sr(srdr, 4)}, {soff} offen offset:{imm}', 'pf')
    pfo = []
    if cfg.pfq:
        pfo += [(f's_lshl_b32 s5, s{S_PF}, {17 + lg}', None), (f's_lshl_b32 s6, s{S_W}, {15 + lg}', None), ('s_add_u32 s5, s5, s6', None)]
        for i in range(4 * cfg.G): pfo += [pf('v7', S_WQ, 's5'), ('s_add_u32 s5, s5, 8192', None)]
    if cfg.prefetch:
        pfo += [(f's_lshl_b32 s5, s{S_PF}, {11 + lg}', None), (f's_lshl_b32 s6, s{S_W}, {9 + lg}', None), ('s_add_u32 s5, s5, s6', None)]
        for i in range(max(1, cfg.G // 2)): pfo += [pf('v7', S_K, 's5', 1024 * i), pf('v7', S_V, 's5', 1024 * i)]
    pfwo = [(f's_lshl_b32 s5, s{S_RB}, 14', None), (f's_add_u32 s5, s5, s{S_WB}', None)] + [pf('v252', S_WO, 's5', 1024 * i) for i in range(4)]
    e(f's_lshl_b32 s62, s{S_G}, 19')
    srd(e, S_K, 50, 51, 524288, off='s62'); srd(e, S_V, 52, 53, 524288, off='s62')
    srd(e, S_WO, 56, 57, 524288, off='s62')
    e(f's_lshl_b32 s62, s{S_G}, 21'); e(f's_add_u32 s62, s62, {WS_PART}')
    srd(e, S_PART, 58, 59, 1 << 21, off='s62')
    e('s_and_b32 s61, s2, 1'); e('s_mul_i32 s62, s61, 1792'); e(f's_sub_u32 s63, {512 * 3584}, s62'); srd(e, 92, 4, 5, 's63', off='s62')
    e('s_lshl_b32 s62, s61, 9'); e(f's_sub_u32 s63, {512 * 3584}, s62'); srd(e, 96, 6, 7, 's63', off='s62')
    e('s_lshr_b32 s4, s2, 3'); e('s_lshl_b32 s4, s4, 2'); e(f's_add_u32 s4, s4, s{S_W}'); e(f's_mul_i32 s7, s4, {14 * 1024}'); e(f's_mul_i32 s4, s4, {4 * 3584}')
    e('v_lshrrev_b32 v251, 5, v0'); e('v_lshlrev_b32 v251, 10, v251'); e('v_and_b32 v4, 31, v0'); e('v_lshl_add_u32 v251, v4, 4, v251')
    e('v_lshlrev_b32 v252, 4, v0')
    e(f's_mov_b32 s{S_OFFK}, 0'); e(f's_mov_b32 s{S_OFFV}, 0'); e(f's_add_u32 s{S_M0V}, s{S_WB}, {LDS_V}'); e(f's_mov_b32 s{S_FLAG}, 0')
    for ks in range(4):
        e(f'v_add_u32 v5, {4 * ks}, v{V_PI}'); e(f'v_xor_b32 v5, v5, v{V_R}'); e('v_lshlrev_b32 v5, 4, v5'); e(f'v_lshl_add_u32 {vr(V_KA + ks)}, v{V_R}, 8, v5')
    e(f'v_lshrrev_b32 v11, 2, v{V_R}'); e(f'v_and_b32 v12, 3, v{V_R}'); e('v_lshlrev_b32 v12, 3, v12')
    e(f'v_lshl_add_u32 v5, v{V_G}, 2, v11'); e('v_and_b32 v13, 7, v5'); e('v_lshl_add_u32 v14, v5, 8, v12'); e(f'v_add_u32 v14, {LDS_V}, v14')
    for db in range(8): e(f'v_xor_b32 v4, {db}, v13'); e(f'v_lshl_add_u32 {vr(V_VA + db)}, v4, 5, v14')
    e(f'v_lshl_add_u32 v9, v{V_G}, 8, s{S_WB}')
    for j in range(4): e(f'v_add_u32 v5, {4 * j}, v{V_G}'); e(f'v_xor_b32 v5, v5, v{V_R}'); e(f'v_lshl_add_u32 {vr(V_DK + j)}, v5, 4, v9')
    for j in range(2): e(f'v_add_u32 v5, {4 * j}, v{V_G}'); e('v_lshlrev_b32 v5, 1, v5'); e(f'v_xor_b32 v5, v5, v{V_R}'); e(f'v_lshl_add_u32 {vr(V_DV + j)}, v5, 4, v9')
    e(f's_lshl_b32 s61, s{S_W}, 8'); e('v_lshrrev_b32 v8, 3, v0'); e(f'v_lshl_add_u32 v8, v8, 10, s61')
    e('v_and_b32 v5, 7, v0'); e(f'v_lshlrev_b32 v4, 1, v{V_G}'); e('v_xor_b32 v4, v4, v5'); e(f'v_lshl_add_u32 {vr(V_DWO)}, v4, 4, v8')
    for j in range(1, 8): e(f'v_add_u32 {vr(V_DWO + j)}, {8192 * j - 1024 * (j % 4)}, {vr(V_DWO)}')
    e(f'v_and_b32 v4, 1, v{V_G}'); e(f'v_lshrrev_b32 v13, 3, v{V_R}'); e('v_lshl_add_u32 v13, v4, 1, v13')
    e(f'v_lshl_add_u32 v5, v{V_G}, 3, v11'); e('v_lshl_add_u32 v14, v5, 7, v12'); e(f'v_add_u32 v14, s{S_WB}, v14')
    for nb in range(4):
        e(f'v_xor_b32 v4, {nb}, v13'); e(f'v_lshl_add_u32 {vr(V_TA[0] + nb)}, v4, 5, v14'); e(f'v_add_u32 {vr(V_TA[1] + nb)}, {R2}, {vr(V_TA[0] + nb)}')
    e(f'v_add_u32 {vr(V_BA)}, {R3}, v7')
    e(f's_lshl_b32 s61, s{S_W}, 14'); e(f'v_add_u32 v8, s61, {vr(V_BA)}')
    e(f's_add_u32 s62, s{S_WB}, {MODL}' if not F else f's_mov_b32 s62, {MODL}'); e(f'v_lshl_add_u32 v9, v{V_G}, 5, s62')
    e(f's_add_u32 s61, s61, {R3}'); e(f'v_lshl_add_u32 v14, v{V_R}, 10, s61')
    for k in range(4): e(f'v_add_u32 v4, {4 * k}, v{V_G}'); e(f'v_xor_b32 v4, v4, v{V_R}'); e(f'v_lshl_add_u32 v{10 + k}, v4, 4, v14')
    zero = [f'v_accvgpr_write_b32 a{A_O + i}, 0' for i in range(128)] + [f'v_accvgpr_write_b32 a{A_L + i}, 0' for i in range(16)]
    zero += ['v_mov_b32 v5, 0x3f803f80'] + [f'v_accvgpr_write_b32 a{A_ONE + i}, v5' for i in range(4)]
    if cfg.zearly:
        for z in zero: e(z)
    if F: tail.mod_compute(st, cfg, MODL + 4096)
    main = st; st = Stream(); e = st.e
    if F: tail.mod_store(main, cfg, MODL + 4096, x_dma)
    else: main.wait(vm=['x'])
    for ks in range(16): main.lds(f'ds_read_b128 {vr(V_ACC + 8 * ks + 4, 4)}, v{10 + ks % 4} offset:{(ks // 4) * 256}', ('x', ks))
    if F: tail.counters_ready(main, cfg)
    stamp(main, cfg, 1)
    if cfg.fused == 2 and cfg.stamps: main.e('v_writelane_b32 v253, s88, 2'); main.e('v_writelane_b32 v253, s88, 3'); main.e('v_writelane_b32 v254, s90, 2'); main.e('v_writelane_b32 v254, s90, 3')
    for ks in range(16):
        b = V_ACC + 8 * ks
        if ks % 2 == 0: st.wait(lds=[('x', ks + 1)])
        for j in range(4):
            e(f'v_lshlrev_b32 v{b + 2 * j}, 16, v{b + 4 + j}'); e(f'v_and_b32 v{b + 2 * j + 1}, 0xffff0000, v{b + 4 + j}')
        for j in range(4):
            if ks == 0: continue
            a = V_HO + 2 * j
            e(f'v_pk_add_f32 {vr(a, 2)}, {vr(b + 2 * j, 2)}, {vr(a, 2) if ks > 1 else vr(V_ACC + 2 * j, 2)}')
    a = V_HO
    e(f'v_pk_add_f32 {vr(a, 2)}, {vr(a, 2)}, {vr(a + 2, 2)}'); e(f'v_pk_add_f32 {vr(a + 4, 2)}, {vr(a + 4, 2)}, {vr(a + 6, 2)}')
    e(f'v_pk_add_f32 {vr(a, 2)}, {vr(a, 2)}, {vr(a + 4, 2)}'); e(f'v_add_f32 v4, v{a}, v{a + 1}')
    xlane_reduce(e, [4], [5], 'v_add_f32')
    e(f'v_mul_f32 v4, {f2h(-1.0 / 512)}, v4')
    for ks in range(16):
        b = V_ACC + 8 * ks
        for j in range(4): e(f'v_pk_add_f32 {vr(b + 2 * j, 2)}, {vr(b + 2 * j, 2)}, v[4:5] op_sel_hi:[1,0]')
        for j in range(4):
            if ks == 0: e(f'v_pk_mul_f32 {vr(a + 2 * j, 2)}, {vr(b + 2 * j, 2)}, {vr(b + 2 * j, 2)}')
            else: e(f'v_pk_fma_f32 {vr(a + 2 * j, 2)}, {vr(b + 2 * j, 2)}, {vr(b + 2 * j, 2)}, {vr(a + 2 * j, 2)}')
    def modrd(ks):
        m = V_MOD + 16 * (ks % 2)
        for j in range(4): st.lds(f'ds_read_b128 {vr(m + 4 * j, 4)}, v9 offset:{ks * 256 + (j // 2) * 128 + (j % 2) * 16}', ('mod', ks))
    if not F: st.wait(vm=['mod']); modrd(0); modrd(1)
    e(f'v_pk_add_f32 {vr(a, 2)}, {vr(a, 2)}, {vr(a + 2, 2)}'); e(f'v_pk_add_f32 {vr(a + 4, 2)}, {vr(a + 4, 2)}, {vr(a + 6, 2)}')
    e(f'v_pk_add_f32 {vr(a, 2)}, {vr(a, 2)}, {vr(a + 4, 2)}'); e(f'v_add_f32 v4, v{a}, v{a + 1}')
    xlane_reduce(e, [4], [5], 'v_add_f32')
    e(f'v_mov_b32 v5, {f2h(1e-5)}'); e(f'v_fmac_f32 v5, {f2h(1.0 / 512)}, v4'); e('v_rsq_f32 v4, v5'); e('s_nop 0')
    if F:
        for ks in range(16):
            for j in range(4): e(f'v_pk_mul_f32 {vr(V_ACC + 8 * ks + 2 * j, 2)}, {vr(V_ACC + 8 * ks + 2 * j, 2)}, v[4:5] op_sel_hi:[1,0]')
        left = interleave(main, st, (wq_early + pfo)[:len(wq_early + pfo) - cfg.wqlate], 0, cfg.lnev)
        st = main; e = st.e
        emit_ops(st, left)
        if cfg.wqlate: wq_late = (wq_early + pfo)[-cfg.wqlate:] + wq_late
        stamp(st, cfg, 9)
        tail.mod_fetch(st, cfg, MODL, S_ROT)
        stamp(st, cfg, 10)
        modrd(0); modrd(1)
    for ks in range(16):
        b = V_ACC + 8 * ks; m = V_MOD + 16 * (ks % 2); ho = V_HO + 4 * (ks % 2)
        if not F:
            for j in range(4): e(f'v_pk_mul_f32 {vr(b + 2 * j, 2)}, {vr(b + 2 * j, 2)}, v[4:5] op_sel_hi:[1,0]')
        st.wait(lds=[('mod', ks)])
        for j in range(4): e(f'v_pk_fma_f32 {vr(b + 2 * j, 2)}, {vr(b + 2 * j, 2)}, {vr(m + 2 * j, 2)}, {vr(m + 8 + 2 * j, 2)}')
        if ks + 2 < 16: modrd(ks + 2)
        for j in range(4): e(f'v_cvt_pk_bf16_f32 v{ho + j}, v{b + 2 * j}, v{b + 2 * j + 1}')
        st.lds(f'ds_write_b128 v8, {vr(ho, 4)} offset:{ks * 1024}', 'hw')
    if not F:
        body = st; st = main; e = st.e
        left = interleave(st, body, wq_early + pfo, 0, cfg.lnev)
        emit_ops(st, left + wq_late); wq_late = []
    st.wait(lds='all'); e('s_barrier')
    stamp(st, cfg, 2)
    def ta_q(s):
        r = QREG(s); return (V_TA[1], 0) if r == R2 else (V_TA[0], r)
    def refill_q(s):
        if s + 3 < 16: return wq_dma(s + 3)
        return {13: kv_dma('K', 0) + kv_dma('K', 1), 14: kv_dma('V', 0) + kv_dma('V', 1), 15: kv_dma('K', 2) + kv_dma('K', 3)}[s]
    gemm(st, cfg, 'wq', [(s // 2, s % 2) for s in range(16)], ta_q, 512, V_BA, lambda ks, qb: qb * 16384 + ks * 1024, refill_q, [] if cfg.zearly else zero, first_ops=wq_late)
    stamp(st, cfg, 3)
    e('s_nop 3')
    for ks in range(4):
        for qb in range(4):
            d = V_Q + (qb * 4 + ks) * 4; a0 = ACC(2 * ks, qb); a1 = ACC(2 * ks + 1, qb)
            e(f'v_cvt_pk_bf16_f32 v{d}, v{a0}, v{a0 + 1}'); e(f'v_cvt_pk_bf16_f32 v{d + 1}, v{a0 + 2}, v{a0 + 3}')
            e(f'v_cvt_pk_bf16_f32 v{d + 2}, v{a1}, v{a1 + 1}'); e(f'v_cvt_pk_bf16_f32 v{d + 3}, v{a1 + 2}, v{a1 + 3}')
        e('s_nop 0')
        for qb in range(4):
            d = V_Q + (qb * 4 + ks) * 4
            e(f'v_permlane16_swap_b32 v{d}, v{d + 2}'); e(f'v_permlane16_swap_b32 v{d + 1}, v{d + 3}')
    st.wait(vm=[('dK', 0)]); e('s_barrier')
    emit_ops(st, kv_dma('V', 2))
    st.mark('attn_start')
    def rawA(st): schedule(st, groups_A(0, cfg, raw=True) + groups_A(1, cfg, raw=True), RING, 16, primed=8)
    def tile_max(first, st):
        e = st.e
        for qb in range(4):
            regs = [Sreg(b, kb, qb) + i for b in range(2) for kb in range(2) for i in range(4)]
            m = 4 + qb
            if first:
                e(f'v_max3_f32 v{m}, v{regs[0]}, v{regs[1]}, v{regs[2]}')
                for i in range(3, 15, 2): e(f'v_max3_f32 v{m}, v{m}, v{regs[i]}, v{regs[i + 1]}')
                e(f'v_max_f32 v{m}, v{m}, v{regs[15]}')
            else:
                for i in range(0, 16, 2): e(f'v_max3_f32 v{m}, v{m}, v{regs[i]}, v{regs[i + 1]}')
    def make_negm(st):
        e = st.e
        xlane_reduce(e, [4, 5, 6, 7], [8, 9, 10, 11], 'v_max_f32')
        for qb in range(4):
            for i in range(4): e(f'v_sub_f32 {vr(V_NEGM + 4 * qb + i)}, {f2h(-cfg.B)}, v{4 + qb}')
    rawA(st)
    e(f's_cmp_lg_u32 s{S_FLAG}, 0'); e('s_nop 6'); e('s_cbranch_scc1 L_k1_havemax')
    tile_max(True, st); make_negm(st)
    e('L_k1_havemax:')
    for b in range(2):
        for kb in range(2):
            for qb in range(4):
                s = Sreg(b, kb, qb)
                for i in (0, 2): e(f'v_pk_add_f32 {vr(s + i, 2)}, {vr(s + i, 2)}, {vr(V_NEGM + 4 * qb, 2)}')
    st.wait(lds='all', vm=[('dK', 1), ('dV', 0)]); e('s_barrier')
    pfw1 = []; pfw2 = []
    for r in range(4):
        pfw1 += [(f's_add_u32 s5, s4, {r * 3584}', None), pf('v252', 92, 's5'), pf('v252', 92, 's5', 768)]
    for r in range(7):
        pfw2 += [(f's_add_u32 s5, s7, {r * 2048}', None), pf('v251', 96, 's5')]
    def tail_extra(t):
        if t == 28: return pfwo + (pfw1[:6] if cfg.pfw else [])
        if t == 29: return [(f's_lshl_b32 s{S_OFFW}, s{S_ROT}, 15', None)] + wo_dma(0) + (pfw2 if cfg.pfw else [])
        if t == 30: return wo_dma(1) + (pfw1[6:] if cfg.pfw else [])
        return []
    attn_main(st, cfg, tail_extra)
    stamp(st, cfg, 5)
    e('s_setreg_imm32_b32 hwreg(HW_REG_MODE, 4, 2), 3')
    e(f'v_lshrrev_b32 v5, 2, v{V_R}'); e(f'v_lshl_add_u32 v5, v{V_G}, 2, v5'); e('v_bfe_u32 v6, v5, 1, 2'); e(f'v_and_b32 v7, 3, v{V_R}'); e('v_lshlrev_b32 v7, 3, v7')
    e('v_lshl_add_u32 v7, v5, 7, v7'); e(f'v_add_u32 v7, s{S_WB}, v7')
    for nb in range(4): e(f'v_xor_b32 v5, {nb}, v6'); e(f'v_lshl_add_u32 {vr(V_TO[0] + nb)}, v5, 5, v7'); e(f'v_add_u32 {vr(V_TO[1] + nb)}, {R3}, {vr(V_TO[0] + nb)}')
    for qb in range(4): e(f'v_accvgpr_read_b32 v{4 + qb}, a{A_L + 4 * qb}')
    e(f'v_mov_b32 v12, {f2h(cfg.thr)}')
    e('v_max3_f32 v8, v4, v5, v6'); e('v_max_f32 v8, v8, v7')
    for qb in range(4): e(f'v_add_f32 v{9}, v{4 + qb}, {"v9" if qb else "0"}')
    e('v_cmp_nlt_f32 vcc, v8, v12'); e('v_cmp_u_f32 s[62:63], v9, v9')
    for qb in range(4): e(f'v_rcp_f32 v{4 + qb}, v{4 + qb}')
    e('s_or_b64 vcc, vcc, s[62:63]'); e('s_cmp_lg_u64 vcc, 0'); e('s_cselect_b32 s61, 1, 0')
    e('v_and_b32 v10, 3, v0'); e('v_lshlrev_b32 v10, 12, v10'); e(f's_lshl_b32 s62, s{S_W}, 2'); e(f's_add_u32 s62, s62, {R3}'); e('v_add_u32 v10, s62, v10')
    e('v_mov_b32 v11, s61'); st.lds('ds_write_b32 v10, v11', 'flagw')
    e('v_lshlrev_b32 v14, 4, v0'); e(f's_lshl_b32 s61, s{S_W}, 2'); e(f's_sub_u32 s61, s61, s{S_ROT}')
    for m in range(4):
        e(f's_add_u32 s62, s61, {m}'); e('s_and_b32 s62, s62, 15'); e('s_lshl_b32 s62, s62, 12'); e(f's_add_u32 s62, s62, {R1}'); e(f'v_add_u32 v{V_P + m}, s62, v14')
    k = 0
    for qb in range(4):
        for m in range(4):
            t = V_S[0] + 16 * (k % 4); k += 1
            for hb in range(2):
                for i in range(4): e(f'v_accvgpr_read_b32 v{t + 4 * hb + i}, a{A_O + ((2 * m + hb) * 4 + qb) * 4 + i}')
            sel = f'v[{4 + qb}:{5 + qb}] op_sel_hi:[1,0]' if qb % 2 == 0 else f'v[{3 + qb}:{4 + qb}] op_sel:[0,1] op_sel_hi:[1,1]'
            for i in range(4): e(f'v_pk_mul_f32 {vr(t + 2 * i, 2)}, {vr(t + 2 * i, 2)}, {sel}')
            for i in range(4): e(f'v_cvt_pk_bf16_f32 v{t + 8 + i}, v{t + 2 * i}, v{t + 2 * i + 1}')
            st.lds(f'ds_write_b128 v{V_P + m}, {vr(t + 8, 4)} offset:{qb * 1024}', 'ow')
    e(f'v_add_u32 v{V_BO}, {R1}, v14'); e(f's_add_u32 s61, s{S_WB}, {R3}'); e('v_mov_b32 v10, s61')
    st.wait(lds='all'); e('s_barrier')
    st.lds('ds_read_b128 v[4:7], v10', 'flagr'); st.wait(lds=['flagr'])
    e('v_or3_b32 v4, v4, v5, v6'); e('v_or_b32 v4, v4, v7'); e('s_nop 0'); e('v_readfirstlane_b32 s61, v4'); e('s_nop 3')
    e(f's_andn2_b32 s61, s61, s{S_FLAG}'); e('s_cbranch_scc1 L_k1_slow')
    stamp(st, cfg, 6)
    def ta_o(s):
        r = OREG(s); return (V_TO[0], 0) if r == R0 else (V_TO[1], r - R3)
    def refill_o(s): return wo_dma(s + 3) if s + 3 < 16 else []
    sadr = [f'v_lshrrev_b32 v4, 1, v{V_R}', 'v_lshlrev_b32 v4, 11, v4', f'v_lshl_add_u32 v4, v{V_PI}, 5, v4', f'v_and_b32 v5, 1, v{V_R}', 'v_lshl_add_u32 v4, v5, 4, v4',
            f's_lshl_b32 s48, s{S_RB}, 16', f's_lshl_b32 s62, s{S_W}, 9', 's_add_u32 s48, s48, s62'] + [f's_add_u32 s{48 + qb}, s48, {16384 * qb}' for qb in range(1, 4)]
    def out_half(h):
        ops = []
        for qb in range(4):
            for m in (2 * h, 2 * h + 1):
                d = V_Q + (qb * 4 + m) * 4; a0 = ACC(2 * m, qb); a1 = ACC(2 * m + 1, qb)
                ops += [f'v_cvt_pk_bf16_f32 v{d}, v{a0}, v{a0 + 1}', f'v_cvt_pk_bf16_f32 v{d + 1}, v{a0 + 2}, v{a0 + 3}',
                        f'v_cvt_pk_bf16_f32 v{d + 2}, v{a1}, v{a1 + 1}', f'v_cvt_pk_bf16_f32 v{d + 3}, v{a1 + 2}, v{a1 + 3}']
            for m in (2 * h, 2 * h + 1):
                d = V_Q + (qb * 4 + m) * 4
                ops += [f'v_permlane16_swap_b32 v{d}, v{d + 2}', f'v_permlane16_swap_b32 v{d + 1}, v{d + 3}']
            for m in (2 * h, 2 * h + 1):
                ops.append((f'buffer_store_dwordx4 {vr(V_Q + (qb * 4 + m) * 4, 4)}, v4, {sr(S_PART, 4)}, s{48 + qb} offen offset:{m * 128}{SC}', 'st'))
        return ops
    gemm(st, cfg, 'wo', [(s % 8, s // 8) for s in range(16)], ta_o, 2048, V_BO, lambda ks, qb: ks * 4096 + qb * 1024, refill_o, sadr,
         first_ops=wo_dma(2), late=(cfg.ost, out_half(0)))
    stamp(st, cfg, 7)
    e('s_nop 7')
    for x in out_half(1):
        if isinstance(x, tuple): st.vm(*x)
        else: e(x)
    if FT: tail.tail(st, cfg)
    else: stamp_out(st, cfg, 1, 8, 58, S_W)
    e('s_endpgm')
    segs, order = split_marks(st.resolve())
    NL = 28
    for t in range(4, NL):
        if segs[f'it{t}'] != segs[f'it{t - 4}']:
            import difflib, sys
            sys.stderr.write('\n'.join(list(difflib.unified_diff(segs[f'it{t - 4}'], segs[f'it{t}'], lineterm='', n=2))[:60]) + '\n')
            raise SystemExit(f'iteration {t} differs')
    if cfg.strip:
        import re
        pat = re.compile(cfg.strip.replace('+', '|'))
        for t in range(NL): segs[f'it{t}'] = [x for x in segs[f'it{t}'] if not pat.match(x)]
    out = header(name) + segs['_start'] + ['L_k1_attn_start:'] + segs['attn_start']
    tmp = Stream(); stamp(tmp, cfg, 4); out += tmp.resolve()
    out += [f's_mov_b32 s{S_CNT}, {NL // 4}', '.p2align 6', 'L_k1_loop:']
    for t in range(4): out += segs[f'it{t}']
    out += [f's_sub_u32 s{S_CNT}, s{S_CNT}, 1', f's_cmp_lg_u32 s{S_CNT}, 0', 's_cbranch_scc1 L_k1_loop']
    for t in range(NL, NT): out += segs[f'it{t}']
    out += segs['end']
    st = Stream(); e = st.e
    e('L_k1_slow:')
    e(f's_mov_b32 s{S_FLAG}, 1'); e('s_setreg_imm32_b32 hwreg(HW_REG_MODE, 4, 2), 0')
    e('s_waitcnt vmcnt(0) lgkmcnt(0)'); e('s_barrier')
    e(f's_mov_b32 s{S_OFFK}, 0'); e(f's_mov_b32 s{S_CNT}, {NT}')
    for qb in range(4): e(f'v_mov_b32 v{4 + qb}, 0xff800000')
    e('L_k1_slow_loop:')
    emit_ops(st, kv_dma('K', 0)); st.wait(vm='all'); e('s_barrier')
    rawA(st)
    e('s_nop 7'); tile_max(False, st)
    e('s_barrier')
    e(f's_sub_u32 s{S_CNT}, s{S_CNT}, 1'); e(f's_cmp_lg_u32 s{S_CNT}, 0'); e('s_cbranch_scc1 L_k1_slow_loop')
    make_negm(st)
    for z in zero: e(z)
    e(f's_mov_b32 s{S_OFFK}, 0'); e(f's_mov_b32 s{S_OFFV}, 0')
    for w_, t_ in [('K', 0), ('K', 1), ('V', 0), ('V', 1), ('K', 2), ('K', 3), ('V', 2)]: emit_ops(st, kv_dma(w_, t_))
    st.wait(vm='all'); e('s_barrier'); e('s_branch L_k1_attn_start')
    out += st.resolve() + ['L_k1_end:', 's_endpgm']
    return out, kd(name, 512, 256, 102), f'; @launch {"" if F else "kernel=" + name + " "}grid=(256,1,1) block=(256,1,1) lds=163840'
```

```python
import sys
from gen_common import *
import k0, k1
cfg = k1.Cfg(); kernels = '01234'
for a in sys.argv[1:]:
    k, v = a.split('=')
    if k == 'kernels': kernels = v
    else: setattr(cfg, k, int(v) if v.lstrip('-').isdigit() else v)
parts = []
if cfg.fused: kernels = '1' if cfg.fused == 1 else '01'
if '0' in kernels: parts.append(k0.gen_k0(cfg))
if '1' in kernels: parts.append(k1.gen_k1(cfg))
if '2' in kernels:
    import k2; parts.append(k2.gen_k2(cfg))
if '3' in kernels:
    import k3; parts.append(k3.gen_k3(cfg))
if '4' in kernels:
    import k4; parts.append(k4.gen_k4(cfg))
pre = int(getattr(cfg, 'epre', 0)); post = int(getattr(cfg, 'epost', 0))
lines = [p[2] for p in parts]
order = str(getattr(cfg, 'order', ''))
if order: lines = [lines[int(c)] for c in order.lstrip('x')]
if pre or post:
    parts.append((header('empty_kernel') + ['s_endpgm'], kd('empty_kernel', 8, 8), ''))
    el = '; @launch kernel=empty_kernel grid=(256,1,1) block=(256,1,1) lds=0'
    lines = [el] * pre + lines + [el] * post
out = lines + ['.amdgcn_target "amdgcn-amd-amdhsa--gfx950"', '.text']
import align
for p in parts: out += align.align(p[0]) if cfg.al else p[0]
out += ['.section .rodata,"a"']
for p in parts: out += ['.p2align 6', p[1]]
print('\n'.join(out))
```

```python
from asmlib import *
import struct
def f2h(x): return hex(struct.unpack('<I', struct.pack('<f', float(x)))[0])
MF = 'v_mfma_f32_16x16x32_bf16'
KA_X, KA_K, KA_V, KA_WQ, KA_WO, KA_BX, KA_W1, KA_W2, KA_C, KA_WM, KA_OUT, KA_DBG, KA_WS = [8 * i for i in range(13)]
WS_MODA = 0x0; WS_MODB = 0x1000
WS_CNT = 0x4000; WS_MODR = 0x8000
WS_X1 = 1 << 20; WS_H2 = 4 << 20; WS_H1 = 8 << 20; WS_PART = 16 << 20; WS_STAMP = 64 << 20
QSCALE = 128 ** -0.5 * 1.4426950408889634
SC = ' sc0 sc1'

def srd(e, d, lo, hi, size, off=None):
    if off is None:
        e(f's_mov_b32 s{d}, s{lo}'); e(f's_mov_b32 s{d+1}, s{hi}')
    else:
        e(f's_add_u32 s{d}, s{lo}, {off}'); e(f's_addc_u32 s{d+1}, s{hi}, 0')
    e(f's_mov_b32 s{d+2}, {size}'); e(f's_mov_b32 s{d+3}, 0x20000')

def xlane_reduce(e, regs, tmps, op, which=('32', '16')):
    for sw in which:
        for r, t in zip(regs, tmps): e(f'v_mov_b32 v{t}, v{r}')
        if len(regs) < 3: e('s_nop 1')
        for r, t in zip(regs, tmps): e(f'v_permlane{sw}_swap_b32 v{t}, v{r}')
        if len(regs) < 2: e('s_nop 0')
        for r, t in zip(regs, tmps): e(f'{op} v{r}, v{r}, v{t}')

def header(name):
    return [f'.globl {name}', '.p2align 8', f'.type {name},@function', f'{name}:']

def stamp(st, cfg, idx, wait=True):
    if cfg.stamps:
        sv = getattr(cfg, 'sv', 253)
        if cfg.fused == 2: idx = {2: 4, 3: 5, 4: 6, 5: 7, 6: 8, 7: 9, 8: 10}.get(idx, idx)
        if cfg.fused == 1: idx = {9: 2, 10: 3, 2: 4, 3: 5, 4: 6, 5: 7, 6: 8, 7: 9, 8: 10}.get(idx, idx)
        st.e('s_memrealtime s[88:89]'); st.e('s_memtime s[90:91]'); st.e('s_waitcnt lgkmcnt(0)')
        st.e(f'v_writelane_b32 v{sv}, s88, {idx}'); st.e(f'v_writelane_b32 v{sv + 1}, s90, {idx}')
def stamp_out(st, cfg, knum, last, ws_lo, s_wave):
    if not cfg.stamps: return
    e = st.e; sv = getattr(cfg, 'sv', 253)
    st.wait(vm='all'); stamp(st, cfg, last)
    if cfg.stamps >= 2:
        sel = [1, 2, 3, 4, 5, 6, 7, 9, 10, 11, 13, 14, 17, 19]
        e(f'v_readlane_b32 s60, v{sv}, 0'); e('s_not_b32 s60, s60'); e('v_mov_b32 v4, 0'); e('v_writelane_b32 v4, s60, 1')
        for i, k in enumerate(sel): e(f'v_readlane_b32 s60, v{sv}, {k}'); e('s_nop 3'); e(f'v_writelane_b32 v4, s60, {2 + i}')
        e('v_lshlrev_b32 v1, 2, v0')
        if cfg.stamps == 3: e('s_cmp_eq_u32 s2, 100'); e('s_cselect_b32 s60, 0xfffe, 2'); e('s_mov_b32 exec_lo, s60'); e('s_mov_b32 exec_hi, 0')
        else: e('s_mov_b64 exec, 0xfffe')
        e('buffer_atomic_umax v4, v1, s[80:83], 0 offen sc1'); e('s_mov_b64 exec, -1')
    srd(e, 8, ws_lo, ws_lo + 1, 4 << 20, off=WS_STAMP + knum * 524288)
    e('s_lshl_b32 s61, s2, 2'); e(f's_add_u32 s61, s61, s{s_wave}'); e('s_lshl_b32 s61, s61, 9'); e('v_lshlrev_b32 v1, 2, v0')
    e(f'v_writelane_b32 v{sv}, {last + 1}, 63')
    e(f'buffer_store_dword v{sv}, v1, s[8:11], s61 offen'); e(f'buffer_store_dword v{sv + 1}, v1, s[8:11], s61 offen offset:256')

def code_prefetch(st, label_begin, label_end, s_idx, vtmp, vdst, stmp=62):
    e = st.e
    e(f's_getpc_b64 s[{stmp}:{stmp+1}]')
    e(f'L_pc_{label_begin}:')
    e(f's_lshl_b32 s{stmp-1}, s{s_idx}, 10')
    e(f's_min_u32 s{stmp-1}, s{stmp-1}, {label_end}-L_pc_{label_begin}-1024')
    e(f's_add_u32 s{stmp}, s{stmp}, s{stmp-1}'); e(f's_addc_u32 s{stmp+1}, s{stmp+1}, 0')
    e(f'v_lshlrev_b32 v{vtmp}, 4, v0'); e(f'v_mov_b32 v{vtmp+1}, s{stmp+1}')
    e(f'v_add_co_u32 v{vtmp}, vcc, s{stmp}, v{vtmp}'); e('s_nop 1'); e(f'v_addc_co_u32 v{vtmp+1}, vcc, 0, v{vtmp+1}, vcc')
    st.vm(f'global_load_dwordx4 {vdst}, v[{vtmp}:{vtmp+1}], off', 'cpf')
```

```python
from gen_common import *
def gen_k0(cfg, name='k0_mod_kernel'):
    st = Stream(); e = st.e
    cfg.sv = 72; fz = cfg.fused; cfg.fused = 0
    NW = 96 + {0: 0, 1: 256, 2: 224, 3: 32}[cfg.k0pf]
    e(f's_cmp_ge_u32 s2, {NW}'); e('s_cbranch_scc1 L_k0_end')
    if cfg.k0pf: e('s_cmp_ge_u32 s2, 96'); e('s_cbranch_scc1 L_k0_pf')
    e(f's_load_dwordx4 s[4:7], s[0:1], {KA_C}'); e(f's_load_dwordx2 s[20:21], s[0:1], {KA_WS}')
    stamp(st, cfg, 0)
    e('v_lshrrev_b32 v1, 2, v0')
    e('v_and_b32 v2, 3, v0')
    e('v_lshlrev_b32 v3, 1, v1')
    e('s_movk_i32 s22, 6144'); e('v_mul_lo_u32 v4, v1, s22'); e('v_lshl_add_u32 v4, v2, 4, v4')
    e('s_lshl_b32 s23, s2, 6')
    e('s_waitcnt lgkmcnt(0)')
    srd(e, 8, 4, 5, 1024); srd(e, 12, 6, 7, 512 * 6144); srd(e, 16, 20, 21, 0x8000)
    for i in range(8): st.vm(f'buffer_load_ushort v{8+i}, v3, s[8:11], 0 offen offset:{128*i}', 'c')
    for i in range(8):
        st.vm(f'buffer_load_dwordx4 v[{16+4*i}:{19+4*i}], v4, s[12:15], s23 offen', ('w', i))
        if i < 7: e(f's_add_u32 s23, s23, {64*6144}')
    stamp(st, cfg, 1)
    if fz == 2:
        e('s_cmp_lg_u32 s2, 95'); e('s_cbranch_scc1 L_k0_noclr')
        e('v_and_b32 v5, 63, v0'); e('v_lshlrev_b32 v5, 7, v5'); e('v_mov_b32 v6, 0'); e(f's_mov_b32 s24, {WS_CNT}')
        e(f'buffer_store_dword v6, v5, s[16:19], s24 offen{SC}')
        e('L_k0_noclr:')
    e('s_lshr_b32 s24, s2, 4'); e('s_and_b32 s25, s2, 15')
    e('s_lshl_b32 s26, s25, 7')
    e('s_lshl_b32 s27, s25, 8')
    e(f's_mov_b32 s28, 0'); e(f's_mov_b32 s29, 1.0')
    bases = {2: WS_MODB, 3: WS_MODB + 4096, 4: WS_MODB + 2048, 5: WS_MODB + 6144}
    e(f's_add_u32 s30, s27, {WS_MODA + 128}')
    e('s_cmp_eq_u32 s24, 1'); e(f's_cselect_b32 s30, s27, s30')
    for sg, b in bases.items():
        e(f's_add_u32 s31, s26, {b}'); e(f's_cmp_eq_u32 s24, {sg}'); e('s_cselect_b32 s30, s31, s30')
    e('s_cmp_eq_u32 s24, 1'); e('s_cselect_b32 s28, 1.0, s28')
    e('s_cmp_eq_u32 s24, 4'); e('s_cselect_b32 s28, 1.0, s28')
    e('s_cmp_lt_u32 s24, 2'); e(f's_cselect_b32 s29, {f2h(QSCALE)}, s29')
    st.wait(vm=['c']); stamp(st, cfg, 2)
    for i in range(8): e(f'v_lshlrev_b32 v{8+i}, 16, v{8+i}')
    for i in range(8): e(f'v_mul_f32 v{48+i}, {f2h(-1.4426950408889634)}, v{8+i}')
    for i in range(8): e(f'v_exp_f32 v{48+i}, v{48+i}')
    for i in range(8): e(f'v_add_f32 v{48+i}, 1.0, v{48+i}')
    for i in range(8): e(f'v_rcp_f32 v{48+i}, v{48+i}')
    for i in range(8): e(f'v_mul_f32 v{8+i}, v{8+i}, v{48+i}')
    for i in range(8): e(f'v_cvt_pk_bf16_f32 v{8+i}, v{8+i}, v{8+i}')
    for i in range(8): e(f'v_lshlrev_b32 v{8+i}, 16, v{8+i}')
    for j in range(8): e(f'v_mov_b32 v{56+j}, 0')
    for i in range(8):
        st.wait(vm=[('w', i)])
        for j in range(4):
            e(f'v_lshlrev_b32 v48, 16, v{16+4*i+j}'); e(f'v_and_b32 v49, 0xffff0000, v{16+4*i+j}')
            e(f'v_fmac_f32 v{56+2*j}, v48, v{8+i}'); e(f'v_fmac_f32 v{57+2*j}, v49, v{8+i}')
    stamp(st, cfg, 3)
    e('s_nop 1')
    for ror in (4, 8):
        for j in range(8): e(f'v_add_f32_dpp v{56+j}, v{56+j}, v{56+j} row_ror:{ror} row_mask:0xf bank_mask:0xf')
    xlane_reduce(e, list(range(56, 64)), list(range(64, 72)), 'v_add_f32')
    e('v_lshrrev_b32 v5, 6, v0'); e('v_lshlrev_b32 v5, 7, v5'); e('v_lshl_add_u32 v5, v2, 5, v5')
    st.lds('ds_write_b128 v5, v[56:59]'); st.lds('ds_write_b128 v5, v[60:63] offset:16')
    st.wait(lds='all'); e('s_barrier')
    if cfg.stamps:
        e('v_lshrrev_b32 v6, 6, v0'); e('s_nop 0'); e('v_readfirstlane_b32 s3, v6'); e('v_mov_b32 v7, v0'); e('v_and_b32 v0, 63, v0'); stamp_out(st, cfg, 0, 4, 20, 3); e('v_mov_b32 v0, v7')
    e('v_cmp_gt_u32 vcc, 32, v0'); e('s_and_saveexec_b64 s[32:33], vcc'); e('s_cbranch_execz L_k0_end')
    e('v_lshlrev_b32 v5, 2, v0')
    for wv in range(4): st.lds(f'ds_read_b32 v{8+wv}, v5 offset:{128*wv}')
    st.wait(lds='all')
    e('v_add_f32 v8, v8, v9'); e('v_add_f32 v10, v10, v11'); e('v_add_f32 v8, v8, v10')
    e('v_cvt_pk_bf16_f32 v8, v8, v8'); e('v_lshlrev_b32 v8, 16, v8')
    e('v_add_f32 v8, s28, v8')
    e('v_cvt_pk_bf16_f32 v8, v8, v8'); e('v_lshlrev_b32 v8, 16, v8')
    e('v_mul_f32 v8, s29, v8')
    st.vm(f'buffer_store_dword v8, v5, s[16:19], s30 offen{SC}')
    out = header(name) + st.resolve() + ['L_k0_end:', 's_endpgm']
    if cfg.k0pf == 3:
        st = Stream(); e = st.e
        e('L_k0_pf:')
        e(f's_load_dwordx16 s[4:19], s[0:1], {KA_X}'); e(f's_load_dwordx2 s[20:21], s[0:1], {KA_OUT}'); e(f's_load_dwordx2 s[22:23], s[0:1], {KA_WS}')
        e('s_sub_u32 s3, s2, 96'); e('s_lshr_b32 s3, s3, 3'); e('v_lshrrev_b32 v1, 6, v0'); e('s_nop 0'); e('v_readfirstlane_b32 s24, v1'); e('v_and_b32 v2, 63, v0'); e('v_lshlrev_b32 v2, 16, v2')
        e('s_lshl_b32 s3, s3, 2'); e('s_add_u32 s3, s3, s24')
        e('s_waitcnt lgkmcnt(0)')
        tab = [(6, 4 << 20, 0), (8, 4 << 20, 0), (10, 4 << 20, 0), (12, 4 << 20, 0), (4, 2 << 20, 0), (16, 512 * 3584, 0), (18, 512 * 3584, 0), (20, 2 << 20, 0)] + [(22, 32 << 20, (4 << 20) * i) for i in range(8)]
        e('s_mov_b32 s28, s6'); e('s_mov_b32 s29, s7'); e(f's_mov_b32 s30, {4 << 20}'); e('s_mov_b32 s31, 0x20000'); e('s_mov_b32 s25, 0')
        for i, (p, sz, off) in enumerate(tab):
            if i == 0: continue
            e(f's_cmp_eq_u32 s3, {i}'); e(f's_cselect_b32 s28, s{p}, s28'); e(f's_cselect_b32 s29, s{p + 1}, s29'); e(f's_cselect_b32 s30, {sz}, s30'); e(f's_cselect_b32 s25, {off}, s25')
        e('buffer_load_dword v4, v2, s[28:31], s25 offen')
        e('s_waitcnt vmcnt(0)' if cfg.k0wait else 's_nop 0'); e('s_endpgm')
        out += st.resolve()
    if cfg.k0pf == 2:
        st = Stream(); e = st.e
        e('L_k0_pf:')
        e(f's_load_dwordx8 s[4:11], s[0:1], {KA_X}')
        e('s_sub_u32 s3, s2, 96'); e('v_lshlrev_b32 v1, 4, v0')
        e('s_waitcnt lgkmcnt(0)')
        e('s_and_b32 s20, s3, 15'); e('s_lshr_b32 s21, s20, 1'); e('s_lshl_b32 s21, s21, 19'); e('s_and_b32 s20, s20, 1'); e('s_lshl_b32 s20, s20, 15'); e('s_add_u32 s20, s20, s21')
        e('s_mov_b32 s12, s8'); e('s_mov_b32 s13, s9'); e('s_mov_b32 s14, 0x400000')
        e('s_cmp_lt_u32 s3, 208'); e('s_cselect_b32 s12, s6, s12'); e('s_cselect_b32 s13, s7, s13')
        e('s_sub_u32 s21, s3, 64'); e('s_lshl_b32 s21, s21, 15')
        e('s_cmp_lt_u32 s3, 192'); e('s_cselect_b32 s12, s10, s12'); e('s_cselect_b32 s13, s11, s13'); e('s_cselect_b32 s20, s21, s20')
        e('s_lshl_b32 s21, s3, 15')
        e('s_cmp_lt_u32 s3, 64'); e('s_cselect_b32 s12, s4, s12'); e('s_cselect_b32 s13, s5, s13'); e('s_cselect_b32 s20, s21, s20'); e('s_cselect_b32 s14, 0x200000, s14')
        e('s_mov_b32 s15, 0x20000')
        for i in range(8):
            e(f'buffer_load_dwordx4 v[{4 + 4 * i}:{7 + 4 * i}], v1, s[12:15], s20 offen'); e('s_add_u32 s20, s20, 4096')
        e('s_waitcnt vmcnt(0)' if cfg.k0wait else 's_nop 0'); e('s_endpgm')
        out += st.resolve()
    if cfg.k0pf == 1:
        st = Stream(); e = st.e
        e('L_k0_pf:')
        e(f's_load_dwordx2 s[4:5], s[0:1], {KA_X}'); e(f's_load_dwordx2 s[6:7], s[0:1], {KA_WQ}')
        e('s_sub_u32 s3, s2, 96'); e('s_and_b32 s20, s3, 7'); e('s_lshr_b32 s21, s3, 3')
        e('v_lshlrev_b32 v1, 4, v0'); e('s_lshl_b32 s22, s21, 16')
        e('v_lshrrev_b32 v2, 6, v0'); e('v_lshlrev_b32 v2, 13, v2'); e('v_and_b32 v3, 63, v0'); e('v_lshl_add_u32 v2, v3, 4, v2')
        e('s_lshl_b32 s23, s21, 17'); e('s_lshl_b32 s24, s20, 10'); e('s_add_u32 s23, s23, s24')
        e('s_waitcnt lgkmcnt(0)')
        srd(e, 8, 4, 5, 2048 * 1024); srd(e, 12, 6, 7, 512 * 8192)
        for i in range(16):
            e(f'buffer_load_dwordx4 v[{4 + 4 * i}:{7 + 4 * i}], v1, s[8:11], s22 offen'); e('s_add_u32 s22, s22, 4096')
        for i in range(4):
            e(f'buffer_load_dwordx4 v[{4 + 4 * i}:{7 + 4 * i}], v2, s[12:15], s23 offen'); e('s_add_u32 s23, s23, 32768')
        e('s_waitcnt vmcnt(0)' if cfg.k0wait else 's_nop 0'); e('s_endpgm')
        out += st.resolve()
    cfg.fused = fz
    return out, kd(name, 76, 76), f'; @launch kernel={name} grid=({NW},1,1) block=(256,1,1) lds=512'
```

```python
from gen_common import *
from engine import *

S_X, S_WQ, S_K, S_V, S_WO, S_WS, S_PART = 8, 12, 16, 20, 24, 28, 32
S_G, S_RB, S_W, S_WB = 36, 37, 38, 39
S_OFFK, S_OFFV, S_M0V, S_CNT, S_OFFW, S_FLAG = 40, 41, 43, 44, 45, 46
S_M0K = S_WB; S_PF = 47; S_ROT = 42
S_T = 48
V_R, V_G, V_PI = 1, 2, 3
V_Q = 16; V_S = [80, 112]; V_P = 144; V_NEGM = 208
V_KA = 224; V_VA = 228; V_DK = 236; V_DV = 240; V_DWO = 242; V_TO = [208, 212]; V_BO = 250
V_ACC = 80
V_DWQ = 16; V_TA = [24, 28]; V_BA = 40; V_MOD = 48; V_HO = 208
A_O = 0; A_FR = 128; A_BF = 128; A_L = 192; A_ONE = 208; A_AF = 212; A_DUMMY = 244
R0, R1, R2, R3, R4 = 0, 32768, 65536, 98304, 131072
LDS_V = R2
NT = 32
RING = [A_FR + 4 * i for i in range(16)]

def O(db, qb): return ar(A_O + (db * 4 + qb) * 4, 4)
def Q(qb, ks): return vr(V_Q + (qb * 4 + ks) * 4, 4)
def Lr(qb): return ar(A_L + qb * 4, 4)
def Sreg(buf, kb, qb): return V_S[buf] + (kb * 4 + qb) * 4
def Preg(h, qb): return V_P + (h % 4) * 16 + qb * 4
def ACC(nb, qb): return V_ACC + (nb * 4 + qb) * 4

class Cfg:
    lead = 20; spread = 0; xlead = 20; S0 = 62; XG = 6; nodma = 0; strip = ''; blead = 30; mw = 2; B = 102; dma_gap = 12; glead = 14; ggap = 1; bspread = 0; gspread = 0; stamps = 0; thr = 2.0 ** 64; prefetch = 0; cpf = 0; G = 4; pfq = 0; krot = 1; npre = 0
    h2sc = 0; k2nt = 1; k0pf = 0; lnev = 24; rot = 0; k3pre = 2; k4pre = 3; pfw = 1; chain = 1; fused = 0; xdelay = 0; k0wait = 1; zearly = 1; w1early = 16; f1gap = 3; nprod = 96; wqlate = 0; f1pre = 12; f2pre = 2; rnt = 1; rotmask = 7; rotsh = 1; ost = 13

def groups_A(h, cfg, raw=False, gate=None):
    tile, hf = h // 2, h % 2
    gs = []
    for kb in range(2):
        off = (tile % 4) * 16384 + (32 * hf + 16 * kb) * 256
        us = [Unit(('K', h, kb, ks), (lambda r, ks=ks, off=off: [f'ds_read_b128 {ar(r, 4)}, {vr(V_KA + ks)} offset:{off}']), gate=gate, lead=cfg.lead + cfg.spread * (3 - ks)) for ks in range(4)]
        def mfs(regs, kb=kb):
            regs = regs or [0] * 4
            order = [(qb, ks if qb % 2 == 0 else 3 - ks, ks == 0, ks == 3) for qb in range(4) for ks in range(4)] if cfg.chain else \
                    [(qb, ks, ks == 0, ks == 3) for ks in range(4) for qb in range(4)]
            r = []
            for qb, ks, first, last in order:
                s = vr(Sreg(h % 2, kb, qb), 4)
                c = ('0' if raw else vr(V_NEGM + 4 * qb, 4)) if first else s
                r.append((f'{MF} {s}, {ar(regs[ks], 4)}, {Q(qb, ks)}, {c}', ('A', h, kb, qb, first, last)))
            return r
        gs.append(Group(mfs, us))
    return gs

def unit_V(h, db):
    off = ((h // 2) % 4) * 16384 + (32 * (h % 2)) * 256
    return Unit(('V', h, db), lambda r: [f'ds_read_b64_tr_b16 {ar(r, 2)}, {vr(V_VA + db)} offset:{off}',
                                          f'ds_read_b64_tr_b16 {ar(r + 2, 2)}, {vr(V_VA + db)} offset:{off + 4096}'])
def groups_C(hs, cfg):
    gs = []
    def order(qb):
        o = list(range(len(hs)))
        return o if qb % 2 == 0 else o[::-1]
    seq = [(qb, k) for qb in range(4) for k in order(qb)] if cfg.chain else [(qb, k) for k in range(len(hs)) for qb in range(4)]
    for db in range(8):
        def mfs(regs, db=db):
            regs = regs or [0] * 2
            return [(f'{MF} {O(db, qb)}, {ar(regs[k], 4)}, {vr(Preg(hs[k], qb), 4)}, {O(db, qb)}', ('C', hs[k], qb)) for qb, k in seq]
        us = [unit_V(h, db) for h in hs]
        for k, u in enumerate(us): u.lead = cfg.lead + cfg.spread * (len(hs) - 1 - k)
        gs.append(Group(mfs, us, wait_next=1 if db % 2 == 0 else 0))
    gs.append(Group(lambda regs: [(f'{MF} {Lr(qb)}, {ar(A_ONE, 4)}, {vr(Preg(hs[k], qb), 4)}, {Lr(qb)}', ('C', hs[k], qb)) for qb, k in seq]))
    return gs

def softmax_ops(h, start, base):
    exps = []; posts = []
    for kb in range(2):
        for qb in range(4):
            s = Sreg(h % 2, kb, qb)
            for i in range(4):
                exps.append((start + 2 * len(exps), f'v_exp_f32 {vr(s + i)}, {vr(s + i)}', (h, kb, qb)))
                if i & 1:
                    posts.append((base + len(exps), f'v_cvt_pk_bf16_f32 {vr(Preg(h, qb) + 2 * kb + i // 2)}, {vr(s + i - 1)}, {vr(s + i)}', start + 2 * len(exps) + 1, (h, kb, qb)))
    return exps, posts

def kv_dma(which, tile):
    slot = tile % 4
    m0, dv, srdr, off, nv = (S_M0K, V_DK, S_K, S_OFFK, 4) if which == 'K' else (S_M0V, V_DV, S_V, S_OFFV, 2)
    ops = [(f's_add_u32 m0, {sr(m0)}, {slot * 16384}', None)]
    for j in range(4):
        ops.append((f'buffer_load_dwordx4 {vr(dv + j % nv)}, {sr(srdr, 4)}, {sr(off)} offen offset:{j * 1024} lds', ('d' + which, tile)))
    ops.append((f's_add_u32 {sr(off)}, {sr(off)}, 16384', None))
    return ops

def w_dma(name, s, region, dv, srdr, soff, post):
    ops = []
    for j in range(8):
        if j % 4 == 0: ops.append((f's_add_u32 m0, {sr(S_WB)}, {region + (j // 4) * 16384}', None))
        ops.append((f'buffer_load_dwordx4 {vr(dv + j)}, {sr(srdr, 4)}, {sr(soff)} offen offset:{(j % 4) * 1024} lds', (name, s)))
    return ops + [(p, None) for p in post]

def attn_main(st, cfg, tail_extra):
    def window(t):
        ops = []
        if t + 3 < NT: ops += kv_dma('V', t + 3)
        if t + 4 < NT: ops += kv_dma('K', t + 4)
        return ops + tail_extra(t)
    def build():
        groups = []; gate = None; idx = 0; exps = []; posts = []
        e0, p0 = softmax_ops(0, -1000, 0); e1, p1 = softmax_ops(1, cfg.S0 + 66 - 136, 32)
        exps += e0 + e1; posts += p0 + p1
        for t in range(NT):
            if t < NT - 1:
                gs = groups_A(2 * t + 2, cfg, gate=gate) + groups_A(2 * t + 3, cfg, gate=gate)
                cs = groups_C([2 * t, 2 * t + 1], cfg)
                x = cs[cfg.XG]
                x.barrier = dict(vm=[('dV', t + 1)] + ([('dK', t + 2)] if t + 2 < NT else []), units=[u for g in cs for u in g.units], then=window(t + 1))
                for g in cs[cfg.XG:8]:
                    for u in g.units: u.lead = max(u.lead, cfg.xlead + 8 * (cs.index(g) - cfg.XG) + (u.lead - cfg.lead) // 2)
                gs += cs; ngate = x
                for k in range(2):
                    ee, pp = softmax_ops(2 * t + 2 + k, idx + cfg.S0 + 66 * k, 32 * (2 * t + 2 + k)); exps += ee; posts += pp
            else:
                gs = groups_C([2 * t], cfg) + groups_C([2 * t + 1], cfg)
                for g in gs:
                    for u in g.units: u.gate = gate; u.lead = min(cfg.lead, 14)
            gs[0].mark = f'it{t}'
            groups += gs; gate = ngate; idx += 136
        return groups, exps, posts
    def check_fn():
        spend = {}; sready = {}; pdone = {};
        def check(kind, key, i):
            if kind == 'mfma' and key[0] == 'A':
                _, h, kb, qb, first, last = key
                if first: assert spend.get((h % 2, kb, qb), 0) == 0, ('S overwritten early', key, i)
                if last: spend[(h % 2, kb, qb)] = 2; sready[(h, kb, qb)] = i
            elif kind == 'mfma' and key[0] == 'C':
                if key[1] >= 2: assert pdone.get((key[1], key[2]), (0, 0))[0] == 4 and pdone[(key[1], key[2])][1] < i - 1, ('P not ready', key, i)
                check.lastC[(key[1] % 4, key[2])] = (key[1], i)
            elif kind == 'trans':
                if key[0] >= 2: assert i >= sready[key] + 8, ('S not ready', key, i)
            elif kind == 'post':
                h, kb, qb = key
                if h >= 2: spend[(h % 2, kb, qb)] -= 1
                c = pdone.get((h, qb), (0, 0)); pdone[(h, qb)] = (c[0] + 1, i)
                if h >= 4: assert check.cnt_c(h - 4, qb), ('P overwritten early', key, i)
        check.lastC = {}
        seen = {}
        def wrap(kind, key, i):
            if kind == 'mfma' and key[0] == 'C': seen[(key[1], key[2])] = seen.get((key[1], key[2]), 0) + 1
            check(kind, key, i)
        check.cnt_c = lambda h, qb: seen.get((h, qb), 0) == 9
        return wrap
    def run(st, pre):
        groups, exps, posts = build()
        npre, lastoff, ntr0, npo0, primed = pre
        def after_prime(st, trans, posts, S):
            emit_ops(st, S['pend'][:npre]); S['pend'] = S['pend'][npre:]
            k = 0
            for n in range(ntr0):
                st.e(trans.pop(0)[1])
                while k < npo0 and posts[0][0] <= n: st.e(posts.pop(0)[1]); k += 1
            st.e('s_nop 0')
            while k < npo0: st.e(posts.pop(0)[1]); k += 1
            S['ntr'] = ntr0
        S = dict(pend=window(0), lastdma=lastoff, after_prime=after_prime)
        nl = 136 * (NT - 1)
        exps = [(min(a, nl), b, c) for a, b, c in exps]
        posts = [(a, b, min(c, nl), d) for a, b, c, d in posts]
        S = schedule(st, groups, RING, cfg.lead, exps, posts, side_gap=lambda i: cfg.dma_gap if i < 136 * 28 else 6, state=S, primed=primed, check=check_fn(), dense_from=nl, max_wide=cfg.mw)
        st.mark('end')
        return S['log'], len(exps), len(posts)
    log, ne, npo = run(Stream(), (3, -1000, 32 + (136 - cfg.S0 - 66 + 1) // 2, 16 + (136 - cfg.S0 - 66 + 1) // 4, 4))
    def norm(t):
        c, ld, nt, npp, rq = log[f'it{t}']
        return (c, ld, ne - nt - 64 * t, npo - npp - 32 * t, rq - 32 * t)
    n = norm(3)
    assert all(norm(t) == n for t in range(3, NT - 4)), [norm(t) for t in range(2, 8)]
    run(st, n)

def gemm(st, cfg, name, stages, ta, joff, vba, baddr, refill, extra, first_ops=(), late=None):
    groups = []; bcur = None; nb_sets = 0; seen = set()
    for s, (kp, half) in enumerate(stages):
        vb, ib = ta(s)
        newb = bcur is None or bcur[0] != kp or stages[s - 1][1] == half
        if newb:
            base = A_BF + 32 * (nb_sets % 2); nb_sets += 1
            bu = [Unit((name + 'B', s, k, qb), (lambda r, k=k, qb=qb, kp=kp: [f'ds_read_b128 {ar(r, 4)}, {vr(vba)} offset:{baddr(2 * kp + k, qb)}']), reg=base + 16 * k + 4 * qb, lead=cfg.blead - cfg.bspread * (2 * qb + k))
                  for qb in range(4) for k in range(2)]
            bcur = (kp, bu)
        bu = bcur[1]
        for n4 in range(4):
            nb = 4 * half + n4
            au = [Unit((name + 'A', s, n4, k), (lambda r, k=k, n4=n4, vb=vb, ib=ib: [f'ds_read_b64_tr_b16 {ar(r, 2)}, {vr(vb + n4)} offset:{ib + 16384 * k}',
                                                                                 f'ds_read_b64_tr_b16 {ar(r + 2, 2)}, {vr(vb + n4)} offset:{ib + 16384 * k + joff}']),
                       vm=(name, s) if n4 == 0 and k == 0 and not (cfg.nodma and s > 2) else None, lead=cfg.glead + cfg.gspread * (1 - k)) for k in range(2)]
            first = nb not in seen; seen.add(nb)
            def mfs(regs, nb=nb, first=first, au=au, bu=bu):
                r = []
                seq = [(qb, k ^ (qb & 1), k == 0) for qb in range(4) for k in range(2)] if cfg.chain else [(qb, k, k == 0) for k in range(2) for qb in range(4)]
                for qb, k, f in seq:
                    c = vr(ACC(nb, qb), 4)
                    r.append((f'{MF} {c}, {ar(au[k].reg or 0, 4)}, {ar(bu[2 * qb + k].reg, 4)}, {0 if first and f else c}', None))
                return r
            if newb and n4 == 0: g = Group(mfs, bu + au)
            else: g = Group(mfs, au, hold=bu)
            if n4 == 3:
                def rel(S, s=s):
                    S['pend'] += refill(s) if not (cfg.nodma and s < 13) else []
                    if late and s == late[0]: S['extra'] += late[1]
                g.on_start = rel
            groups.append(g)
    S = dict(pend=list(first_ops), extra=list(extra))
    S = schedule(st, groups, [A_AF + 4 * i for i in range(8)], cfg.glead, side_gap=lambda i: cfg.ggap, state=S, primed=12, sort_reads=True, max_wide=cfg.mw)
    emit_ops(st, S['pend'])
    for x in S['extra']:
        if isinstance(x, tuple): st.vm(*x)
        else: st.e(x)

def gen_k1(cfg, name='k1_attn_kernel'):
    F = cfg.fused == 1; FT = cfg.fused > 0
    if FT: import tail
    if F: name = 'adaLN_cond__gqa_block_cached__dense_activation_relu__prompt_kernel'
    st = Stream(); e = st.e
    cfg.sv = 253
    e('s_cmp_ge_u32 s2, 256'); e('s_cbranch_scc1 L_k1_end')
    e(f's_load_dwordx8 s[48:55], s[0:1], {KA_X}')
    e(f's_load_dwordx2 s[56:57], s[0:1], {KA_WO}'); e(f's_load_dwordx2 s[58:59], s[0:1], {KA_WS}'); e(f's_load_dwordx4 s[4:7], s[0:1], {KA_W1}')
    if FT: e(f's_load_dwordx8 s[64:71], s[0:1], {KA_C}'); e('v_mov_b32 v15, v0'); e('s_and_b32 s84, s2, 7'); e('s_lshr_b32 s85, s2, 3')
    stamp(st, cfg, 0)
    lg = {1: 0, 2: 1, 4: 2, 8: 3}[cfg.G]
    e('s_and_b32 s60, s2, 7'); e('s_lshr_b32 s61, s2, 3')
    e(f's_lshl_b32 s{S_G}, s60, {lg}'); e(f's_and_b32 s{S_G}, s{S_G}, 7'); e(f's_and_b32 s62, s61, {cfg.G - 1}'); e(f's_add_u32 s{S_G}, s{S_G}, s62')
    e(f's_lshr_b32 s60, s60, {3 - lg}'); e(f's_lshl_b32 s60, s60, {5 - lg}'); e(f's_lshr_b32 s{S_PF}, s61, {lg}'); e(f's_add_u32 s{S_RB}, s60, s{S_PF}')
    e('v_lshrrev_b32 v4, 6, v0'); e('v_and_b32 v0, 63, v0'); e(f'v_readfirstlane_b32 s{S_W}, v4')
    e(f'v_and_b32 v{V_R}, 15, v0'); e(f'v_lshrrev_b32 v{V_G}, 4, v0')
    e(f'v_and_b32 v4, 1, v{V_G}'); e('v_lshlrev_b32 v4, 1, v4'); e(f'v_lshrrev_b32 v5, 1, v{V_G}'); e(f'v_or_b32 v{V_PI}, v4, v5')
    e(f's_lshl_b32 s{S_WB}, s{S_W}, 12')
    if cfg.cpf:
        e('s_lshr_b32 s60, s2, 3'); e('s_lshl_b32 s60, s60, 2'); e(f's_add_u32 s60, s60, s{S_W}')
        code_prefetch(st, 'k1', 'L_k1_end', 60, 4, ar(A_DUMMY, 4))
    if not cfg.krot: e(f's_mov_b32 s{S_ROT}, 0')
    else: e(f's_and_b32 s{S_ROT}, s{S_PF}, {cfg.rotmask}'); e(f's_lshl_b32 s{S_ROT}, s{S_ROT}, {cfg.rotsh}')
    e('v_lshlrev_b32 v7, 4, v0'); e(f's_lshl_b32 s62, s{S_ROT}, 2')
    e(f's_lshl_b32 s60, s{S_RB}, 16'); e(f's_lshl_b32 s61, s{S_W}, 14'); e('s_add_u32 s60, s60, s61'); e(f's_add_u32 s61, s61, {R3}')
    def x_off():
        for i in range(16):
            e(f'v_xad_u32 v{V_ACC + i}, v0, {i}, s62'); e(f'v_and_b32 v{V_ACC + i}, 63, v{V_ACC + i}'); e(f'v_lshlrev_b32 v{V_ACC + i}, 4, v{V_ACC + i}')
    if not F: x_off()
    e('s_waitcnt lgkmcnt(0)')
    QREG = lambda s: [R0, R2, R1][(s - 13) % 3]
    MODL = QREG(2) + 16384
    if F:
        srd(e, S_WS, 58, 59, WS_PART); srd(e, 80, 70, 71, 256)
        tail.mod_loads(st, cfg); tail.clear_counters(st, cfg); x_off()
    srd(e, S_X, 48, 49, 2048 * 1024)
    def x_dma(st):
        st.e('s_mov_b32 s76, s77')
        for i in range(16):
            if i % 4 == 0:
                st.e(f's_add_u32 m0, s78, {1024 * i}')
                st.e('s_add_u32 s76, s76, 4096' if i else 's_nop 0')
            st.vm(f'buffer_load_dwordx4 v{V_ACC + i}, {sr(S_X, 4)}, s76 offen offset:{1024 * (i % 4)} lds', 'x')
    e('s_mov_b32 s77, s60'); e('s_mov_b32 s78, s61')
    def x_early():
        if F:
            e(f's_cmp_lt_u32 s87, {tail.NU}'); e('s_cbranch_scc1 L_f_xlate'); st.cond = 'xearly'
        x_dma(st)
        if F: st.cond = False; e('L_f_xlate:')
    if not (F and cfg.xdelay): x_early()
    if F: tail.mod_urgent(st, cfg, MODL + 4096, x_dma)
    if not F:
        srd(e, S_WS, 58, 59, WS_PART if FT else 0x1000)
        e(f's_lshl_b32 s62, s{S_ROT}, 8'); e('v_add_u32 v6, s62, v7')
        for j in range(4):
            e(f's_add_u32 m0, s{S_WB}, {MODL + 1024 * j}'); e(f'v_add_u32 v5, {1024 * j}, v6'); e('v_and_b32 v5, 0xfff, v5')
            st.vm(f'buffer_load_dwordx4 v5, {sr(S_WS, 4)}, 0 offen lds', 'mod')
    e(f's_lshl_b32 s62, s{S_G}, 10'); e(f's_sub_u32 s63, {512 * 8192}, s62')
    srd(e, S_WQ, 54, 55, 's63', off='s62')
    e(f's_lshl_b32 s61, s{S_W}, 8'); e('v_lshrrev_b32 v8, 3, v0'); e(f'v_lshl_add_u32 v8, v8, 13, s61')
    e('v_and_b32 v5, 7, v0'); e(f'v_and_b32 v4, 1, v{V_G}'); e('v_lshlrev_b32 v4, 1, v4'); e('v_xor_b32 v4, v4, v5')
    e('v_lshl_add_u32 v9, v4, 4, v8'); e('v_xor_b32 v4, 4, v4'); e('v_lshl_add_u32 v10, v4, 4, v8')
    for j in range(8): e(f'v_add_u32 {vr(V_DWQ + j)}, {65536 * j - 1024 * (j % 4)}, v{9 + (j & 1)}')
    e(f's_lshl_b32 s{S_OFFW}, s{S_ROT}, 18')
    def wq_dma(s):
        if s % 2 == 0: return w_dma('wq', s, QREG(s), V_DWQ, S_WQ, S_OFFW, [f's_add_u32 s3, s{S_OFFW}, 128'])
        return w_dma('wq', s, QREG(s), V_DWQ, S_WQ, 3, [f's_add_u32 s{S_OFFW}, s{S_OFFW}, 524288', f's_and_b32 s{S_OFFW}, s{S_OFFW}, 0x3fffff'])
    def wo_dma(s):
        return w_dma('wo', s, OREG(s), V_DWO, S_WO, S_OFFW, [f's_add_u32 s{S_OFFW}, s{S_OFFW}, {65536 + (128 if s == 7 else 0)}', f's_and_b32 s{S_OFFW}, s{S_OFFW}, 0x7ffff'])
    OREG = lambda s: [R4, R0, R3][s % 3]
    wq_early = wq_dma(0) + wq_dma(1)
    wq2 = wq_dma(2)
    wq_early += wq2[:5]; wq_late = wq2[5:]
    emit_ops(st, wq_early[:cfg.npre]); wq_early = wq_early[cfg.npre:]
    ndum = [0]
    def pf(voff, srdr, soff, imm=0):
        r = A_DUMMY + 4 * (ndum[0] % 3); ndum[0] += 1
        return (f'buffer_load_dwordx4 {ar(r, 4)}, {voff}, {sr(srdr, 4)}, {soff} offen offset:{imm}', 'pf')
    pfo = []
    if cfg.pfq:
        pfo += [(f's_lshl_b32 s5, s{S_PF}, {17 + lg}', None), (f's_lshl_b32 s6, s{S_W}, {15 + lg}', None), ('s_add_u32 s5, s5, s6', None)]
        for i in range(4 * cfg.G): pfo += [pf('v7', S_WQ, 's5'), ('s_add_u32 s5, s5, 8192', None)]
    if cfg.prefetch:
        pfo += [(f's_lshl_b32 s5, s{S_PF}, {11 + lg}', None), (f's_lshl_b32 s6, s{S_W}, {9 + lg}', None), ('s_add_u32 s5, s5, s6', None)]
        for i in range(max(1, cfg.G // 2)): pfo += [pf('v7', S_K, 's5', 1024 * i), pf('v7', S_V, 's5', 1024 * i)]
    pfwo = [(f's_lshl_b32 s5, s{S_RB}, 14', None), (f's_add_u32 s5, s5, s{S_WB}', None)] + [pf('v252', S_WO, 's5', 1024 * i) for i in range(4)]
    e(f's_lshl_b32 s62, s{S_G}, 19')
    srd(e, S_K, 50, 51, 524288, off='s62'); srd(e, S_V, 52, 53, 524288, off='s62')
    srd(e, S_WO, 56, 57, 524288, off='s62')
    e(f's_lshl_b32 s62, s{S_G}, 21'); e(f's_add_u32 s62, s62, {WS_PART}')
    srd(e, S_PART, 58, 59, 1 << 21, off='s62')
    e('s_and_b32 s61, s2, 1'); e('s_mul_i32 s62, s61, 1792'); e(f's_sub_u32 s63, {512 * 3584}, s62'); srd(e, 92, 4, 5, 's63', off='s62')
    e('s_lshl_b32 s62, s61, 9'); e(f's_sub_u32 s63, {512 * 3584}, s62'); srd(e, 96, 6, 7, 's63', off='s62')
    e('s_lshr_b32 s4, s2, 3'); e('s_lshl_b32 s4, s4, 2'); e(f's_add_u32 s4, s4, s{S_W}'); e(f's_mul_i32 s7, s4, {14 * 1024}'); e(f's_mul_i32 s4, s4, {4 * 3584}')
    e('v_lshrrev_b32 v251, 5, v0'); e('v_lshlrev_b32 v251, 10, v251'); e('v_and_b32 v4, 31, v0'); e('v_lshl_add_u32 v251, v4, 4, v251')
    e('v_lshlrev_b32 v252, 4, v0')
    e(f's_mov_b32 s{S_OFFK}, 0'); e(f's_mov_b32 s{S_OFFV}, 0'); e(f's_add_u32 s{S_M0V}, s{S_WB}, {LDS_V}'); e(f's_mov_b32 s{S_FLAG}, 0')
    for ks in range(4):
        e(f'v_add_u32 v5, {4 * ks}, v{V_PI}'); e(f'v_xor_b32 v5, v5, v{V_R}'); e('v_lshlrev_b32 v5, 4, v5'); e(f'v_lshl_add_u32 {vr(V_KA + ks)}, v{V_R}, 8, v5')
    e(f'v_lshrrev_b32 v11, 2, v{V_R}'); e(f'v_and_b32 v12, 3, v{V_R}'); e('v_lshlrev_b32 v12, 3, v12')
    e(f'v_lshl_add_u32 v5, v{V_G}, 2, v11'); e('v_and_b32 v13, 7, v5'); e('v_lshl_add_u32 v14, v5, 8, v12'); e(f'v_add_u32 v14, {LDS_V}, v14')
    for db in range(8): e(f'v_xor_b32 v4, {db}, v13'); e(f'v_lshl_add_u32 {vr(V_VA + db)}, v4, 5, v14')
    e(f'v_lshl_add_u32 v9, v{V_G}, 8, s{S_WB}')
    for j in range(4): e(f'v_add_u32 v5, {4 * j}, v{V_G}'); e(f'v_xor_b32 v5, v5, v{V_R}'); e(f'v_lshl_add_u32 {vr(V_DK + j)}, v5, 4, v9')
    for j in range(2): e(f'v_add_u32 v5, {4 * j}, v{V_G}'); e('v_lshlrev_b32 v5, 1, v5'); e(f'v_xor_b32 v5, v5, v{V_R}'); e(f'v_lshl_add_u32 {vr(V_DV + j)}, v5, 4, v9')
    e(f's_lshl_b32 s61, s{S_W}, 8'); e('v_lshrrev_b32 v8, 3, v0'); e(f'v_lshl_add_u32 v8, v8, 10, s61')
    e('v_and_b32 v5, 7, v0'); e(f'v_lshlrev_b32 v4, 1, v{V_G}'); e('v_xor_b32 v4, v4, v5'); e(f'v_lshl_add_u32 {vr(V_DWO)}, v4, 4, v8')
    for j in range(1, 8): e(f'v_add_u32 {vr(V_DWO + j)}, {8192 * j - 1024 * (j % 4)}, {vr(V_DWO)}')
    e(f'v_and_b32 v4, 1, v{V_G}'); e(f'v_lshrrev_b32 v13, 3, v{V_R}'); e('v_lshl_add_u32 v13, v4, 1, v13')
    e(f'v_lshl_add_u32 v5, v{V_G}, 3, v11'); e('v_lshl_add_u32 v14, v5, 7, v12'); e(f'v_add_u32 v14, s{S_WB}, v14')
    for nb in range(4):
        e(f'v_xor_b32 v4, {nb}, v13'); e(f'v_lshl_add_u32 {vr(V_TA[0] + nb)}, v4, 5, v14'); e(f'v_add_u32 {vr(V_TA[1] + nb)}, {R2}, {vr(V_TA[0] + nb)}')
    e(f'v_add_u32 {vr(V_BA)}, {R3}, v7')
    e(f's_lshl_b32 s61, s{S_W}, 14'); e(f'v_add_u32 v8, s61, {vr(V_BA)}')
    e(f's_add_u32 s62, s{S_WB}, {MODL}' if not F else f's_mov_b32 s62, {MODL}'); e(f'v_lshl_add_u32 v9, v{V_G}, 5, s62')
    e(f's_add_u32 s61, s61, {R3}'); e(f'v_lshl_add_u32 v14, v{V_R}, 10, s61')
    for k in range(4): e(f'v_add_u32 v4, {4 * k}, v{V_G}'); e(f'v_xor_b32 v4, v4, v{V_R}'); e(f'v_lshl_add_u32 v{10 + k}, v4, 4, v14')
    zero = [f'v_accvgpr_write_b32 a{A_O + i}, 0' for i in range(128)] + [f'v_accvgpr_write_b32 a{A_L + i}, 0' for i in range(16)]
    zero += ['v_mov_b32 v5, 0x3f803f80'] + [f'v_accvgpr_write_b32 a{A_ONE + i}, v5' for i in range(4)]
    if F and cfg.xdelay == 1: x_early()
    if cfg.zearly:
        for z in zero: e(z)
    if F and cfg.xdelay == 2: x_early()
    main = st; st = Stream(); e = st.e
    if F: tail.x_wait(main, cfg)
    else: main.wait(vm=['x'])
    for ks in range(16): main.lds(f'ds_read_b128 {vr(V_ACC + 8 * ks + 4, 4)}, v{10 + ks % 4} offset:{(ks // 4) * 256}', ('x', ks))
    stamp(main, cfg, 1)
    if cfg.fused == 2 and cfg.stamps: main.e('v_writelane_b32 v253, s88, 2'); main.e('v_writelane_b32 v253, s88, 3'); main.e('v_writelane_b32 v254, s90, 2'); main.e('v_writelane_b32 v254, s90, 3')
    for ks in range(16):
        b = V_ACC + 8 * ks
        if ks % 2 == 0: st.wait(lds=[('x', ks + 1)])
        for j in range(4):
            e(f'v_lshlrev_b32 v{b + 2 * j}, 16, v{b + 4 + j}'); e(f'v_and_b32 v{b + 2 * j + 1}, 0xffff0000, v{b + 4 + j}')
        for j in range(4):
            if ks == 0: continue
            a = V_HO + 2 * j
            e(f'v_pk_add_f32 {vr(a, 2)}, {vr(b + 2 * j, 2)}, {vr(a, 2) if ks > 1 else vr(V_ACC + 2 * j, 2)}')
    a = V_HO
    e(f'v_pk_add_f32 {vr(a, 2)}, {vr(a, 2)}, {vr(a + 2, 2)}'); e(f'v_pk_add_f32 {vr(a + 4, 2)}, {vr(a + 4, 2)}, {vr(a + 6, 2)}')
    e(f'v_pk_add_f32 {vr(a, 2)}, {vr(a, 2)}, {vr(a + 4, 2)}'); e(f'v_add_f32 v4, v{a}, v{a + 1}')
    xlane_reduce(e, [4], [5], 'v_add_f32')
    e(f'v_mul_f32 v4, {f2h(-1.0 / 512)}, v4')
    for ks in range(16):
        b = V_ACC + 8 * ks
        for j in range(4): e(f'v_pk_add_f32 {vr(b + 2 * j, 2)}, {vr(b + 2 * j, 2)}, v[4:5] op_sel_hi:[1,0]')
        for j in range(4):
            if ks == 0: e(f'v_pk_mul_f32 {vr(a + 2 * j, 2)}, {vr(b + 2 * j, 2)}, {vr(b + 2 * j, 2)}')
            else: e(f'v_pk_fma_f32 {vr(a + 2 * j, 2)}, {vr(b + 2 * j, 2)}, {vr(b + 2 * j, 2)}, {vr(a + 2 * j, 2)}')
    def modrd(ks):
        m = V_MOD + 16 * (ks % 2)
        for j in range(4): st.lds(f'ds_read_b128 {vr(m + 4 * j, 4)}, v9 offset:{ks * 256 + (j // 2) * 128 + (j % 2) * 16}', ('mod', ks))
    if not F: st.wait(vm=['mod']); modrd(0); modrd(1)
    e(f'v_pk_add_f32 {vr(a, 2)}, {vr(a, 2)}, {vr(a + 2, 2)}'); e(f'v_pk_add_f32 {vr(a + 4, 2)}, {vr(a + 4, 2)}, {vr(a + 6, 2)}')
    e(f'v_pk_add_f32 {vr(a, 2)}, {vr(a, 2)}, {vr(a + 4, 2)}'); e(f'v_add_f32 v4, v{a}, v{a + 1}')
    xlane_reduce(e, [4], [5], 'v_add_f32')
    e(f'v_mov_b32 v5, {f2h(1e-5)}'); e(f'v_fmac_f32 v5, {f2h(1.0 / 512)}, v4'); e('v_rsq_f32 v4, v5'); e('s_nop 0')
    if F:
        for ks in range(16):
            for j in range(4): e(f'v_pk_mul_f32 {vr(V_ACC + 8 * ks + 2 * j, 2)}, {vr(V_ACC + 8 * ks + 2 * j, 2)}, v[4:5] op_sel_hi:[1,0]')
        left = interleave(main, st, (wq_early + pfo)[:len(wq_early + pfo) - cfg.wqlate], 0, cfg.lnev)
        st = main; e = st.e
        emit_ops(st, left)
        if cfg.wqlate: wq_late = (wq_early + pfo)[-cfg.wqlate:] + wq_late
        stamp(st, cfg, 9)
        tail.mod_fetch(st, cfg, MODL, S_ROT)
        stamp(st, cfg, 10)
        modrd(0); modrd(1)
        emit_ops(st, tail.rest_loads())
    for ks in range(16):
        b = V_ACC + 8 * ks; m = V_MOD + 16 * (ks % 2); ho = V_HO + 4 * (ks % 2)
        if not F:
            for j in range(4): e(f'v_pk_mul_f32 {vr(b + 2 * j, 2)}, {vr(b + 2 * j, 2)}, v[4:5] op_sel_hi:[1,0]')
        st.wait(lds=[('mod', ks)])
        for j in range(4): e(f'v_pk_fma_f32 {vr(b + 2 * j, 2)}, {vr(b + 2 * j, 2)}, {vr(m + 2 * j, 2)}, {vr(m + 8 + 2 * j, 2)}')
        if ks + 2 < 16: modrd(ks + 2)
        for j in range(4): e(f'v_cvt_pk_bf16_f32 v{ho + j}, v{b + 2 * j}, v{b + 2 * j + 1}')
        st.lds(f'ds_write_b128 v8, {vr(ho, 4)} offset:{ks * 1024}', 'hw')
    if not F:
        body = st; st = main; e = st.e
        left = interleave(st, body, wq_early + pfo, 0, cfg.lnev)
        emit_ops(st, left + wq_late); wq_late = []
    st.wait(lds='all'); e('s_barrier')
    stamp(st, cfg, 2)
    def ta_q(s):
        r = QREG(s); return (V_TA[1], 0) if r == R2 else (V_TA[0], r)
    def refill_q(s):
        if s + 3 < 16: return wq_dma(s + 3)
        return {13: kv_dma('K', 0) + kv_dma('K', 1), 14: kv_dma('V', 0) + kv_dma('V', 1), 15: kv_dma('K', 2) + kv_dma('K', 3)}[s]
    gemm(st, cfg, 'wq', [(s // 2, s % 2) for s in range(16)], ta_q, 512, V_BA, lambda ks, qb: qb * 16384 + ks * 1024, refill_q, [] if cfg.zearly else zero, first_ops=wq_late, late=(2, tail.rest_math()) if F else None)
    stamp(st, cfg, 3)
    e('s_nop 3')
    for ks in range(4):
        for qb in range(4):
            d = V_Q + (qb * 4 + ks) * 4; a0 = ACC(2 * ks, qb); a1 = ACC(2 * ks + 1, qb)
            e(f'v_cvt_pk_bf16_f32 v{d}, v{a0}, v{a0 + 1}'); e(f'v_cvt_pk_bf16_f32 v{d + 1}, v{a0 + 2}, v{a0 + 3}')
            e(f'v_cvt_pk_bf16_f32 v{d + 2}, v{a1}, v{a1 + 1}'); e(f'v_cvt_pk_bf16_f32 v{d + 3}, v{a1 + 2}, v{a1 + 3}')
        e('s_nop 0')
        for qb in range(4):
            d = V_Q + (qb * 4 + ks) * 4
            e(f'v_permlane16_swap_b32 v{d}, v{d + 2}'); e(f'v_permlane16_swap_b32 v{d + 1}, v{d + 3}')
    st.wait(vm=[('dK', 0)]); e('s_barrier')
    emit_ops(st, kv_dma('V', 2))
    if F: tail.rest_share(st, R4)
    st.mark('attn_start')
    def rawA(st): schedule(st, groups_A(0, cfg, raw=True) + groups_A(1, cfg, raw=True), RING, 16, primed=8)
    def tile_max(first, st):
        e = st.e
        for qb in range(4):
            regs = [Sreg(b, kb, qb) + i for b in range(2) for kb in range(2) for i in range(4)]
            m = 4 + qb
            if first:
                e(f'v_max3_f32 v{m}, v{regs[0]}, v{regs[1]}, v{regs[2]}')
                for i in range(3, 15, 2): e(f'v_max3_f32 v{m}, v{m}, v{regs[i]}, v{regs[i + 1]}')
                e(f'v_max_f32 v{m}, v{m}, v{regs[15]}')
            else:
                for i in range(0, 16, 2): e(f'v_max3_f32 v{m}, v{m}, v{regs[i]}, v{regs[i + 1]}')
    def make_negm(st):
        e = st.e
        xlane_reduce(e, [4, 5, 6, 7], [8, 9, 10, 11], 'v_max_f32')
        for qb in range(4):
            for i in range(4): e(f'v_sub_f32 {vr(V_NEGM + 4 * qb + i)}, {f2h(-cfg.B)}, v{4 + qb}')
    rawA(st)
    e(f's_cmp_lg_u32 s{S_FLAG}, 0'); e('s_nop 6'); e('s_cbranch_scc1 L_k1_havemax')
    tile_max(True, st); make_negm(st)
    e('L_k1_havemax:')
    for b in range(2):
        for kb in range(2):
            for qb in range(4):
                s = Sreg(b, kb, qb)
                for i in (0, 2): e(f'v_pk_add_f32 {vr(s + i, 2)}, {vr(s + i, 2)}, {vr(V_NEGM + 4 * qb, 2)}')
    st.wait(lds='all', vm=[('dK', 1), ('dV', 0)]); e('s_barrier')
    if F:
        e(f's_cmp_lg_u32 s{S_FLAG}, 0'); e('s_cbranch_scc1 L_f_norest'); tail.rest_store(st, R4)
    pfw1 = []; pfw2 = []
    for r in range(4):
        pfw1 += [(f's_add_u32 s5, s4, {r * 3584}', None), pf('v252', 92, 's5'), pf('v252', 92, 's5', 768)]
    for r in range(7):
        pfw2 += [(f's_add_u32 s5, s7, {r * 2048}', None), pf('v251', 96, 's5')]
    def tail_extra(t):
        if t == 28: return pfwo + (pfw1[:6] if cfg.pfw else [])
        if t == 29: return [(f's_lshl_b32 s{S_OFFW}, s{S_ROT}, 15', None)] + wo_dma(0) + (pfw2 if cfg.pfw else [])
        if t == 30: return wo_dma(1) + (pfw1[6:] if cfg.pfw else [])
        return []
    attn_main(st, cfg, tail_extra)
    stamp(st, cfg, 5)
    e('s_setreg_imm32_b32 hwreg(HW_REG_MODE, 4, 2), 3')
    e(f'v_lshrrev_b32 v5, 2, v{V_R}'); e(f'v_lshl_add_u32 v5, v{V_G}, 2, v5'); e('v_bfe_u32 v6, v5, 1, 2'); e(f'v_and_b32 v7, 3, v{V_R}'); e('v_lshlrev_b32 v7, 3, v7')
    e('v_lshl_add_u32 v7, v5, 7, v7'); e(f'v_add_u32 v7, s{S_WB}, v7')
    for nb in range(4): e(f'v_xor_b32 v5, {nb}, v6'); e(f'v_lshl_add_u32 {vr(V_TO[0] + nb)}, v5, 5, v7'); e(f'v_add_u32 {vr(V_TO[1] + nb)}, {R3}, {vr(V_TO[0] + nb)}')
    for qb in range(4): e(f'v_accvgpr_read_b32 v{4 + qb}, a{A_L + 4 * qb}')
    e(f'v_mov_b32 v12, {f2h(cfg.thr)}')
    e('v_max3_f32 v8, v4, v5, v6'); e('v_max_f32 v8, v8, v7')
    for qb in range(4): e(f'v_add_f32 v{9}, v{4 + qb}, {"v9" if qb else "0"}')
    e('v_cmp_nlt_f32 vcc, v8, v12'); e('v_cmp_u_f32 s[62:63], v9, v9')
    for qb in range(4): e(f'v_rcp_f32 v{4 + qb}, v{4 + qb}')
    e('s_or_b64 vcc, vcc, s[62:63]'); e('s_cmp_lg_u64 vcc, 0'); e('s_cselect_b32 s61, 1, 0')
    e('v_and_b32 v10, 3, v0'); e('v_lshlrev_b32 v10, 12, v10'); e(f's_lshl_b32 s62, s{S_W}, 2'); e(f's_add_u32 s62, s62, {R3}'); e('v_add_u32 v10, s62, v10')
    e('v_mov_b32 v11, s61'); st.lds('ds_write_b32 v10, v11', 'flagw')
    e('v_lshlrev_b32 v14, 4, v0'); e(f's_lshl_b32 s61, s{S_W}, 2'); e(f's_sub_u32 s61, s61, s{S_ROT}')
    for m in range(4):
        e(f's_add_u32 s62, s61, {m}'); e('s_and_b32 s62, s62, 15'); e('s_lshl_b32 s62, s62, 12'); e(f's_add_u32 s62, s62, {R1}'); e(f'v_add_u32 v{V_P + m}, s62, v14')
    k = 0
    for qb in range(4):
        for m in range(4):
            t = V_S[0] + 16 * (k % 4); k += 1
            for hb in range(2):
                for i in range(4): e(f'v_accvgpr_read_b32 v{t + 4 * hb + i}, a{A_O + ((2 * m + hb) * 4 + qb) * 4 + i}')
            sel = f'v[{4 + qb}:{5 + qb}] op_sel_hi:[1,0]' if qb % 2 == 0 else f'v[{3 + qb}:{4 + qb}] op_sel:[0,1] op_sel_hi:[1,1]'
            for i in range(4): e(f'v_pk_mul_f32 {vr(t + 2 * i, 2)}, {vr(t + 2 * i, 2)}, {sel}')
            for i in range(4): e(f'v_cvt_pk_bf16_f32 v{t + 8 + i}, v{t + 2 * i}, v{t + 2 * i + 1}')
            st.lds(f'ds_write_b128 v{V_P + m}, {vr(t + 8, 4)} offset:{qb * 1024}', 'ow')
    e(f'v_add_u32 v{V_BO}, {R1}, v14'); e(f's_add_u32 s61, s{S_WB}, {R3}'); e('v_mov_b32 v10, s61')
    st.wait(lds='all'); e('s_barrier')
    st.lds('ds_read_b128 v[4:7], v10', 'flagr'); st.wait(lds=['flagr'])
    e('v_or3_b32 v4, v4, v5, v6'); e('v_or_b32 v4, v4, v7'); e('s_nop 0'); e('v_readfirstlane_b32 s61, v4'); e('s_nop 3')
    e(f's_andn2_b32 s61, s61, s{S_FLAG}'); e('s_cbranch_scc1 L_k1_slow')
    if F:
        e(f's_mov_b32 s61, {tail.CNT_MB}'); tail.signal(st, S_WS, 's61', 'L_f_sigb')
    stamp(st, cfg, 6)
    def ta_o(s):
        r = OREG(s); return (V_TO[0], 0) if r == R0 else (V_TO[1], r - R3)
    def refill_o(s): return wo_dma(s + 3) if s + 3 < 16 else []
    sadr = [f'v_lshrrev_b32 v4, 1, v{V_R}', 'v_lshlrev_b32 v4, 11, v4', f'v_lshl_add_u32 v4, v{V_PI}, 5, v4', f'v_and_b32 v5, 1, v{V_R}', 'v_lshl_add_u32 v4, v5, 4, v4',
            f's_lshl_b32 s48, s{S_RB}, 16', f's_lshl_b32 s62, s{S_W}, 9', 's_add_u32 s48, s48, s62'] + [f's_add_u32 s{48 + qb}, s48, {16384 * qb}' for qb in range(1, 4)]
    def out_half(h):
        ops = []
        for qb in range(4):
            for m in (2 * h, 2 * h + 1):
                d = V_Q + (qb * 4 + m) * 4; a0 = ACC(2 * m, qb); a1 = ACC(2 * m + 1, qb)
                ops += [f'v_cvt_pk_bf16_f32 v{d}, v{a0}, v{a0 + 1}', f'v_cvt_pk_bf16_f32 v{d + 1}, v{a0 + 2}, v{a0 + 3}',
                        f'v_cvt_pk_bf16_f32 v{d + 2}, v{a1}, v{a1 + 1}', f'v_cvt_pk_bf16_f32 v{d + 3}, v{a1 + 2}, v{a1 + 3}']
            for m in (2 * h, 2 * h + 1):
                d = V_Q + (qb * 4 + m) * 4
                ops += [f'v_permlane16_swap_b32 v{d}, v{d + 2}', f'v_permlane16_swap_b32 v{d + 1}, v{d + 3}']
            for m in (2 * h, 2 * h + 1):
                ops.append((f'buffer_store_dwordx4 {vr(V_Q + (qb * 4 + m) * 4, 4)}, v4, {sr(S_PART, 4)}, s{48 + qb} offen offset:{m * 128}{SC}', 'st'))
        return ops
    gemm(st, cfg, 'wo', [(s % 8, s // 8) for s in range(16)], ta_o, 2048, V_BO, lambda ks, qb: ks * 4096 + qb * 1024, refill_o, sadr,
         first_ops=wo_dma(2), late=(cfg.ost, out_half(0)))
    stamp(st, cfg, 7)
    e('s_nop 7')
    for x in out_half(1):
        if isinstance(x, tuple): st.vm(*x)
        else: e(x)
    if FT: tail.tail(st, cfg)
    else: stamp_out(st, cfg, 1, 8, 58, S_W)
    e('s_endpgm')
    segs, order = split_marks(st.resolve())
    NL = 28
    for t in range(4, NL):
        if segs[f'it{t}'] != segs[f'it{t - 4}']:
            import difflib, sys
            sys.stderr.write('\n'.join(list(difflib.unified_diff(segs[f'it{t - 4}'], segs[f'it{t}'], lineterm='', n=2))[:60]) + '\n')
            raise SystemExit(f'iteration {t} differs')
    if cfg.strip:
        import re
        pat = re.compile(cfg.strip.replace('+', '|'))
        for t in range(NL): segs[f'it{t}'] = [x for x in segs[f'it{t}'] if not pat.match(x)]
    out = header(name) + segs['_start'] + ['L_k1_attn_start:'] + segs['attn_start']
    tmp = Stream(); stamp(tmp, cfg, 4); out += tmp.resolve()
    out += [f's_mov_b32 s{S_CNT}, {NL // 4}', '.p2align 6', 'L_k1_loop:']
    for t in range(4): out += segs[f'it{t}']
    out += [f's_sub_u32 s{S_CNT}, s{S_CNT}, 1', f's_cmp_lg_u32 s{S_CNT}, 0', 's_cbranch_scc1 L_k1_loop']
    for t in range(NL, NT): out += segs[f'it{t}']
    out += segs['end']
    st = Stream(); e = st.e
    e('L_k1_slow:')
    e(f's_mov_b32 s{S_FLAG}, 1'); e('s_setreg_imm32_b32 hwreg(HW_REG_MODE, 4, 2), 0')
    e('s_waitcnt vmcnt(0) lgkmcnt(0)'); e('s_barrier')
    e(f's_mov_b32 s{S_OFFK}, 0'); e(f's_mov_b32 s{S_CNT}, {NT}')
    for qb in range(4): e(f'v_mov_b32 v{4 + qb}, 0xff800000')
    e('L_k1_slow_loop:')
    emit_ops(st, kv_dma('K', 0)); st.wait(vm='all'); e('s_barrier')
    rawA(st)
    e('s_nop 7'); tile_max(False, st)
    e('s_barrier')
    e(f's_sub_u32 s{S_CNT}, s{S_CNT}, 1'); e(f's_cmp_lg_u32 s{S_CNT}, 0'); e('s_cbranch_scc1 L_k1_slow_loop')
    make_negm(st)
    for z in zero: e(z)
    e(f's_mov_b32 s{S_OFFK}, 0'); e(f's_mov_b32 s{S_OFFV}, 0')
    for w_, t_ in [('K', 0), ('K', 1), ('V', 0), ('V', 1), ('K', 2), ('K', 3), ('V', 2)]: emit_ops(st, kv_dma(w_, t_))
    st.wait(vm='all'); e('s_barrier'); e('s_branch L_k1_attn_start')
    out += st.resolve() + ['L_k1_end:', 's_endpgm']
    return out, kd(name, 512, 256, 102), f'; @launch {"" if F else "kernel=" + name + " "}grid=(256,1,1) block=(256,1,1) lds=163840'
```

```python
from gen_common import *
from engine import *

S_X, S_WQ, S_K, S_V, S_WO, S_WS, S_PART = 8, 12, 16, 20, 24, 28, 32
S_G, S_RB, S_W, S_WB = 36, 37, 38, 39
S_OFFK, S_OFFV, S_M0V, S_CNT, S_OFFW, S_FLAG = 40, 41, 43, 44, 45, 46
S_M0K = S_WB; S_PF = 47; S_ROT = 42
S_T = 48
V_R, V_G, V_PI = 1, 2, 3
V_Q = 16; V_S = [80, 112]; V_P = 144; V_NEGM = 208
V_KA = 224; V_VA = 228; V_DK = 236; V_DV = 240; V_DWO = 242; V_TO = [208, 212]; V_BO = 250
V_ACC = 80
V_DWQ = 16; V_TA = [24, 28]; V_BA = 40; V_MOD = 48; V_HO = 208
A_O = 0; A_FR = 128; A_BF = 128; A_L = 192; A_ONE = 208; A_AF = 212; A_DUMMY = 244
R0, R1, R2, R3, R4 = 0, 32768, 65536, 98304, 131072
LDS_V = R2
NT = 32
RING = [A_FR + 4 * i for i in range(16)]

def O(db, qb): return ar(A_O + (db * 4 + qb) * 4, 4)
def Q(qb, ks): return vr(V_Q + (qb * 4 + ks) * 4, 4)
def Lr(qb): return ar(A_L + qb * 4, 4)
def Sreg(buf, kb, qb): return V_S[buf] + (kb * 4 + qb) * 4
def Preg(h, qb): return V_P + (h % 4) * 16 + qb * 4
def ACC(nb, qb): return V_ACC + (nb * 4 + qb) * 4

class Cfg:
    lead = 20; spread = 0; xlead = 20; S0 = 62; XG = 6; nodma = 0; strip = ''; blead = 30; mw = 2; B = 102; dma_gap = 12; glead = 14; ggap = 1; bspread = 0; gspread = 0; stamps = 0; thr = 2.0 ** 64; prefetch = 0; cpf = 0; G = 4; pfq = 0; krot = 1; npre = 0
    h2sc = 0; k2nt = 1; k0pf = 0; lnev = 24; rot = 0; k3pre = 2; k4pre = 3; pfw = 1; chain = 1; fused = 0; tlb = 0; xdelay = 0; k0wait = 1; zearly = 1; w1early = 16; f1gap = 3; nprod = 96; wqlate = 0; f1pre = 12; f2pre = 2; rnt = 1; rotmask = 7; rotsh = 1; ost = 13

def groups_A(h, cfg, raw=False, gate=None):
    tile, hf = h // 2, h % 2
    gs = []
    for kb in range(2):
        off = (tile % 4) * 16384 + (32 * hf + 16 * kb) * 256
        us = [Unit(('K', h, kb, ks), (lambda r, ks=ks, off=off: [f'ds_read_b128 {ar(r, 4)}, {vr(V_KA + ks)} offset:{off}']), gate=gate, lead=cfg.lead + cfg.spread * (3 - ks)) for ks in range(4)]
        def mfs(regs, kb=kb):
            regs = regs or [0] * 4
            order = [(qb, ks if qb % 2 == 0 else 3 - ks, ks == 0, ks == 3) for qb in range(4) for ks in range(4)] if cfg.chain else \
                    [(qb, ks, ks == 0, ks == 3) for ks in range(4) for qb in range(4)]
            r = []
            for qb, ks, first, last in order:
                s = vr(Sreg(h % 2, kb, qb), 4)
                c = ('0' if raw else vr(V_NEGM + 4 * qb, 4)) if first else s
                r.append((f'{MF} {s}, {ar(regs[ks], 4)}, {Q(qb, ks)}, {c}', ('A', h, kb, qb, first, last)))
            return r
        gs.append(Group(mfs, us))
    return gs

def unit_V(h, db):
    off = ((h // 2) % 4) * 16384 + (32 * (h % 2)) * 256
    return Unit(('V', h, db), lambda r: [f'ds_read_b64_tr_b16 {ar(r, 2)}, {vr(V_VA + db)} offset:{off}',
                                          f'ds_read_b64_tr_b16 {ar(r + 2, 2)}, {vr(V_VA + db)} offset:{off + 4096}'])
def groups_C(hs, cfg):
    gs = []
    def order(qb):
        o = list(range(len(hs)))
        return o if qb % 2 == 0 else o[::-1]
    seq = [(qb, k) for qb in range(4) for k in order(qb)] if cfg.chain else [(qb, k) for k in range(len(hs)) for qb in range(4)]
    for db in range(8):
        def mfs(regs, db=db):
            regs = regs or [0] * 2
            return [(f'{MF} {O(db, qb)}, {ar(regs[k], 4)}, {vr(Preg(hs[k], qb), 4)}, {O(db, qb)}', ('C', hs[k], qb)) for qb, k in seq]
        us = [unit_V(h, db) for h in hs]
        for k, u in enumerate(us): u.lead = cfg.lead + cfg.spread * (len(hs) - 1 - k)
        gs.append(Group(mfs, us, wait_next=1 if db % 2 == 0 else 0))
    gs.append(Group(lambda regs: [(f'{MF} {Lr(qb)}, {ar(A_ONE, 4)}, {vr(Preg(hs[k], qb), 4)}, {Lr(qb)}', ('C', hs[k], qb)) for qb, k in seq]))
    return gs

def softmax_ops(h, start, base):
    exps = []; posts = []
    for kb in range(2):
        for qb in range(4):
            s = Sreg(h % 2, kb, qb)
            for i in range(4):
                exps.append((start + 2 * len(exps), f'v_exp_f32 {vr(s + i)}, {vr(s + i)}', (h, kb, qb)))
                if i & 1:
                    posts.append((base + len(exps), f'v_cvt_pk_bf16_f32 {vr(Preg(h, qb) + 2 * kb + i // 2)}, {vr(s + i - 1)}, {vr(s + i)}', start + 2 * len(exps) + 1, (h, kb, qb)))
    return exps, posts

def kv_dma(which, tile):
    slot = tile % 4
    m0, dv, srdr, off, nv = (S_M0K, V_DK, S_K, S_OFFK, 4) if which == 'K' else (S_M0V, V_DV, S_V, S_OFFV, 2)
    ops = [(f's_add_u32 m0, {sr(m0)}, {slot * 16384}', None)]
    for j in range(4):
        ops.append((f'buffer_load_dwordx4 {vr(dv + j % nv)}, {sr(srdr, 4)}, {sr(off)} offen offset:{j * 1024} lds', ('d' + which, tile)))
    ops.append((f's_add_u32 {sr(off)}, {sr(off)}, 16384', None))
    return ops

def w_dma(name, s, region, dv, srdr, soff, post):
    ops = []
    for j in range(8):
        if j % 4 == 0: ops.append((f's_add_u32 m0, {sr(S_WB)}, {region + (j // 4) * 16384}', None))
        ops.append((f'buffer_load_dwordx4 {vr(dv + j)}, {sr(srdr, 4)}, {sr(soff)} offen offset:{(j % 4) * 1024} lds', (name, s)))
    return ops + [(p, None) for p in post]

def attn_main(st, cfg, tail_extra):
    def window(t):
        ops = []
        if t + 3 < NT: ops += kv_dma('V', t + 3)
        if t + 4 < NT: ops += kv_dma('K', t + 4)
        return ops + tail_extra(t)
    def build():
        groups = []; gate = None; idx = 0; exps = []; posts = []
        e0, p0 = softmax_ops(0, -1000, 0); e1, p1 = softmax_ops(1, cfg.S0 + 66 - 136, 32)
        exps += e0 + e1; posts += p0 + p1
        for t in range(NT):
            if t < NT - 1:
                gs = groups_A(2 * t + 2, cfg, gate=gate) + groups_A(2 * t + 3, cfg, gate=gate)
                cs = groups_C([2 * t, 2 * t + 1], cfg)
                x = cs[cfg.XG]
                x.barrier = dict(vm=[('dV', t + 1)] + ([('dK', t + 2)] if t + 2 < NT else []), units=[u for g in cs for u in g.units], then=window(t + 1))
                for g in cs[cfg.XG:8]:
                    for u in g.units: u.lead = max(u.lead, cfg.xlead + 8 * (cs.index(g) - cfg.XG) + (u.lead - cfg.lead) // 2)
                gs += cs; ngate = x
                for k in range(2):
                    ee, pp = softmax_ops(2 * t + 2 + k, idx + cfg.S0 + 66 * k, 32 * (2 * t + 2 + k)); exps += ee; posts += pp
            else:
                gs = groups_C([2 * t], cfg) + groups_C([2 * t + 1], cfg)
                for g in gs:
                    for u in g.units: u.gate = gate; u.lead = min(cfg.lead, 14)
            gs[0].mark = f'it{t}'
            groups += gs; gate = ngate; idx += 136
        return groups, exps, posts
    def check_fn():
        spend = {}; sready = {}; pdone = {};
        def check(kind, key, i):
            if kind == 'mfma' and key[0] == 'A':
                _, h, kb, qb, first, last = key
                if first: assert spend.get((h % 2, kb, qb), 0) == 0, ('S overwritten early', key, i)
                if last: spend[(h % 2, kb, qb)] = 2; sready[(h, kb, qb)] = i
            elif kind == 'mfma' and key[0] == 'C':
                if key[1] >= 2: assert pdone.get((key[1], key[2]), (0, 0))[0] == 4 and pdone[(key[1], key[2])][1] < i - 1, ('P not ready', key, i)
                check.lastC[(key[1] % 4, key[2])] = (key[1], i)
            elif kind == 'trans':
                if key[0] >= 2: assert i >= sready[key] + 8, ('S not ready', key, i)
            elif kind == 'post':
                h, kb, qb = key
                if h >= 2: spend[(h % 2, kb, qb)] -= 1
                c = pdone.get((h, qb), (0, 0)); pdone[(h, qb)] = (c[0] + 1, i)
                if h >= 4: assert check.cnt_c(h - 4, qb), ('P overwritten early', key, i)
        check.lastC = {}
        seen = {}
        def wrap(kind, key, i):
            if kind == 'mfma' and key[0] == 'C': seen[(key[1], key[2])] = seen.get((key[1], key[2]), 0) + 1
            check(kind, key, i)
        check.cnt_c = lambda h, qb: seen.get((h, qb), 0) == 9
        return wrap
    def run(st, pre):
        groups, exps, posts = build()
        npre, lastoff, ntr0, npo0, primed = pre
        def after_prime(st, trans, posts, S):
            emit_ops(st, S['pend'][:npre]); S['pend'] = S['pend'][npre:]
            k = 0
            for n in range(ntr0):
                st.e(trans.pop(0)[1])
                while k < npo0 and posts[0][0] <= n: st.e(posts.pop(0)[1]); k += 1
            st.e('s_nop 0')
            while k < npo0: st.e(posts.pop(0)[1]); k += 1
            S['ntr'] = ntr0
        S = dict(pend=window(0), lastdma=lastoff, after_prime=after_prime)
        nl = 136 * (NT - 1)
        exps = [(min(a, nl), b, c) for a, b, c in exps]
        posts = [(a, b, min(c, nl), d) for a, b, c, d in posts]
        S = schedule(st, groups, RING, cfg.lead, exps, posts, side_gap=lambda i: cfg.dma_gap if i < 136 * 28 else 6, state=S, primed=primed, check=check_fn(), dense_from=nl, max_wide=cfg.mw)
        st.mark('end')
        return S['log'], len(exps), len(posts)
    log, ne, npo = run(Stream(), (3, -1000, 32 + (136 - cfg.S0 - 66 + 1) // 2, 16 + (136 - cfg.S0 - 66 + 1) // 4, 4))
    def norm(t):
        c, ld, nt, npp, rq = log[f'it{t}']
        return (c, ld, ne - nt - 64 * t, npo - npp - 32 * t, rq - 32 * t)
    n = norm(3)
    assert all(norm(t) == n for t in range(3, NT - 4)), [norm(t) for t in range(2, 8)]
    run(st, n)

def gemm(st, cfg, name, stages, ta, joff, vba, baddr, refill, extra, first_ops=(), late=None):
    groups = []; bcur = None; nb_sets = 0; seen = set()
    for s, (kp, half) in enumerate(stages):
        vb, ib = ta(s)
        newb = bcur is None or bcur[0] != kp or stages[s - 1][1] == half
        if newb:
            base = A_BF + 32 * (nb_sets % 2); nb_sets += 1
            bu = [Unit((name + 'B', s, k, qb), (lambda r, k=k, qb=qb, kp=kp: [f'ds_read_b128 {ar(r, 4)}, {vr(vba)} offset:{baddr(2 * kp + k, qb)}']), reg=base + 16 * k + 4 * qb, lead=cfg.blead - cfg.bspread * (2 * qb + k))
                  for qb in range(4) for k in range(2)]
            bcur = (kp, bu)
        bu = bcur[1]
        for n4 in range(4):
            nb = 4 * half + n4
            au = [Unit((name + 'A', s, n4, k), (lambda r, k=k, n4=n4, vb=vb, ib=ib: [f'ds_read_b64_tr_b16 {ar(r, 2)}, {vr(vb + n4)} offset:{ib + 16384 * k}',
                                                                                 f'ds_read_b64_tr_b16 {ar(r + 2, 2)}, {vr(vb + n4)} offset:{ib + 16384 * k + joff}']),
                       vm=(name, s) if n4 == 0 and k == 0 and not (cfg.nodma and s > 2) else None, lead=cfg.glead + cfg.gspread * (1 - k)) for k in range(2)]
            first = nb not in seen; seen.add(nb)
            def mfs(regs, nb=nb, first=first, au=au, bu=bu):
                r = []
                seq = [(qb, k ^ (qb & 1), k == 0) for qb in range(4) for k in range(2)] if cfg.chain else [(qb, k, k == 0) for k in range(2) for qb in range(4)]
                for qb, k, f in seq:
                    c = vr(ACC(nb, qb), 4)
                    r.append((f'{MF} {c}, {ar(au[k].reg or 0, 4)}, {ar(bu[2 * qb + k].reg, 4)}, {0 if first and f else c}', None))
                return r
            if newb and n4 == 0: g = Group(mfs, bu + au)
            else: g = Group(mfs, au, hold=bu)
            if n4 == 3:
                def rel(S, s=s):
                    S['pend'] += refill(s) if not (cfg.nodma and s < 13) else []
                    if late and s == late[0]: S['extra'] += late[1]
                g.on_start = rel
            groups.append(g)
    S = dict(pend=list(first_ops), extra=list(extra))
    S = schedule(st, groups, [A_AF + 4 * i for i in range(8)], cfg.glead, side_gap=lambda i: cfg.ggap, state=S, primed=12, sort_reads=True, max_wide=cfg.mw)
    emit_ops(st, S['pend'])
    for x in S['extra']:
        if isinstance(x, tuple): st.vm(*x)
        else: st.e(x)

def gen_k1(cfg, name='k1_attn_kernel'):
    F = cfg.fused == 1; FT = cfg.fused > 0
    if FT: import tail
    if F: name = 'adaLN_cond__gqa_block_cached__dense_activation_relu__prompt_kernel'
    st = Stream(); e = st.e
    cfg.sv = 253
    e('s_cmp_ge_u32 s2, 256'); e('s_cbranch_scc1 L_k1_end')
    e(f's_load_dwordx8 s[48:55], s[0:1], {KA_X}')
    e(f's_load_dwordx2 s[56:57], s[0:1], {KA_WO}'); e(f's_load_dwordx2 s[58:59], s[0:1], {KA_WS}'); e(f's_load_dwordx4 s[4:7], s[0:1], {KA_W1}')
    if FT: e(f's_load_dwordx8 s[64:71], s[0:1], {KA_C}'); e('v_mov_b32 v15, v0'); e('s_and_b32 s84, s2, 7'); e('s_lshr_b32 s85, s2, 3')
    stamp(st, cfg, 0)
    lg = {1: 0, 2: 1, 4: 2, 8: 3}[cfg.G]
    e('s_and_b32 s60, s2, 7'); e('s_lshr_b32 s61, s2, 3')
    e(f's_lshl_b32 s{S_G}, s60, {lg}'); e(f's_and_b32 s{S_G}, s{S_G}, 7'); e(f's_and_b32 s62, s61, {cfg.G - 1}'); e(f's_add_u32 s{S_G}, s{S_G}, s62')
    e(f's_lshr_b32 s60, s60, {3 - lg}'); e(f's_lshl_b32 s60, s60, {5 - lg}'); e(f's_lshr_b32 s{S_PF}, s61, {lg}'); e(f's_add_u32 s{S_RB}, s60, s{S_PF}')
    e('v_lshrrev_b32 v4, 6, v0'); e('v_and_b32 v0, 63, v0'); e(f'v_readfirstlane_b32 s{S_W}, v4')
    e(f'v_and_b32 v{V_R}, 15, v0'); e(f'v_lshrrev_b32 v{V_G}, 4, v0')
    e(f'v_and_b32 v4, 1, v{V_G}'); e('v_lshlrev_b32 v4, 1, v4'); e(f'v_lshrrev_b32 v5, 1, v{V_G}'); e(f'v_or_b32 v{V_PI}, v4, v5')
    e(f's_lshl_b32 s{S_WB}, s{S_W}, 12')
    if cfg.cpf:
        e('s_lshr_b32 s60, s2, 3'); e('s_lshl_b32 s60, s60, 2'); e(f's_add_u32 s60, s60, s{S_W}')
        code_prefetch(st, 'k1', 'L_k1_end', 60, 4, ar(A_DUMMY, 4))
    if not cfg.krot: e(f's_mov_b32 s{S_ROT}, 0')
    else: e(f's_and_b32 s{S_ROT}, s{S_PF}, {cfg.rotmask}'); e(f's_lshl_b32 s{S_ROT}, s{S_ROT}, {cfg.rotsh}')
    e('v_lshlrev_b32 v7, 4, v0'); e(f's_lshl_b32 s62, s{S_ROT}, 2')
    e(f's_lshl_b32 s60, s{S_RB}, 16'); e(f's_lshl_b32 s61, s{S_W}, 14'); e('s_add_u32 s60, s60, s61'); e(f's_add_u32 s61, s61, {R3}')
    def x_off():
        for i in range(16):
            e(f'v_xad_u32 v{V_ACC + i}, v0, {i}, s62'); e(f'v_and_b32 v{V_ACC + i}, 63, v{V_ACC + i}'); e(f'v_lshlrev_b32 v{V_ACC + i}, 4, v{V_ACC + i}')
    if not F: x_off()
    e('s_waitcnt lgkmcnt(0)')
    QREG = lambda s: [R0, R2, R1][(s - 13) % 3]
    MODL = QREG(2) + 16384
    if F:
        srd(e, S_WS, 58, 59, WS_PART); srd(e, 80, 70, 71, 256)
        tail.mod_loads(st, cfg); tail.clear_counters(st, cfg); x_off()
    srd(e, S_X, 48, 49, 2048 * 1024)
    def x_dma(st):
        st.e('s_mov_b32 s76, s77')
        for i in range(16):
            if i % 4 == 0:
                st.e(f's_add_u32 m0, s78, {1024 * i}')
                st.e('s_add_u32 s76, s76, 4096' if i else 's_nop 0')
            st.vm(f'buffer_load_dwordx4 v{V_ACC + i}, {sr(S_X, 4)}, s76 offen offset:{1024 * (i % 4)} lds', 'x')
    e('s_mov_b32 s77, s60'); e('s_mov_b32 s78, s61')
    def x_early():
        if F:
            e(f's_cmp_lt_u32 s87, {tail.NU}'); e('s_cbranch_scc1 L_f_xlate'); st.cond = 'xearly'
        x_dma(st)
        if F: st.cond = False; e('L_f_xlate:')
    if not (F and cfg.xdelay): x_early()
    if F: tail.mod_urgent(st, cfg, MODL + 4096, x_dma)
    if not F:
        srd(e, S_WS, 58, 59, WS_PART if FT else 0x1000)
        e(f's_lshl_b32 s62, s{S_ROT}, 8'); e('v_add_u32 v6, s62, v7')
        for j in range(4):
            e(f's_add_u32 m0, s{S_WB}, {MODL + 1024 * j}'); e(f'v_add_u32 v5, {1024 * j}, v6'); e('v_and_b32 v5, 0xfff, v5')
            st.vm(f'buffer_load_dwordx4 v5, {sr(S_WS, 4)}, 0 offen lds', 'mod')
    e(f's_lshl_b32 s62, s{S_G}, 10'); e(f's_sub_u32 s63, {512 * 8192}, s62')
    srd(e, S_WQ, 54, 55, 's63', off='s62')
    e(f's_lshl_b32 s61, s{S_W}, 8'); e('v_lshrrev_b32 v8, 3, v0'); e(f'v_lshl_add_u32 v8, v8, 13, s61')
    e('v_and_b32 v5, 7, v0'); e(f'v_and_b32 v4, 1, v{V_G}'); e('v_lshlrev_b32 v4, 1, v4'); e('v_xor_b32 v4, v4, v5')
    e('v_lshl_add_u32 v9, v4, 4, v8'); e('v_xor_b32 v4, 4, v4'); e('v_lshl_add_u32 v10, v4, 4, v8')
    for j in range(8): e(f'v_add_u32 {vr(V_DWQ + j)}, {65536 * j - 1024 * (j % 4)}, v{9 + (j & 1)}')
    e(f's_lshl_b32 s{S_OFFW}, s{S_ROT}, 18')
    def wq_dma(s):
        if s % 2 == 0: return w_dma('wq', s, QREG(s), V_DWQ, S_WQ, S_OFFW, [f's_add_u32 s3, s{S_OFFW}, 128'])
        return w_dma('wq', s, QREG(s), V_DWQ, S_WQ, 3, [f's_add_u32 s{S_OFFW}, s{S_OFFW}, 524288', f's_and_b32 s{S_OFFW}, s{S_OFFW}, 0x3fffff'])
    def wo_dma(s):
        return w_dma('wo', s, OREG(s), V_DWO, S_WO, S_OFFW, [f's_add_u32 s{S_OFFW}, s{S_OFFW}, {65536 + (128 if s == 7 else 0)}', f's_and_b32 s{S_OFFW}, s{S_OFFW}, 0x7ffff'])
    OREG = lambda s: [R4, R0, R3][s % 3]
    wq_early = wq_dma(0) + wq_dma(1)
    wq2 = wq_dma(2)
    wq_early += wq2[:5]; wq_late = wq2[5:]
    emit_ops(st, wq_early[:cfg.npre]); wq_early = wq_early[cfg.npre:]
    ndum = [0]
    def pf(voff, srdr, soff, imm=0):
        r = A_DUMMY + 4 * (ndum[0] % 3); ndum[0] += 1
        return (f'buffer_load_dwordx4 {ar(r, 4)}, {voff}, {sr(srdr, 4)}, {soff} offen offset:{imm}', 'pf')
    pfo = []
    if cfg.pfq:
        pfo += [(f's_lshl_b32 s5, s{S_PF}, {17 + lg}', None), (f's_lshl_b32 s6, s{S_W}, {15 + lg}', None), ('s_add_u32 s5, s5, s6', None)]
        for i in range(4 * cfg.G): pfo += [pf('v7', S_WQ, 's5'), ('s_add_u32 s5, s5, 8192', None)]
    if cfg.prefetch:
        pfo += [(f's_lshl_b32 s5, s{S_PF}, {11 + lg}', None), (f's_lshl_b32 s6, s{S_W}, {9 + lg}', None), ('s_add_u32 s5, s5, s6', None)]
        for i in range(max(1, cfg.G // 2)): pfo += [pf('v7', S_K, 's5', 1024 * i), pf('v7', S_V, 's5', 1024 * i)]
    pfwo = [(f's_lshl_b32 s5, s{S_RB}, 14', None), (f's_add_u32 s5, s5, s{S_WB}', None)] + [pf('v252', S_WO, 's5', 1024 * i) for i in range(4)]
    e(f's_lshl_b32 s62, s{S_G}, 19')
    srd(e, S_K, 50, 51, 524288, off='s62'); srd(e, S_V, 52, 53, 524288, off='s62')
    srd(e, S_WO, 56, 57, 524288, off='s62')
    e(f's_lshl_b32 s62, s{S_G}, 21'); e(f's_add_u32 s62, s62, {WS_PART}')
    srd(e, S_PART, 58, 59, 1 << 21, off='s62')
    e('s_and_b32 s61, s2, 1'); e('s_mul_i32 s62, s61, 1792'); e(f's_sub_u32 s63, {512 * 3584}, s62'); srd(e, 92, 4, 5, 's63', off='s62')
    e('s_lshl_b32 s62, s61, 9'); e(f's_sub_u32 s63, {512 * 3584}, s62'); srd(e, 96, 6, 7, 's63', off='s62')
    e('s_lshr_b32 s4, s2, 3'); e('s_lshl_b32 s4, s4, 2'); e(f's_add_u32 s4, s4, s{S_W}'); e(f's_mul_i32 s7, s4, {14 * 1024}'); e(f's_mul_i32 s4, s4, {4 * 3584}')
    e('v_lshrrev_b32 v251, 5, v0'); e('v_lshlrev_b32 v251, 10, v251'); e('v_and_b32 v4, 31, v0'); e('v_lshl_add_u32 v251, v4, 4, v251')
    e('v_lshlrev_b32 v252, 4, v0')
    e(f's_mov_b32 s{S_OFFK}, 0'); e(f's_mov_b32 s{S_OFFV}, 0'); e(f's_add_u32 s{S_M0V}, s{S_WB}, {LDS_V}'); e(f's_mov_b32 s{S_FLAG}, 0')
    for ks in range(4):
        e(f'v_add_u32 v5, {4 * ks}, v{V_PI}'); e(f'v_xor_b32 v5, v5, v{V_R}'); e('v_lshlrev_b32 v5, 4, v5'); e(f'v_lshl_add_u32 {vr(V_KA + ks)}, v{V_R}, 8, v5')
    e(f'v_lshrrev_b32 v11, 2, v{V_R}'); e(f'v_and_b32 v12, 3, v{V_R}'); e('v_lshlrev_b32 v12, 3, v12')
    e(f'v_lshl_add_u32 v5, v{V_G}, 2, v11'); e('v_and_b32 v13, 7, v5'); e('v_lshl_add_u32 v14, v5, 8, v12'); e(f'v_add_u32 v14, {LDS_V}, v14')
    for db in range(8): e(f'v_xor_b32 v4, {db}, v13'); e(f'v_lshl_add_u32 {vr(V_VA + db)}, v4, 5, v14')
    e(f'v_lshl_add_u32 v9, v{V_G}, 8, s{S_WB}')
    for j in range(4): e(f'v_add_u32 v5, {4 * j}, v{V_G}'); e(f'v_xor_b32 v5, v5, v{V_R}'); e(f'v_lshl_add_u32 {vr(V_DK + j)}, v5, 4, v9')
    for j in range(2): e(f'v_add_u32 v5, {4 * j}, v{V_G}'); e('v_lshlrev_b32 v5, 1, v5'); e(f'v_xor_b32 v5, v5, v{V_R}'); e(f'v_lshl_add_u32 {vr(V_DV + j)}, v5, 4, v9')
    e(f's_lshl_b32 s61, s{S_W}, 8'); e('v_lshrrev_b32 v8, 3, v0'); e(f'v_lshl_add_u32 v8, v8, 10, s61')
    e('v_and_b32 v5, 7, v0'); e(f'v_lshlrev_b32 v4, 1, v{V_G}'); e('v_xor_b32 v4, v4, v5'); e(f'v_lshl_add_u32 {vr(V_DWO)}, v4, 4, v8')
    for j in range(1, 8): e(f'v_add_u32 {vr(V_DWO + j)}, {8192 * j - 1024 * (j % 4)}, {vr(V_DWO)}')
    e(f'v_and_b32 v4, 1, v{V_G}'); e(f'v_lshrrev_b32 v13, 3, v{V_R}'); e('v_lshl_add_u32 v13, v4, 1, v13')
    e(f'v_lshl_add_u32 v5, v{V_G}, 3, v11'); e('v_lshl_add_u32 v14, v5, 7, v12'); e(f'v_add_u32 v14, s{S_WB}, v14')
    for nb in range(4):
        e(f'v_xor_b32 v4, {nb}, v13'); e(f'v_lshl_add_u32 {vr(V_TA[0] + nb)}, v4, 5, v14'); e(f'v_add_u32 {vr(V_TA[1] + nb)}, {R2}, {vr(V_TA[0] + nb)}')
    e(f'v_add_u32 {vr(V_BA)}, {R3}, v7')
    e(f's_lshl_b32 s61, s{S_W}, 14'); e(f'v_add_u32 v8, s61, {vr(V_BA)}')
    e(f's_add_u32 s62, s{S_WB}, {MODL}' if not F else f's_mov_b32 s62, {MODL}'); e(f'v_lshl_add_u32 v9, v{V_G}, 5, s62')
    e(f's_add_u32 s61, s61, {R3}'); e(f'v_lshl_add_u32 v14, v{V_R}, 10, s61')
    for k in range(4): e(f'v_add_u32 v4, {4 * k}, v{V_G}'); e(f'v_xor_b32 v4, v4, v{V_R}'); e(f'v_lshl_add_u32 v{10 + k}, v4, 4, v14')
    zero = [f'v_accvgpr_write_b32 a{A_O + i}, 0' for i in range(128)] + [f'v_accvgpr_write_b32 a{A_L + i}, 0' for i in range(16)]
    zero += ['v_mov_b32 v5, 0x3f803f80'] + [f'v_accvgpr_write_b32 a{A_ONE + i}, v5' for i in range(4)]
    if F and cfg.xdelay == 1: x_early()
    if cfg.zearly:
        for z in zero: e(z)
    if F and cfg.xdelay == 2: x_early()
    main = st; st = Stream(); e = st.e
    if F: tail.x_wait(main, cfg)
    else: main.wait(vm=['x'])
    for ks in range(16): main.lds(f'ds_read_b128 {vr(V_ACC + 8 * ks + 4, 4)}, v{10 + ks % 4} offset:{(ks // 4) * 256}', ('x', ks))
    stamp(main, cfg, 1)
    if cfg.fused == 2 and cfg.stamps: main.e('v_writelane_b32 v253, s88, 2'); main.e('v_writelane_b32 v253, s88, 3'); main.e('v_writelane_b32 v254, s90, 2'); main.e('v_writelane_b32 v254, s90, 3')
    for ks in range(16):
        b = V_ACC + 8 * ks
        if ks % 2 == 0: st.wait(lds=[('x', ks + 1)])
        for j in range(4):
            e(f'v_lshlrev_b32 v{b + 2 * j}, 16, v{b + 4 + j}'); e(f'v_and_b32 v{b + 2 * j + 1}, 0xffff0000, v{b + 4 + j}')
        for j in range(4):
            if ks == 0: continue
            a = V_HO + 2 * j
            e(f'v_pk_add_f32 {vr(a, 2)}, {vr(b + 2 * j, 2)}, {vr(a, 2) if ks > 1 else vr(V_ACC + 2 * j, 2)}')
    a = V_HO
    e(f'v_pk_add_f32 {vr(a, 2)}, {vr(a, 2)}, {vr(a + 2, 2)}'); e(f'v_pk_add_f32 {vr(a + 4, 2)}, {vr(a + 4, 2)}, {vr(a + 6, 2)}')
    e(f'v_pk_add_f32 {vr(a, 2)}, {vr(a, 2)}, {vr(a + 4, 2)}'); e(f'v_add_f32 v4, v{a}, v{a + 1}')
    xlane_reduce(e, [4], [5], 'v_add_f32')
    e(f'v_mul_f32 v4, {f2h(-1.0 / 512)}, v4')
    for ks in range(16):
        b = V_ACC + 8 * ks
        for j in range(4): e(f'v_pk_add_f32 {vr(b + 2 * j, 2)}, {vr(b + 2 * j, 2)}, v[4:5] op_sel_hi:[1,0]')
        for j in range(4):
            if ks == 0: e(f'v_pk_mul_f32 {vr(a + 2 * j, 2)}, {vr(b + 2 * j, 2)}, {vr(b + 2 * j, 2)}')
            else: e(f'v_pk_fma_f32 {vr(a + 2 * j, 2)}, {vr(b + 2 * j, 2)}, {vr(b + 2 * j, 2)}, {vr(a + 2 * j, 2)}')
    def modrd(ks):
        m = V_MOD + 16 * (ks % 2)
        for j in range(4): st.lds(f'ds_read_b128 {vr(m + 4 * j, 4)}, v9 offset:{ks * 256 + (j // 2) * 128 + (j % 2) * 16}', ('mod', ks))
    if not F: st.wait(vm=['mod']); modrd(0); modrd(1)
    e(f'v_pk_add_f32 {vr(a, 2)}, {vr(a, 2)}, {vr(a + 2, 2)}'); e(f'v_pk_add_f32 {vr(a + 4, 2)}, {vr(a + 4, 2)}, {vr(a + 6, 2)}')
    e(f'v_pk_add_f32 {vr(a, 2)}, {vr(a, 2)}, {vr(a + 4, 2)}'); e(f'v_add_f32 v4, v{a}, v{a + 1}')
    xlane_reduce(e, [4], [5], 'v_add_f32')
    e(f'v_mov_b32 v5, {f2h(1e-5)}'); e(f'v_fmac_f32 v5, {f2h(1.0 / 512)}, v4'); e('v_rsq_f32 v4, v5'); e('s_nop 0')
    if F:
        for ks in range(16):
            for j in range(4): e(f'v_pk_mul_f32 {vr(V_ACC + 8 * ks + 2 * j, 2)}, {vr(V_ACC + 8 * ks + 2 * j, 2)}, v[4:5] op_sel_hi:[1,0]')
        left = interleave(main, st, (wq_early + pfo)[:len(wq_early + pfo) - cfg.wqlate], 0, cfg.lnev)
        st = main; e = st.e
        emit_ops(st, left)
        if cfg.wqlate: wq_late = (wq_early + pfo)[-cfg.wqlate:] + wq_late
        stamp(st, cfg, 9)
        tail.mod_fetch(st, cfg, MODL, S_ROT)
        stamp(st, cfg, 10)
        modrd(0); modrd(1)
        if cfg.tlb:
            e('v_lshlrev_b32 v4, 13, v0')
            for s_ in (S_K, S_V, S_WO): st.vm(f'buffer_load_dword a245, v4, {sr(s_, 4)}, 0 offen', 'tlb')
        emit_ops(st, tail.rest_loads())
    for ks in range(16):
        b = V_ACC + 8 * ks; m = V_MOD + 16 * (ks % 2); ho = V_HO + 4 * (ks % 2)
        if not F:
            for j in range(4): e(f'v_pk_mul_f32 {vr(b + 2 * j, 2)}, {vr(b + 2 * j, 2)}, v[4:5] op_sel_hi:[1,0]')
        st.wait(lds=[('mod', ks)])
        for j in range(4): e(f'v_pk_fma_f32 {vr(b + 2 * j, 2)}, {vr(b + 2 * j, 2)}, {vr(m + 2 * j, 2)}, {vr(m + 8 + 2 * j, 2)}')
        if ks + 2 < 16: modrd(ks + 2)
        for j in range(4): e(f'v_cvt_pk_bf16_f32 v{ho + j}, v{b + 2 * j}, v{b + 2 * j + 1}')
        st.lds(f'ds_write_b128 v8, {vr(ho, 4)} offset:{ks * 1024}', 'hw')
    if not F:
        body = st; st = main; e = st.e
        left = interleave(st, body, wq_early + pfo, 0, cfg.lnev)
        emit_ops(st, left + wq_late); wq_late = []
    st.wait(lds='all'); e('s_barrier')
    stamp(st, cfg, 2)
    def ta_q(s):
        r = QREG(s); return (V_TA[1], 0) if r == R2 else (V_TA[0], r)
    def refill_q(s):
        if s + 3 < 16: return wq_dma(s + 3)
        return {13: kv_dma('K', 0) + kv_dma('K', 1), 14: kv_dma('V', 0) + kv_dma('V', 1), 15: kv_dma('K', 2) + kv_dma('K', 3)}[s]
    gemm(st, cfg, 'wq', [(s // 2, s % 2) for s in range(16)], ta_q, 512, V_BA, lambda ks, qb: qb * 16384 + ks * 1024, refill_q, [] if cfg.zearly else zero, first_ops=wq_late, late=(2, tail.rest_math()) if F else None)
    stamp(st, cfg, 3)
    e('s_nop 3')
    for ks in range(4):
        for qb in range(4):
            d = V_Q + (qb * 4 + ks) * 4; a0 = ACC(2 * ks, qb); a1 = ACC(2 * ks + 1, qb)
            e(f'v_cvt_pk_bf16_f32 v{d}, v{a0}, v{a0 + 1}'); e(f'v_cvt_pk_bf16_f32 v{d + 1}, v{a0 + 2}, v{a0 + 3}')
            e(f'v_cvt_pk_bf16_f32 v{d + 2}, v{a1}, v{a1 + 1}'); e(f'v_cvt_pk_bf16_f32 v{d + 3}, v{a1 + 2}, v{a1 + 3}')
        e('s_nop 0')
        for qb in range(4):
            d = V_Q + (qb * 4 + ks) * 4
            e(f'v_permlane16_swap_b32 v{d}, v{d + 2}'); e(f'v_permlane16_swap_b32 v{d + 1}, v{d + 3}')
    st.wait(vm=[('dK', 0)]); e('s_barrier')
    emit_ops(st, kv_dma('V', 2))
    if F: tail.rest_share(st, R4)
    st.mark('attn_start')
    def rawA(st): schedule(st, groups_A(0, cfg, raw=True) + groups_A(1, cfg, raw=True), RING, 16, primed=8)
    def tile_max(first, st):
        e = st.e
        for qb in range(4):
            regs = [Sreg(b, kb, qb) + i for b in range(2) for kb in range(2) for i in range(4)]
            m = 4 + qb
            if first:
                e(f'v_max3_f32 v{m}, v{regs[0]}, v{regs[1]}, v{regs[2]}')
                for i in range(3, 15, 2): e(f'v_max3_f32 v{m}, v{m}, v{regs[i]}, v{regs[i + 1]}')
                e(f'v_max_f32 v{m}, v{m}, v{regs[15]}')
            else:
                for i in range(0, 16, 2): e(f'v_max3_f32 v{m}, v{m}, v{regs[i]}, v{regs[i + 1]}')
    def make_negm(st):
        e = st.e
        xlane_reduce(e, [4, 5, 6, 7], [8, 9, 10, 11], 'v_max_f32')
        for qb in range(4):
            for i in range(4): e(f'v_sub_f32 {vr(V_NEGM + 4 * qb + i)}, {f2h(-cfg.B)}, v{4 + qb}')
    rawA(st)
    e(f's_cmp_lg_u32 s{S_FLAG}, 0'); e('s_nop 6'); e('s_cbranch_scc1 L_k1_havemax')
    tile_max(True, st); make_negm(st)
    e('L_k1_havemax:')
    for b in range(2):
        for kb in range(2):
            for qb in range(4):
                s = Sreg(b, kb, qb)
                for i in (0, 2): e(f'v_pk_add_f32 {vr(s + i, 2)}, {vr(s + i, 2)}, {vr(V_NEGM + 4 * qb, 2)}')
    st.wait(lds='all', vm=[('dK', 1), ('dV', 0)]); e('s_barrier')
    if F:
        e(f's_cmp_lg_u32 s{S_FLAG}, 0'); e('s_cbranch_scc1 L_f_norest'); tail.rest_store(st, R4)
        if cfg.tlb:
            e('v_lshlrev_b32 v4, 18, v0'); e('v_lshlrev_b32 v5, 15, v0')
            srd(e, 72, 58, 59, 8 << 21, off=WS_PART); srd(e, 64, 68, 69, 2 << 20)
            for v_, s_ in ((4, S_WS), (4, 72), (5, 64), (5, 92), (5, 96)): e(f'buffer_load_dword a245, v{v_}, {sr(s_, 4)}, 0 offen')
    pfw1 = []; pfw2 = []
    for r in range(4):
        pfw1 += [(f's_add_u32 s5, s4, {r * 3584}', None), pf('v252', 92, 's5'), pf('v252', 92, 's5', 768)]
    for r in range(7):
        pfw2 += [(f's_add_u32 s5, s7, {r * 2048}', None), pf('v251', 96, 's5')]
    def tail_extra(t):
        if t == 28: return pfwo + (pfw1[:6] if cfg.pfw else [])
        if t == 29: return [(f's_lshl_b32 s{S_OFFW}, s{S_ROT}, 15', None)] + wo_dma(0) + (pfw2 if cfg.pfw else [])
        if t == 30: return wo_dma(1) + (pfw1[6:] if cfg.pfw else [])
        return []
    attn_main(st, cfg, tail_extra)
    stamp(st, cfg, 5)
    e('s_setreg_imm32_b32 hwreg(HW_REG_MODE, 4, 2), 3')
    e(f'v_lshrrev_b32 v5, 2, v{V_R}'); e(f'v_lshl_add_u32 v5, v{V_G}, 2, v5'); e('v_bfe_u32 v6, v5, 1, 2'); e(f'v_and_b32 v7, 3, v{V_R}'); e('v_lshlrev_b32 v7, 3, v7')
    e('v_lshl_add_u32 v7, v5, 7, v7'); e(f'v_add_u32 v7, s{S_WB}, v7')
    for nb in range(4): e(f'v_xor_b32 v5, {nb}, v6'); e(f'v_lshl_add_u32 {vr(V_TO[0] + nb)}, v5, 5, v7'); e(f'v_add_u32 {vr(V_TO[1] + nb)}, {R3}, {vr(V_TO[0] + nb)}')
    for qb in range(4): e(f'v_accvgpr_read_b32 v{4 + qb}, a{A_L + 4 * qb}')
    e(f'v_mov_b32 v12, {f2h(cfg.thr)}')
    e('v_max3_f32 v8, v4, v5, v6'); e('v_max_f32 v8, v8, v7')
    for qb in range(4): e(f'v_add_f32 v{9}, v{4 + qb}, {"v9" if qb else "0"}')
    e('v_cmp_nlt_f32 vcc, v8, v12'); e('v_cmp_u_f32 s[62:63], v9, v9')
    for qb in range(4): e(f'v_rcp_f32 v{4 + qb}, v{4 + qb}')
    e('s_or_b64 vcc, vcc, s[62:63]'); e('s_cmp_lg_u64 vcc, 0'); e('s_cselect_b32 s61, 1, 0')
    e('v_and_b32 v10, 3, v0'); e('v_lshlrev_b32 v10, 12, v10'); e(f's_lshl_b32 s62, s{S_W}, 2'); e(f's_add_u32 s62, s62, {R3}'); e('v_add_u32 v10, s62, v10')
    e('v_mov_b32 v11, s61'); st.lds('ds_write_b32 v10, v11', 'flagw')
    e('v_lshlrev_b32 v14, 4, v0'); e(f's_lshl_b32 s61, s{S_W}, 2'); e(f's_sub_u32 s61, s61, s{S_ROT}')
    for m in range(4):
        e(f's_add_u32 s62, s61, {m}'); e('s_and_b32 s62, s62, 15'); e('s_lshl_b32 s62, s62, 12'); e(f's_add_u32 s62, s62, {R1}'); e(f'v_add_u32 v{V_P + m}, s62, v14')
    k = 0
    for qb in range(4):
        for m in range(4):
            t = V_S[0] + 16 * (k % 4); k += 1
            for hb in range(2):
                for i in range(4): e(f'v_accvgpr_read_b32 v{t + 4 * hb + i}, a{A_O + ((2 * m + hb) * 4 + qb) * 4 + i}')
            sel = f'v[{4 + qb}:{5 + qb}] op_sel_hi:[1,0]' if qb % 2 == 0 else f'v[{3 + qb}:{4 + qb}] op_sel:[0,1] op_sel_hi:[1,1]'
            for i in range(4): e(f'v_pk_mul_f32 {vr(t + 2 * i, 2)}, {vr(t + 2 * i, 2)}, {sel}')
            for i in range(4): e(f'v_cvt_pk_bf16_f32 v{t + 8 + i}, v{t + 2 * i}, v{t + 2 * i + 1}')
            st.lds(f'ds_write_b128 v{V_P + m}, {vr(t + 8, 4)} offset:{qb * 1024}', 'ow')
    e(f'v_add_u32 v{V_BO}, {R1}, v14'); e(f's_add_u32 s61, s{S_WB}, {R3}'); e('v_mov_b32 v10, s61')
    st.wait(lds='all'); e('s_barrier')
    st.lds('ds_read_b128 v[4:7], v10', 'flagr'); st.wait(lds=['flagr'])
    e('v_or3_b32 v4, v4, v5, v6'); e('v_or_b32 v4, v4, v7'); e('s_nop 0'); e('v_readfirstlane_b32 s61, v4'); e('s_nop 3')
    e(f's_andn2_b32 s61, s61, s{S_FLAG}'); e('s_cbranch_scc1 L_k1_slow')
    if F:
        e(f's_mov_b32 s61, {tail.CNT_MB}'); tail.signal(st, S_WS, 's61', 'L_f_sigb')
    stamp(st, cfg, 6)
    def ta_o(s):
        r = OREG(s); return (V_TO[0], 0) if r == R0 else (V_TO[1], r - R3)
    def refill_o(s): return wo_dma(s + 3) if s + 3 < 16 else []
    sadr = [f'v_lshrrev_b32 v4, 1, v{V_R}', 'v_lshlrev_b32 v4, 11, v4', f'v_lshl_add_u32 v4, v{V_PI}, 5, v4', f'v_and_b32 v5, 1, v{V_R}', 'v_lshl_add_u32 v4, v5, 4, v4',
            f's_lshl_b32 s48, s{S_RB}, 16', f's_lshl_b32 s62, s{S_W}, 9', 's_add_u32 s48, s48, s62'] + [f's_add_u32 s{48 + qb}, s48, {16384 * qb}' for qb in range(1, 4)]
    def out_half(h):
        ops = []
        for qb in range(4):
            for m in (2 * h, 2 * h + 1):
                d = V_Q + (qb * 4 + m) * 4; a0 = ACC(2 * m, qb); a1 = ACC(2 * m + 1, qb)
                ops += [f'v_cvt_pk_bf16_f32 v{d}, v{a0}, v{a0 + 1}', f'v_cvt_pk_bf16_f32 v{d + 1}, v{a0 + 2}, v{a0 + 3}',
                        f'v_cvt_pk_bf16_f32 v{d + 2}, v{a1}, v{a1 + 1}', f'v_cvt_pk_bf16_f32 v{d + 3}, v{a1 + 2}, v{a1 + 3}']
            for m in (2 * h, 2 * h + 1):
                d = V_Q + (qb * 4 + m) * 4
                ops += [f'v_permlane16_swap_b32 v{d}, v{d + 2}', f'v_permlane16_swap_b32 v{d + 1}, v{d + 3}']
            for m in (2 * h, 2 * h + 1):
                ops.append((f'buffer_store_dwordx4 {vr(V_Q + (qb * 4 + m) * 4, 4)}, v4, {sr(S_PART, 4)}, s{48 + qb} offen offset:{m * 128}{SC}', 'st'))
        return ops
    gemm(st, cfg, 'wo', [(s % 8, s // 8) for s in range(16)], ta_o, 2048, V_BO, lambda ks, qb: ks * 4096 + qb * 1024, refill_o, sadr,
         first_ops=wo_dma(2), late=(cfg.ost, out_half(0)))
    stamp(st, cfg, 7)
    e('s_nop 7')
    for x in out_half(1):
        if isinstance(x, tuple): st.vm(*x)
        else: e(x)
    if FT: tail.tail(st, cfg)
    else: stamp_out(st, cfg, 1, 8, 58, S_W)
    e('s_endpgm')
    segs, order = split_marks(st.resolve())
    NL = 28
    for t in range(4, NL):
        if segs[f'it{t}'] != segs[f'it{t - 4}']:
            import difflib, sys
            sys.stderr.write('\n'.join(list(difflib.unified_diff(segs[f'it{t - 4}'], segs[f'it{t}'], lineterm='', n=2))[:60]) + '\n')
            raise SystemExit(f'iteration {t} differs')
    if cfg.strip:
        import re
        pat = re.compile(cfg.strip.replace('+', '|'))
        for t in range(NL): segs[f'it{t}'] = [x for x in segs[f'it{t}'] if not pat.match(x)]
    out = header(name) + segs['_start'] + ['L_k1_attn_start:'] + segs['attn_start']
    tmp = Stream(); stamp(tmp, cfg, 4); out += tmp.resolve()
    out += [f's_mov_b32 s{S_CNT}, {NL // 4}', '.p2align 6', 'L_k1_loop:']
    for t in range(4): out += segs[f'it{t}']
    out += [f's_sub_u32 s{S_CNT}, s{S_CNT}, 1', f's_cmp_lg_u32 s{S_CNT}, 0', 's_cbranch_scc1 L_k1_loop']
    for t in range(NL, NT): out += segs[f'it{t}']
    out += segs['end']
    st = Stream(); e = st.e
    e('L_k1_slow:')
    e(f's_mov_b32 s{S_FLAG}, 1'); e('s_setreg_imm32_b32 hwreg(HW_REG_MODE, 4, 2), 0')
    e('s_waitcnt vmcnt(0) lgkmcnt(0)'); e('s_barrier')
    e(f's_mov_b32 s{S_OFFK}, 0'); e(f's_mov_b32 s{S_CNT}, {NT}')
    for qb in range(4): e(f'v_mov_b32 v{4 + qb}, 0xff800000')
    e('L_k1_slow_loop:')
    emit_ops(st, kv_dma('K', 0)); st.wait(vm='all'); e('s_barrier')
    rawA(st)
    e('s_nop 7'); tile_max(False, st)
    e('s_barrier')
    e(f's_sub_u32 s{S_CNT}, s{S_CNT}, 1'); e(f's_cmp_lg_u32 s{S_CNT}, 0'); e('s_cbranch_scc1 L_k1_slow_loop')
    make_negm(st)
    for z in zero: e(z)
    e(f's_mov_b32 s{S_OFFK}, 0'); e(f's_mov_b32 s{S_OFFV}, 0')
    for w_, t_ in [('K', 0), ('K', 1), ('V', 0), ('V', 1), ('K', 2), ('K', 3), ('V', 2)]: emit_ops(st, kv_dma(w_, t_))
    st.wait(vm='all'); e('s_barrier'); e('s_branch L_k1_attn_start')
    out += st.resolve() + ['L_k1_end:', 's_endpgm']
    return out, kd(name, 512, 256, 102), f'; @launch {"" if F else "kernel=" + name + " "}grid=(256,1,1) block=(256,1,1) lds=163840'
```

```python
from asmlib import *
def is_m0(t): return t.split(',')[0].endswith('m0')
def emit_ops(st, ops):
    for t, tag in ops:
        if tag: st.vm(t, tag)
        else:
            st.e(t)
            if is_m0(t): st.e('s_nop 0')

class Unit:
    def __init__(self, tag, rd, reg=None, gate=None, vm=None, lead=None):
        self.tag = tag; self.rd = rd; self.reg = reg; self.gate = gate; self.vm = vm; self.lead = lead
class Group:
    def __init__(self, mfs, units=(), hold=(), mark=None, barrier=None, wait_next=0, on_start=None, vmwait=None, sync=False, pre_ops=()):
        self.mfs = mfs; self.units = list(units); self.hold = list(hold); self.mark = mark; self.barrier = barrier
        self.wait_next = wait_next; self.on_start = on_start; self.vmwait = vmwait; self.sync = sync; self.pre_ops = pre_ops

class Policy:
    flex = 0; order = 0; dma_alone = 0; dma_prev = 0; wait_exp = 0; salu_exp = 0; bar_alone = 0; maxlag = 2; over = 7
    def __init__(self, s=''):
        for kv in filter(None, s.split(',')):
            k, v = kv.split(':'); setattr(self, k, int(v))

def schedule(st, groups, ring, lead, trans=(), posts=(), side_gap=lambda i: 12, state=None, primed=0, check=None, side_per_gap=1, dense_from=1 << 30, max_wide=1, sort_reads=False, P=Policy()):
    S = state if state is not None else {}
    S.setdefault('pend', []); S.setdefault('extra', []); S.setdefault('lastdma', -1000); S.setdefault('cnt', 0); S.setdefault('log', {})
    trans = list(trans); posts = list(posts)
    idx = 0; units = []
    for g in groups:
        g.start = idx
        for u in g.units: u.need = idx; u.last = None; units.append(u)
        g.n = len(g.mfs(None)); idx += g.n
    total = idx
    for g in groups:
        for u in g.units + g.hold: u.last = g.start + g.n - 1
    c = 0; prev = {}
    for u in units:
        if u.reg is None: u.reg = ring[c % len(ring)]; c += 1
        u.earliest = u.need - (u.lead if u.lead is not None else lead)
        if u.reg in prev: u.earliest = max(u.earliest, prev[u.reg].last)
        if u.gate is not None: u.earliest = max(u.earliest, u.gate.start)
        assert u.earliest < u.need - 3 or u.need == 0 or units.index(u) < primed, (u.tag, u.earliest, u.need)
        prev[u.reg] = u; u.issued = False; u.waited = False
    rq = []
    for u in units:
        ops = u.rd(u.reg)
        if u.vm is not None: rq.append((u, 'vmwait', False))
        for k, t in enumerate(ops): rq.append((u, t, k == len(ops) - 1))
    rq.sort(key=lambda x: (units.index(x[0]) >= primed, x[0].earliest) if sort_reads else 0)
    def pop_read():
        u, t, last = rq.pop(0)
        if t == 'vmwait': st.wait(vm=[u.vm])
        else: st.lds(t, u.tag)
        if last: u.issued = True
    while rq and units.index(rq[0][0]) < primed: pop_read()
    if 'after_prime' in S: S['after_prime'](st, trans, posts, S)
    ntr = S.get('ntr', 0)
    def wait_tags(gi):
        g = groups[gi]; need = [u for u in g.units if not u.waited]
        if not need: return []
        for k in range(1, g.wait_next + 1):
            if gi + k < len(groups) and not groups[gi + k].barrier: need += [u for u in groups[gi + k].units if not u.waited]
        return need
    w0 = wait_tags(0)
    if w0 or groups[0].vmwait:
        assert all(u.issued for u in w0)
        st.wait(lds=[u.tag for u in w0] or None, vm=groups[0].vmwait)
        for u in w0: u.waited = True
    m0 = False; prev = S.get('prev', 'P')
    for gi, g in enumerate(groups):
        if g.mark: st.mark(g.mark); S['log'][g.mark] = (S['cnt'], S['lastdma'] - g.start, len(trans), len(posts), sum(u.issued for u in units), prev)
        if g.barrier:
            for u in g.barrier.get('units', []): assert u.issued, ('not issued before barrier', u.tag)
            assert not S['pend'], ('side ops left at barrier', S['pend'])
            st.wait(lds='all', vm=g.barrier['vm']); st.e('s_barrier')
            for u in units:
                if u.issued: u.waited = True
            S['pend'] = list(g.barrier.get('then', [])); S['cnt'] = 0; m0 = False
        if g.sync: st.e('s_barrier'); m0 = False
        for x in g.pre_ops: st.e(x)
        if g.on_start: g.on_start(S)
        assert all(u.waited for u in g.units), [u.tag for u in g.units if not u.waited]
        mfs = g.mfs([u.reg for u in g.units + g.hold])
        for k, (txt, info) in enumerate(mfs):
            i = g.start + k
            if check: check('mfma', info, i)
            st.e(txt); m0 = False
            lastg = k == g.n - 1
            nxt = groups[gi + 1] if lastg and gi + 1 < len(groups) else None
            wt = wait_tags(gi + 1) if nxt and not nxt.barrier else []
            vw = nxt.vmwait if nxt else None
            bar = bool(nxt and (nxt.barrier or nxt.sync))
            need_rd = any(not u.issued for u in wt)
            def do_wait():
                assert all(u.issued for u in wt), [u.tag for u in wt if not u.issued]
                st.wait(lds=[u.tag for u in wt] or None, vm=vw)
                for u in wt: u.waited = True
            safe = ntr
            dense = i >= dense_from
            backlog = sum(1 for t in trans[:4] if t[0] <= i)
            pend = S['pend']
            dma_due = bool(pend) and pend[0][1] is not None and i - S['lastdma'] >= side_gap(i)
            rd_due = bool(rq) and rq[0][0].earliest <= i
            if P.flex and not dense:
                if bar and P.bar_alone: kind = 'B'
                elif need_rd: kind = 'P'
                elif dma_due and P.dma_alone and (prev != 'E' or not P.dma_prev) and backlog <= P.maxlag: kind = 'D'
                elif backlog and (prev != 'E' or backlog >= 2 or not (rd_due or (posts and posts[0][0] <= safe) or dma_due)) \
                        and not (dma_due and P.dma_alone and P.dma_prev and backlog <= P.maxlag - 1 and prev == 'E') and ((wt or vw) == [] or not (wt or vw) or P.wait_exp): kind = 'E'
                else: kind = 'P'
            else:
                kind = 'E' if (i % 2 == 0 or dense) and backlog else 'P'
                if kind == 'P' and dma_due and P.dma_alone and not bar and not need_rd: kind = 'D'
            waited = False
            if kind == 'E':
                if not dense:
                    if wt or vw: do_wait(); waited = True
                    elif P.salu_exp and pend and pend[0][1] is None: st.e(pend.pop(0)[0]); S['cnt'] += 1
                _, t, key = trans.pop(0); st.e(t); ntr += 1
                if check: check('trans', key, i)
            if kind == 'D':
                if wt or vw: do_wait(); waited = True
                t, tag = pend.pop(0); S['cnt'] += 1; st.vm(t, tag); S['lastdma'] = i
            slots = 0
            if kind == 'P' or (kind == 'E' and dense):
                slots = 2 - (1 if wt or vw else 0) - (2 if nxt and nxt.barrier else 1 if bar else 0)
            if kind == 'P' and not bar and sum(1 for p in posts[:P.over] if p[0] <= safe) >= P.over: slots += 1
            nside = 0; nwide = 0; valu = kind == 'E' and P.order
            while kind == 'P' or (kind == 'E' and dense):
                ap = bool(posts) and posts[0][0] <= safe
                rd_ok = bool(rq) and rq[0][0].earliest <= i
                force_rd = rd_ok and any(not u.issued for u in wt)
                if rd_ok and 'b128' in rq[0][1] and nwide >= max_wide and not force_rd: rd_ok = False
                if valu and not force_rd and not dense: rd_ok = False
                side_ok = slots > 0 and pend and not m0 and (pend[0][1] is None or (not P.dma_alone and not (valu and P.order) and i - S['lastdma'] >= side_gap(i) and nside < side_per_gap))
                x_ok = slots > 0 and S['extra'] and not (isinstance(S['extra'][0], tuple) and valu and P.order)
                if rd_ok and (slots > 0 or force_rd):
                    if 'b128' in rq[0][1]: nwide += 1
                    pop_read(); m0 = False
                elif side_ok and pend[0][1] is not None and P.order:
                    t, tag = pend.pop(0); S['cnt'] += 1; st.vm(t, tag); S['lastdma'] = i; nside += 1
                elif ap and slots > 0 and (posts[0][2] <= i or not pend):
                    p = posts.pop(0); st.e(p[1]); m0 = False; valu = P.order
                    if check: check('post', p[3], i)
                elif side_ok:
                    t, tag = pend.pop(0); S['cnt'] += 1
                    if tag: st.vm(t, tag); S['lastdma'] = i; nside += 1
                    else: st.e(t); m0 = is_m0(t)
                elif ap and slots > 0:
                    p = posts.pop(0); st.e(p[1]); m0 = False; valu = P.order
                    if check: check('post', p[3], i)
                elif x_ok:
                    x = S['extra'].pop(0)
                    if isinstance(x, tuple): st.vm(*x)
                    else: st.e(x); valu = P.order and x.startswith('v_')
                    m0 = False
                else: break
                slots -= 1
            if (wt or vw) and not waited: do_wait()
            prev = kind
    assert not rq and not trans and not posts, (len(rq), len(trans), len(posts))
    if m0: st.e('s_nop 0')
    return S
```

```python
from asmlib import *
import struct
def f2h(x): return hex(struct.unpack('<I', struct.pack('<f', float(x)))[0])
MF = 'v_mfma_f32_16x16x32_bf16'
KA_X, KA_K, KA_V, KA_WQ, KA_WO, KA_BX, KA_W1, KA_W2, KA_C, KA_WM, KA_OUT, KA_DBG, KA_WS = [8 * i for i in range(13)]
WS_MODA = 0x0; WS_MODB = 0x1000
WS_CNT = 0x4000; WS_MODR = 0x8000
WS_X1 = 1 << 20; WS_H2 = 4 << 20; WS_H1 = 8 << 20; WS_PART = 16 << 20; WS_STAMP = 64 << 20
QSCALE = 128 ** -0.5 * 1.4426950408889634
SC = ' sc0 sc1'

def srd(e, d, lo, hi, size, off=None):
    if off is None:
        e(f's_mov_b32 s{d}, s{lo}'); e(f's_mov_b32 s{d+1}, s{hi}')
    else:
        e(f's_add_u32 s{d}, s{lo}, {off}'); e(f's_addc_u32 s{d+1}, s{hi}, 0')
    e(f's_mov_b32 s{d+2}, {size}'); e(f's_mov_b32 s{d+3}, 0x20000')

def xlane_reduce(e, regs, tmps, op, which=('32', '16')):
    for sw in which:
        for r, t in zip(regs, tmps): e(f'v_mov_b32 v{t}, v{r}')
        if len(regs) < 3: e('s_nop 1')
        for r, t in zip(regs, tmps): e(f'v_permlane{sw}_swap_b32 v{t}, v{r}')
        if len(regs) < 2: e('s_nop 0')
        for r, t in zip(regs, tmps): e(f'{op} v{r}, v{r}, v{t}')

def header(name):
    return [f'.globl {name}', '.p2align 8', f'.type {name},@function', f'{name}:']

def stamp(st, cfg, idx, wait=True):
    if cfg.stamps:
        sv = getattr(cfg, 'sv', 253)
        if cfg.fused == 2: idx = {2: 4, 3: 5, 4: 6, 5: 7, 6: 8, 7: 9, 8: 10}.get(idx, idx)
        if cfg.fused == 1: idx = {9: 2, 10: 3, 2: 4, 3: 5, 4: 6, 5: 7, 6: 8, 7: 9, 8: 10}.get(idx, idx)
        st.e('s_memrealtime s[88:89]'); st.e('s_memtime s[90:91]'); st.e('s_waitcnt lgkmcnt(0)')
        st.e(f'v_writelane_b32 v{sv}, s88, {idx}'); st.e(f'v_writelane_b32 v{sv + 1}, s90, {idx}')
def stamp_out(st, cfg, knum, last, ws_lo, s_wave):
    if not cfg.stamps: return
    e = st.e; sv = getattr(cfg, 'sv', 253)
    st.wait(vm='all'); stamp(st, cfg, last)
    if cfg.stamps in (2, 3):
        sel = [1, 2, 3, 4, 5, 6, 7, 9, 10, 11, 13, 14, 17, 19]
        e(f'v_readlane_b32 s60, v{sv}, 0'); e('s_not_b32 s60, s60'); e('v_mov_b32 v4, 0'); e('v_writelane_b32 v4, s60, 1')
        for i, k in enumerate(sel): e(f'v_readlane_b32 s60, v{sv}, {k}'); e('s_nop 3'); e(f'v_writelane_b32 v4, s60, {2 + i}')
        e('v_lshlrev_b32 v1, 2, v0')
        if cfg.stamps == 3: e('s_cmp_eq_u32 s2, 100'); e('s_cselect_b32 s60, 0xfffe, 2'); e('s_mov_b32 exec_lo, s60'); e('s_mov_b32 exec_hi, 0')
        else: e('s_mov_b64 exec, 0xfffe')
        e('buffer_atomic_umax v4, v1, s[80:83], 0 offen sc1'); e('s_mov_b64 exec, -1')
    srd(e, 8, ws_lo, ws_lo + 1, 4 << 20, off=WS_STAMP + knum * 524288)
    e('s_lshl_b32 s61, s2, 2'); e(f's_add_u32 s61, s61, s{s_wave}'); e('s_lshl_b32 s61, s61, 9'); e('v_lshlrev_b32 v1, 2, v0')
    e(f'v_writelane_b32 v{sv}, {last + 1}, 63')
    e(f'buffer_store_dword v{sv}, v1, s[8:11], s61 offen'); e(f'buffer_store_dword v{sv + 1}, v1, s[8:11], s61 offen offset:256')

def code_addr(e, tag, begin, end, vtid16, vdst, stmp=62):
    e(f's_getpc_b64 s[{stmp}:{stmp+1}]')
    e(f'L_pc_{tag}:')
    e(f's_add_u32 s{stmp}, s{stmp}, {begin}-L_pc_{tag}'); e(f's_addc_u32 s{stmp+1}, s{stmp+1}, 0')
    e(f's_lshr_b32 s{stmp-1}, s2, 3'); e(f's_lshl_b32 s{stmp-1}, s{stmp-1}, 12')
    e(f'v_add_u32 v{vdst}, s{stmp-1}, v{vtid16}'); e(f'v_min_u32 v{vdst}, {end}-{begin}-16, v{vdst}'); e(f'v_mov_b32 v{vdst+1}, s{stmp+1}')
    e(f'v_add_co_u32 v{vdst}, vcc, s{stmp}, v{vdst}'); e('s_nop 1'); e(f'v_addc_co_u32 v{vdst+1}, vcc, 0, v{vdst+1}, vcc')
```

```python
from gen_common import *
from engine import *

S_X, S_WQ, S_K, S_V, S_WO, S_WS, S_PART = 8, 12, 16, 20, 24, 28, 32
S_G, S_RB, S_W, S_WB = 36, 37, 38, 39
S_OFFK, S_OFFV, S_M0V, S_CNT, S_OFFW, S_FLAG = 40, 41, 43, 44, 45, 46
S_M0K = S_WB; S_PF = 47; S_ROT = 42
S_T = 48
V_R, V_G, V_PI = 1, 2, 3
V_Q = 16; V_S = [80, 112]; V_P = 144; V_NEGM = 208
V_KA = 224; V_VA = 228; V_DK = 236; V_DV = 240; V_DWO = 242; V_TO = [208, 212]; V_BO = 250
V_ACC = 80
V_DWQ = 16; V_TA = [24, 28]; V_BA = 40; V_MOD = 48; V_HO = 208
A_O = 0; A_FR = 128; A_BF = 128; A_L = 192; A_ONE = 208; A_AF = 212; A_DUMMY = 244
R0, R1, R2, R3, R4 = 0, 32768, 65536, 98304, 131072
LDS_V = R2
NT = 32
RING = [A_FR + 4 * i for i in range(16)]

def O(db, qb): return ar(A_O + (db * 4 + qb) * 4, 4)
def Q(qb, ks): return vr(V_Q + (qb * 4 + ks) * 4, 4)
def Lr(qb): return ar(A_L + qb * 4, 4)
def Sreg(buf, kb, qb): return V_S[buf] + (kb * 4 + qb) * 4
def Preg(h, qb): return V_P + (h % 4) * 16 + qb * 4
def ACC(nb, qb): return V_ACC + (nb * 4 + qb) * 4

class Cfg:
    lead = 20; spread = 0; xlead = 20; S0 = 48; XG = 6; nodma = 0; strip = ''; blead = 30; mw = 2; B = 102; dma_gap = 12; glead = 14; ggap = 1; bspread = 0; gspread = 0; stamps = 0; thr = 2.0 ** 64; prefetch = 0; cpf = 2; G = 4; pfq = 0; krot = 1; npre = 0
    h2sc = 0; k2nt = 1; k0pf = 0; lnev = 24; rot = 0; k3pre = 2; k4pre = 3; pfw = 11; chain = 1; fused = 0; npa = 4; osc = 0; pfs = 14; lv = 2; hwd = 0; pa = 'flex:1,order:1,dma_alone:1,dma_prev:1,wait_exp:1,salu_exp:1'; pg = 'order:1,dma_alone:1'; p1 = 'order:1,dma_alone:1'; p2 = 'order:1'; gmw = 2; xfirst = 1; tlb = 0; xdelay = 0; k0wait = 1; zearly = 1; w1early = 8; f1gap = 4; nprod = 96; wqlate = 0; f1pre = 12; f2pre = 2; rnt = 1; rotmask = 7; rotsh = 1; ost = 13

def groups_A(h, cfg, raw=False, gate=None):
    tile, hf = h // 2, h % 2
    gs = []
    for kb in range(2):
        off = (tile % 4) * 16384 + (32 * hf + 16 * kb) * 256
        us = [Unit(('K', h, kb, ks), (lambda r, ks=ks, off=off: [f'ds_read_b128 {ar(r, 4)}, {vr(V_KA + ks)} offset:{off}']), gate=gate, lead=cfg.lead + cfg.spread * (3 - ks)) for ks in range(4)]
        def mfs(regs, kb=kb):
            regs = regs or [0] * 4
            order = [(qb, ks if qb % 2 == 0 else 3 - ks, ks == 0, ks == 3) for qb in range(4) for ks in range(4)] if cfg.chain else \
                    [(qb, ks, ks == 0, ks == 3) for ks in range(4) for qb in range(4)]
            r = []
            for qb, ks, first, last in order:
                s = vr(Sreg(h % 2, kb, qb), 4)
                c = ('0' if raw else vr(V_NEGM + 4 * qb, 4)) if first else s
                r.append((f'{MF} {s}, {ar(regs[ks], 4)}, {Q(qb, ks)}, {c}', ('A', h, kb, qb, first, last)))
            return r
        gs.append(Group(mfs, us))
    return gs

def unit_V(h, db):
    off = ((h // 2) % 4) * 16384 + (32 * (h % 2)) * 256
    return Unit(('V', h, db), lambda r: [f'ds_read_b64_tr_b16 {ar(r, 2)}, {vr(V_VA + db)} offset:{off}',
                                          f'ds_read_b64_tr_b16 {ar(r + 2, 2)}, {vr(V_VA + db)} offset:{off + 4096}'])
def groups_C(hs, cfg):
    gs = []
    def order(qb):
        o = list(range(len(hs)))
        return o if qb % 2 == 0 else o[::-1]
    seq = [(qb, k) for qb in range(4) for k in order(qb)] if cfg.chain else [(qb, k) for k in range(len(hs)) for qb in range(4)]
    for db in range(8):
        def mfs(regs, db=db):
            regs = regs or [0] * 2
            return [(f'{MF} {O(db, qb)}, {ar(regs[k], 4)}, {vr(Preg(hs[k], qb), 4)}, {O(db, qb)}', ('C', hs[k], qb)) for qb, k in seq]
        us = [unit_V(h, db) for h in hs]
        for k, u in enumerate(us): u.lead = cfg.lead + cfg.spread * (len(hs) - 1 - k)
        gs.append(Group(mfs, us, wait_next=1 if db % 2 == 0 else 0))
    gs.append(Group(lambda regs: [(f'{MF} {Lr(qb)}, {ar(A_ONE, 4)}, {vr(Preg(hs[k], qb), 4)}, {Lr(qb)}', ('C', hs[k], qb)) for qb, k in seq if qb not in LVQ[cfg.lv]]))
    return gs

LVQ = [[], [2], [1, 3]]
V_LS = 8
def softmax_ops(h, start, base, cfg):
    exps = []; posts = []
    for kb in range(2):
        for qb in range(4):
            s = Sreg(h % 2, kb, qb)
            for i in range(4):
                exps.append((start + 2 * len(exps), f'v_exp_f32 {vr(s + i)}, {vr(s + i)}', (h, kb, qb)))
                if qb in LVQ[cfg.lv]:
                    l = V_LS + 2 * LVQ[cfg.lv].index(qb) + (i & 1)
                    posts.append((base + len(exps), f'v_add_f32 v{l}, v{l}, {vr(s + i)}', start + 2 * len(exps) + 1, (h, kb, qb, 'add')))
                if i & 1:
                    posts.append((base + len(exps), f'v_cvt_pk_bf16_f32 {vr(Preg(h, qb) + 2 * kb + i // 2)}, {vr(s + i - 1)}, {vr(s + i)}', start + 2 * len(exps) + 1, (h, kb, qb)))
    return exps, posts

def kv_dma(which, tile):
    slot = tile % 4
    m0, dv, srdr, off, nv = (S_M0K, V_DK, S_K, S_OFFK, 4) if which == 'K' else (S_M0V, V_DV, S_V, S_OFFV, 2)
    ops = [(f's_add_u32 m0, {sr(m0)}, {slot * 16384}', None)]
    for j in range(4):
        ops.append((f'buffer_load_dwordx4 {vr(dv + j % nv)}, {sr(srdr, 4)}, {sr(off)} offen offset:{j * 1024} lds', ('d' + which, tile)))
    ops.append((f's_add_u32 {sr(off)}, {sr(off)}, 16384', None))
    return ops

def w_dma(name, s, region, dv, srdr, soff, post):
    ops = []
    for j in range(8):
        if j % 4 == 0: ops.append((f's_add_u32 m0, {sr(S_WB)}, {region + (j // 4) * 16384}', None))
        ops.append((f'buffer_load_dwordx4 {vr(dv + j)}, {sr(srdr, 4)}, {sr(soff)} offen offset:{(j % 4) * 1024} lds', (name, s)))
    return ops + [(p, None) for p in post]

def attn_main(st, cfg, tail_extra, last_extra):
    NI = 136 - 2 * cfg.lv; HW = NI // 2 - 2 + cfg.hwd
    PP = 16 + 8 * cfg.lv
    def window(t):
        ops = []
        if t + 3 < NT: ops += kv_dma('V', t + 3)
        if t + 4 < NT: ops += kv_dma('K', t + 4)
        return ops + tail_extra(t)
    def build():
        groups = []; gate = None; idx = 0; exps = []; posts = []
        e0, p0 = softmax_ops(0, -1000, 0, cfg); e1, p1 = softmax_ops(1, cfg.S0 + HW - NI, 32, cfg)
        exps += e0 + e1; posts += p0 + p1
        for t in range(NT):
            if t < NT - 1:
                gs = groups_A(2 * t + 2, cfg, gate=gate) + groups_A(2 * t + 3, cfg, gate=gate)
                cs = groups_C([2 * t, 2 * t + 1], cfg)
                x = cs[cfg.XG]
                x.barrier = dict(vm=[('dV', t + 1)] + ([('dK', t + 2)] if t + 2 < NT else []), units=[u for g in cs for u in g.units], then=window(t + 1))
                for g in cs[cfg.XG:8]:
                    for u in g.units: u.lead = max(u.lead, cfg.xlead + 8 * (cs.index(g) - cfg.XG) + (u.lead - cfg.lead) // 2)
                gs += cs; ngate = x
                for k in range(2):
                    ee, pp = softmax_ops(2 * t + 2 + k, idx + cfg.S0 + HW * k, 32 * (2 * t + 2 + k), cfg); exps += ee; posts += pp
            else:
                gs = groups_C([2 * t], cfg) + groups_C([2 * t + 1], cfg)
                for g in gs:
                    for u in g.units: u.gate = gate; u.lead = min(cfg.lead, 14)
                gs[9].on_start = lambda S: S['extra'].extend(last_extra)
            gs[0].mark = f'it{t}'
            groups += gs; gate = ngate; idx += NI
        return groups, exps, posts
    def check_fn():
        spend = {}; sready = {}; pdone = {};
        def check(kind, key, i):
            if kind == 'mfma' and key[0] == 'A':
                _, h, kb, qb, first, last = key
                if first: assert spend.get((h % 2, kb, qb), 0) == 0, ('S overwritten early', key, i)
                if last: spend[(h % 2, kb, qb)] = 6 if qb in LVQ[cfg.lv] else 2; sready[(h, kb, qb)] = i
            elif kind == 'mfma' and key[0] == 'C':
                if key[1] >= 2: assert pdone.get((key[1], key[2]), (0, 0))[0] == 4 and pdone[(key[1], key[2])][1] < i - 1, ('P not ready', key, i)
                check.lastC[(key[1] % 4, key[2])] = (key[1], i)
            elif kind == 'trans':
                if key[0] >= 2: assert i >= sready[key] + 8, ('S not ready', key, i)
            elif kind == 'post':
                h, kb, qb = key[:3]
                if h >= 2: spend[(h % 2, kb, qb)] -= 1
                if len(key) > 3: return
                c = pdone.get((h, qb), (0, 0)); pdone[(h, qb)] = (c[0] + 1, i)
                if h >= 4: assert check.cnt_c(h - 4, qb), ('P overwritten early', key, i)
        check.lastC = {}
        seen = {}
        def wrap(kind, key, i):
            if kind == 'mfma' and key[0] == 'C': seen[(key[1], key[2])] = seen.get((key[1], key[2]), 0) + 1
            check(kind, key, i)
        check.cnt_c = lambda h, qb: seen.get((h, qb), 0) == (8 if qb in LVQ[cfg.lv] else 9)
        return wrap
    def run(st, pre):
        groups, exps, posts = build()
        npre, lastoff, ntr0, npo0, primed, prev = pre
        def after_prime(st, trans, posts, S):
            emit_ops(st, S['pend'][:npre]); S['pend'] = S['pend'][npre:]
            k = 0
            for n in range(ntr0):
                st.e(trans.pop(0)[1])
                while k < npo0 and posts[0][0] <= n: st.e(posts.pop(0)[1]); k += 1
            st.e('s_nop 0')
            while k < npo0: st.e(posts.pop(0)[1]); k += 1
            S['ntr'] = ntr0
        S = dict(pend=window(0), lastdma=lastoff, after_prime=after_prime, prev=prev)
        nl = NI * (NT - 1)
        exps = [(min(a, nl), b, c) for a, b, c in exps]
        posts = [(a, b, min(c, nl), d) for a, b, c, d in posts]
        S = schedule(st, groups, RING, cfg.lead, exps, posts, side_gap=lambda i: cfg.dma_gap if i < NI * 28 else 6, state=S, primed=primed, check=check_fn(), dense_from=nl, max_wide=cfg.mw, P=Policy(cfg.pa))
        for x in S['extra']: st.e(x)
        st.mark('end')
        return S['log'], len(exps), len(posts)
    log, ne, npo = run(Stream(), (3, -1000, 32 + (NI - cfg.S0 - HW + 1) // 2, PP + (NI - cfg.S0 - HW + 1) // 4 - 1, 4, 'P'))
    def norm(t):
        c, ld, nt, npp, rq, pv = log[f'it{t}']
        return (c, ld, ne - nt - 64 * t, npo - npp - 2 * PP * t, rq - 32 * t, pv)
    n = norm(3)
    assert all(norm(t) == n for t in range(3, NT - 4)), [norm(t) for t in range(2, 8)]
    run(st, n)

def gemm(st, cfg, name, stages, ta, joff, vba, baddr, refill, extra, first_ops=(), late=(), keep=False):
    groups = []; bcur = None; nb_sets = 0; seen = set()
    for s, (kp, half) in enumerate(stages):
        vb, ib = ta(s)
        newb = bcur is None or bcur[0] != kp or stages[s - 1][1] == half
        if newb:
            base = A_BF + 32 * (nb_sets % 2); nb_sets += 1
            bu = [Unit((name + 'B', s, k, qb), (lambda r, k=k, qb=qb, kp=kp: [f'ds_read_b128 {ar(r, 4)}, {vr(vba)} offset:{baddr(2 * kp + k, qb)}']), reg=base + 16 * k + 4 * qb, lead=cfg.blead - cfg.bspread * (2 * qb + k))
                  for qb in range(4) for k in range(2)]
            bcur = (kp, bu)
        bu = bcur[1]
        for n4 in range(4):
            nb = 4 * half + n4
            au = [Unit((name + 'A', s, n4, k), (lambda r, k=k, n4=n4, vb=vb, ib=ib: [f'ds_read_b64_tr_b16 {ar(r, 2)}, {vr(vb + n4)} offset:{ib + 16384 * k}',
                                                                                 f'ds_read_b64_tr_b16 {ar(r + 2, 2)}, {vr(vb + n4)} offset:{ib + 16384 * k + joff}']),
                       vm=(name, s) if n4 == 0 and k == 0 and not (cfg.nodma and s > 2) else None, lead=cfg.glead + cfg.gspread * (1 - k)) for k in range(2)]
            first = nb not in seen; seen.add(nb)
            def mfs(regs, nb=nb, first=first, au=au, bu=bu):
                r = []
                seq = [(qb, k ^ (qb & 1), k == 0) for qb in range(4) for k in range(2)] if cfg.chain else [(qb, k, k == 0) for k in range(2) for qb in range(4)]
                for qb, k, f in seq:
                    c = vr(ACC(nb, qb), 4)
                    r.append((f'{MF} {c}, {ar(au[k].reg or 0, 4)}, {ar(bu[2 * qb + k].reg, 4)}, {0 if first and f else c}', None))
                return r
            if newb and n4 == 0: g = Group(mfs, bu + au)
            else: g = Group(mfs, au, hold=bu)
            def rel(S, s=s, n4=n4):
                if n4 == 3: S['pend'] += refill(s)
                for ls, ln, ops in late:
                    if (ls, ln) == (s, n4): S['extra'] += ops
            g.on_start = rel
            groups.append(g)
    S = dict(pend=list(first_ops), extra=list(extra))
    S = schedule(st, groups, [A_AF + 4 * i for i in range(8)], cfg.glead, side_gap=lambda i: cfg.ggap, state=S, primed=12, sort_reads=True, max_wide=cfg.gmw, P=Policy(cfg.pg))
    if not keep: emit_ops(st, S['pend'])
    for x in S['extra']:
        if isinstance(x, tuple): st.vm(*x)
        else: st.e(x)
    return S['pend']

def gen_k1(cfg, name='k1_attn_kernel'):
    F = cfg.fused == 1; FT = cfg.fused > 0
    if FT: import tail
    if F: name = 'adaLN_cond__gqa_block_cached__dense_activation_relu__prompt_kernel'
    st = Stream(); e = st.e
    cfg.sv = 253
    e('s_cmp_ge_u32 s2, 256'); e('s_cbranch_scc1 L_k1_end')
    e(f's_load_dwordx8 s[48:55], s[0:1], {KA_X}')
    e(f's_load_dwordx2 s[56:57], s[0:1], {KA_WO}'); e(f's_load_dwordx2 s[58:59], s[0:1], {KA_WS}'); e(f's_load_dwordx4 s[4:7], s[0:1], {KA_W1}')
    if cfg.cpf:
        e('v_lshlrev_b32 v6, 4, v0'); code_addr(e, 'a', 'L_k1_body', 'L_k1_end' if cfg.cpf == 1 else 'L_k1_post', 6, 4)
        st.vm(f'global_load_dwordx4 {ar(A_DUMMY, 4)}, v[4:5], off', 'cpf')
        e('L_k1_body:')
    if FT: e(f's_load_dwordx8 s[64:71], s[0:1], {KA_C}'); e('v_mov_b32 v15, v0'); e('s_and_b32 s84, s2, 7'); e('s_lshr_b32 s85, s2, 3')
    stamp(st, cfg, 0)
    lg = {1: 0, 2: 1, 4: 2, 8: 3}[cfg.G]
    e('s_and_b32 s60, s2, 7'); e('s_lshr_b32 s61, s2, 3')
    e(f's_lshl_b32 s{S_G}, s60, {lg}'); e(f's_and_b32 s{S_G}, s{S_G}, 7'); e(f's_and_b32 s62, s61, {cfg.G - 1}'); e(f's_add_u32 s{S_G}, s{S_G}, s62')
    e(f's_lshr_b32 s60, s60, {3 - lg}'); e(f's_lshl_b32 s60, s60, {5 - lg}'); e(f's_lshr_b32 s{S_PF}, s61, {lg}'); e(f's_add_u32 s{S_RB}, s60, s{S_PF}')
    e('v_lshrrev_b32 v4, 6, v0'); e('v_and_b32 v0, 63, v0'); e(f'v_readfirstlane_b32 s{S_W}, v4')
    e(f'v_and_b32 v{V_R}, 15, v0'); e(f'v_lshrrev_b32 v{V_G}, 4, v0')
    e(f'v_and_b32 v4, 1, v{V_G}'); e('v_lshlrev_b32 v4, 1, v4'); e(f'v_lshrrev_b32 v5, 1, v{V_G}'); e(f'v_or_b32 v{V_PI}, v4, v5')
    e(f's_lshl_b32 s{S_WB}, s{S_W}, 12')
    if not cfg.krot: e(f's_mov_b32 s{S_ROT}, 0')
    else: e(f's_and_b32 s{S_ROT}, s{S_PF}, {cfg.rotmask}'); e(f's_lshl_b32 s{S_ROT}, s{S_ROT}, {cfg.rotsh}')
    e('v_lshlrev_b32 v7, 4, v0'); e(f's_lshl_b32 s62, s{S_ROT}, 2')
    e(f's_lshl_b32 s60, s{S_RB}, 16'); e(f's_lshl_b32 s61, s{S_W}, 14'); e('s_add_u32 s60, s60, s61'); e(f's_add_u32 s61, s61, {R3}')
    def x_off():
        for i in range(16):
            e(f'v_xad_u32 v{V_ACC + i}, v0, {i}, s62'); e(f'v_and_b32 v{V_ACC + i}, 63, v{V_ACC + i}'); e(f'v_lshlrev_b32 v{V_ACC + i}, 4, v{V_ACC + i}')
    if not F: x_off()
    e('s_waitcnt lgkmcnt(0)')
    QREG = lambda s: [R0, R2, R1][(s - 13) % 3]
    MODL = QREG(2) + 16384
    if F:
        srd(e, S_WS, 58, 59, WS_PART); srd(e, 80, 70, 71, 256)
        tail.mod_loads(st, cfg); tail.clear_counters(st, cfg); x_off()
    srd(e, S_X, 48, 49, 2048 * 1024)
    def x_dma(st):
        st.e('s_mov_b32 s76, s77')
        for i in range(16):
            if i % 4 == 0:
                st.e(f's_add_u32 m0, s78, {1024 * i}')
                st.e('s_add_u32 s76, s76, 4096' if i else 's_nop 0')
            st.vm(f'buffer_load_dwordx4 v{V_ACC + i}, {sr(S_X, 4)}, s76 offen offset:{1024 * (i % 4)} lds', 'x')
    e('s_mov_b32 s77, s60'); e('s_mov_b32 s78, s61')
    def x_early():
        if F:
            e(f's_cmp_lt_u32 s87, {tail.NU}'); e('s_cbranch_scc1 L_f_xlate'); st.cond = 'xearly'
        x_dma(st)
        if F: st.cond = False; e('L_f_xlate:')
    if not (F and cfg.xdelay): x_early()
    if F: tail.mod_urgent(st, cfg, MODL + 4096, x_dma)
    if not F:
        srd(e, S_WS, 58, 59, WS_PART if FT else 0x1000)
        e(f's_lshl_b32 s62, s{S_ROT}, 8'); e('v_add_u32 v6, s62, v7')
        for j in range(4):
            e(f's_add_u32 m0, s{S_WB}, {MODL + 1024 * j}'); e(f'v_add_u32 v5, {1024 * j}, v6'); e('v_and_b32 v5, 0xfff, v5')
            st.vm(f'buffer_load_dwordx4 v5, {sr(S_WS, 4)}, 0 offen lds', 'mod')
    e(f's_lshl_b32 s62, s{S_G}, 10'); e(f's_sub_u32 s63, {512 * 8192}, s62')
    srd(e, S_WQ, 54, 55, 's63', off='s62')
    e(f's_lshl_b32 s61, s{S_W}, 8'); e('v_lshrrev_b32 v8, 3, v0'); e(f'v_lshl_add_u32 v8, v8, 13, s61')
    e('v_and_b32 v5, 7, v0'); e(f'v_and_b32 v4, 1, v{V_G}'); e('v_lshlrev_b32 v4, 1, v4'); e('v_xor_b32 v4, v4, v5')
    e('v_lshl_add_u32 v9, v4, 4, v8'); e('v_xor_b32 v4, 4, v4'); e('v_lshl_add_u32 v10, v4, 4, v8')
    for j in range(8): e(f'v_add_u32 {vr(V_DWQ + j)}, {65536 * j - 1024 * (j % 4)}, v{9 + (j & 1)}')
    e(f's_lshl_b32 s{S_OFFW}, s{S_ROT}, 18')
    def wq_dma(s):
        if s % 2 == 0: return w_dma('wq', s, QREG(s), V_DWQ, S_WQ, S_OFFW, [f's_add_u32 s3, s{S_OFFW}, 128'])
        return w_dma('wq', s, QREG(s), V_DWQ, S_WQ, 3, [f's_add_u32 s{S_OFFW}, s{S_OFFW}, 524288', f's_and_b32 s{S_OFFW}, s{S_OFFW}, 0x3fffff'])
    def wo_dma(s):
        return w_dma('wo', s, OREG(s), V_DWO, S_WO, S_OFFW, [f's_add_u32 s{S_OFFW}, s{S_OFFW}, {65536 + (128 if s == 7 else 0)}', f's_and_b32 s{S_OFFW}, s{S_OFFW}, 0x7ffff'])
    OREG = lambda s: [R4, R0, R3][s % 3]
    wq_early = wq_dma(0) + wq_dma(1)
    wq2 = wq_dma(2)
    wq_early += wq2[:5]; wq_late = wq2[5:]
    emit_ops(st, wq_early[:cfg.npre]); wq_early = wq_early[cfg.npre:]
    ndum = [0]
    def pf(voff, srdr, soff, imm=0):
        r = A_DUMMY + 4 * (ndum[0] % 3); ndum[0] += 1
        return (f'buffer_load_dwordx4 {ar(r, 4)}, {voff}, {sr(srdr, 4)}, {soff} offen offset:{imm}', 'pf')
    pfo = []
    if cfg.pfq:
        pfo += [(f's_lshl_b32 s5, s{S_PF}, {17 + lg}', None), (f's_lshl_b32 s6, s{S_W}, {15 + lg}', None), ('s_add_u32 s5, s5, s6', None)]
        for i in range(4 * cfg.G): pfo += [pf('v7', S_WQ, 's5'), ('s_add_u32 s5, s5, 8192', None)]
    if cfg.prefetch:
        pfo += [(f's_lshl_b32 s5, s{S_PF}, {11 + lg}', None), (f's_lshl_b32 s6, s{S_W}, {9 + lg}', None), ('s_add_u32 s5, s5, s6', None)]
        for i in range(max(1, cfg.G // 2)): pfo += [pf('v7', S_K, 's5', 1024 * i), pf('v7', S_V, 's5', 1024 * i)]
    pfwo = [(f's_lshl_b32 s5, s{S_RB}, 14', None), (f's_add_u32 s5, s5, s{S_WB}', None)] + [pf('v252', S_WO, 's5', 1024 * i) for i in range(4)]
    e(f's_lshl_b32 s62, s{S_G}, 19')
    srd(e, S_K, 50, 51, 524288, off='s62'); srd(e, S_V, 52, 53, 524288, off='s62')
    srd(e, S_WO, 56, 57, 524288, off='s62')
    e(f's_lshl_b32 s62, s{S_G}, 21'); e(f's_add_u32 s62, s62, {WS_PART}')
    srd(e, S_PART, 58, 59, 1 << 21, off='s62')
    e('s_and_b32 s61, s2, 1'); e('s_mul_i32 s62, s61, 1792'); e(f's_sub_u32 s63, {512 * 3584}, s62'); srd(e, 92, 4, 5, 's63', off='s62')
    e('s_lshl_b32 s62, s61, 9'); e(f's_sub_u32 s63, {512 * 3584}, s62'); srd(e, 96, 6, 7, 's63', off='s62')
    e('s_lshr_b32 s4, s2, 3'); e('s_lshl_b32 s4, s4, 2'); e(f's_add_u32 s4, s4, s{S_W}'); e(f's_mul_i32 s7, s4, {14 * 1024}'); e(f's_mul_i32 s4, s4, {4 * 3584}')
    e('v_lshrrev_b32 v251, 5, v0'); e('v_lshlrev_b32 v251, 10, v251'); e('v_and_b32 v4, 31, v0'); e('v_lshl_add_u32 v251, v4, 4, v251')
    e('v_lshlrev_b32 v252, 4, v0')
    e(f's_mov_b32 s{S_OFFK}, 0'); e(f's_mov_b32 s{S_OFFV}, 0'); e(f's_add_u32 s{S_M0V}, s{S_WB}, {LDS_V}'); e(f's_mov_b32 s{S_FLAG}, 0')
    for ks in range(4):
        e(f'v_add_u32 v5, {4 * ks}, v{V_PI}'); e(f'v_xor_b32 v5, v5, v{V_R}'); e('v_lshlrev_b32 v5, 4, v5'); e(f'v_lshl_add_u32 {vr(V_KA + ks)}, v{V_R}, 8, v5')
    e(f'v_lshrrev_b32 v11, 2, v{V_R}'); e(f'v_and_b32 v12, 3, v{V_R}'); e('v_lshlrev_b32 v12, 3, v12')
    e(f'v_lshl_add_u32 v5, v{V_G}, 2, v11'); e('v_and_b32 v13, 7, v5'); e('v_lshl_add_u32 v14, v5, 8, v12'); e(f'v_add_u32 v14, {LDS_V}, v14')
    for db in range(8): e(f'v_xor_b32 v4, {db}, v13'); e(f'v_lshl_add_u32 {vr(V_VA + db)}, v4, 5, v14')
    e(f'v_lshl_add_u32 v9, v{V_G}, 8, s{S_WB}')
    for j in range(4): e(f'v_add_u32 v5, {4 * j}, v{V_G}'); e(f'v_xor_b32 v5, v5, v{V_R}'); e(f'v_lshl_add_u32 {vr(V_DK + j)}, v5, 4, v9')
    for j in range(2): e(f'v_add_u32 v5, {4 * j}, v{V_G}'); e('v_lshlrev_b32 v5, 1, v5'); e(f'v_xor_b32 v5, v5, v{V_R}'); e(f'v_lshl_add_u32 {vr(V_DV + j)}, v5, 4, v9')
    e(f's_lshl_b32 s61, s{S_W}, 8'); e('v_lshrrev_b32 v8, 3, v0'); e(f'v_lshl_add_u32 v8, v8, 10, s61')
    e('v_and_b32 v5, 7, v0'); e(f'v_lshlrev_b32 v4, 1, v{V_G}'); e('v_xor_b32 v4, v4, v5'); e(f'v_lshl_add_u32 {vr(V_DWO)}, v4, 4, v8')
    for j in range(1, 8): e(f'v_add_u32 {vr(V_DWO + j)}, {8192 * j - 1024 * (j % 4)}, {vr(V_DWO)}')
    e(f'v_and_b32 v4, 1, v{V_G}'); e(f'v_lshrrev_b32 v13, 3, v{V_R}'); e('v_lshl_add_u32 v13, v4, 1, v13')
    e(f'v_lshl_add_u32 v5, v{V_G}, 3, v11'); e('v_lshl_add_u32 v14, v5, 7, v12'); e(f'v_add_u32 v14, s{S_WB}, v14')
    for nb in range(4):
        e(f'v_xor_b32 v4, {nb}, v13'); e(f'v_lshl_add_u32 {vr(V_TA[0] + nb)}, v4, 5, v14'); e(f'v_add_u32 {vr(V_TA[1] + nb)}, {R2}, {vr(V_TA[0] + nb)}')
    e(f'v_add_u32 {vr(V_BA)}, {R3}, v7')
    e(f's_lshl_b32 s61, s{S_W}, 14'); e(f'v_add_u32 v8, s61, {vr(V_BA)}')
    e(f's_add_u32 s62, s{S_WB}, {MODL}' if not F else f's_mov_b32 s62, {MODL}'); e(f'v_lshl_add_u32 v9, v{V_G}, 5, s62')
    e(f's_add_u32 s61, s61, {R3}'); e(f'v_lshl_add_u32 v14, v{V_R}, 10, s61')
    for k in range(4): e(f'v_add_u32 v4, {4 * k}, v{V_G}'); e(f'v_xor_b32 v4, v4, v{V_R}'); e(f'v_lshl_add_u32 v{10 + k}, v4, 4, v14')
    zero = [f'v_accvgpr_write_b32 a{A_O + i}, 0' for i in range(128)] + [f'v_accvgpr_write_b32 a{A_L + i}, 0' for i in range(16)]
    zero += ['v_mov_b32 v5, 0x3f803f80'] + [f'v_accvgpr_write_b32 a{A_ONE + i}, v5' for i in range(4)]
    if F and cfg.xdelay == 1: x_early()
    if cfg.zearly:
        for z in zero: e(z)
    if F and cfg.xdelay == 2: x_early()
    main = st; st = Stream(); e = st.e
    if F: tail.x_wait(main, cfg)
    else: main.wait(vm=['x'])
    for ks in range(16): main.lds(f'ds_read_b128 {vr(V_ACC + 8 * ks + 4, 4)}, v{10 + ks % 4} offset:{(ks // 4) * 256}', ('x', ks))
    stamp(main, cfg, 1)
    if cfg.fused == 2 and cfg.stamps: main.e('v_writelane_b32 v253, s88, 2'); main.e('v_writelane_b32 v253, s88, 3'); main.e('v_writelane_b32 v254, s90, 2'); main.e('v_writelane_b32 v254, s90, 3')
    for ks in range(16):
        b = V_ACC + 8 * ks
        if ks % 2 == 0: st.wait(lds=[('x', ks + 1)])
        for j in range(4):
            e(f'v_lshlrev_b32 v{b + 2 * j}, 16, v{b + 4 + j}'); e(f'v_and_b32 v{b + 2 * j + 1}, 0xffff0000, v{b + 4 + j}')
        for j in range(4):
            if ks == 0: continue
            a = V_HO + 2 * j
            e(f'v_pk_add_f32 {vr(a, 2)}, {vr(b + 2 * j, 2)}, {vr(a, 2) if ks > 1 else vr(V_ACC + 2 * j, 2)}')
    a = V_HO
    e(f'v_pk_add_f32 {vr(a, 2)}, {vr(a, 2)}, {vr(a + 2, 2)}'); e(f'v_pk_add_f32 {vr(a + 4, 2)}, {vr(a + 4, 2)}, {vr(a + 6, 2)}')
    e(f'v_pk_add_f32 {vr(a, 2)}, {vr(a, 2)}, {vr(a + 4, 2)}'); e(f'v_add_f32 v4, v{a}, v{a + 1}')
    xlane_reduce(e, [4], [5], 'v_add_f32')
    e(f'v_mul_f32 v4, {f2h(-1.0 / 512)}, v4')
    for ks in range(16):
        b = V_ACC + 8 * ks
        for j in range(4): e(f'v_pk_add_f32 {vr(b + 2 * j, 2)}, {vr(b + 2 * j, 2)}, v[4:5] op_sel_hi:[1,0]')
        for j in range(4):
            if ks == 0: e(f'v_pk_mul_f32 {vr(a + 2 * j, 2)}, {vr(b + 2 * j, 2)}, {vr(b + 2 * j, 2)}')
            else: e(f'v_pk_fma_f32 {vr(a + 2 * j, 2)}, {vr(b + 2 * j, 2)}, {vr(b + 2 * j, 2)}, {vr(a + 2 * j, 2)}')
    def modrd(ks):
        m = V_MOD + 16 * (ks % 2)
        for j in range(4): st.lds(f'ds_read_b128 {vr(m + 4 * j, 4)}, v9 offset:{ks * 256 + (j // 2) * 128 + (j % 2) * 16}', ('mod', ks))
    if not F: st.wait(vm=['mod']); modrd(0); modrd(1)
    e(f'v_pk_add_f32 {vr(a, 2)}, {vr(a, 2)}, {vr(a + 2, 2)}'); e(f'v_pk_add_f32 {vr(a + 4, 2)}, {vr(a + 4, 2)}, {vr(a + 6, 2)}')
    e(f'v_pk_add_f32 {vr(a, 2)}, {vr(a, 2)}, {vr(a + 4, 2)}'); e(f'v_add_f32 v4, v{a}, v{a + 1}')
    xlane_reduce(e, [4], [5], 'v_add_f32')
    e(f'v_mov_b32 v5, {f2h(1e-5)}'); e(f'v_fmac_f32 v5, {f2h(1.0 / 512)}, v4'); e('v_rsq_f32 v4, v5'); e('s_nop 0')
    if F:
        for ks in range(16):
            for j in range(4): e(f'v_pk_mul_f32 {vr(V_ACC + 8 * ks + 2 * j, 2)}, {vr(V_ACC + 8 * ks + 2 * j, 2)}, v[4:5] op_sel_hi:[1,0]')
        left = interleave(main, st, (wq_early + pfo)[:len(wq_early + pfo) - cfg.wqlate], 0, cfg.lnev)
        st = main; e = st.e
        emit_ops(st, left)
        if cfg.wqlate: wq_late = (wq_early + pfo)[-cfg.wqlate:] + wq_late
        stamp(st, cfg, 9)
        tail.mod_fetch(st, cfg, MODL, S_ROT)
        stamp(st, cfg, 10)
        modrd(0); modrd(1)
        if cfg.tlb:
            e('v_lshlrev_b32 v4, 13, v0')
            for s_ in (S_K, S_V, S_WO): st.vm(f'buffer_load_dword a245, v4, {sr(s_, 4)}, 0 offen', 'tlb')
        emit_ops(st, tail.rest_loads())
    for ks in range(16):
        b = V_ACC + 8 * ks; m = V_MOD + 16 * (ks % 2); ho = V_HO + 4 * (ks % 2)
        if not F:
            for j in range(4): e(f'v_pk_mul_f32 {vr(b + 2 * j, 2)}, {vr(b + 2 * j, 2)}, v[4:5] op_sel_hi:[1,0]')
        st.wait(lds=[('mod', ks)])
        for j in range(4): e(f'v_pk_fma_f32 {vr(b + 2 * j, 2)}, {vr(b + 2 * j, 2)}, {vr(m + 2 * j, 2)}, {vr(m + 8 + 2 * j, 2)}')
        if ks + 2 < 16: modrd(ks + 2)
        for j in range(4): e(f'v_cvt_pk_bf16_f32 v{ho + j}, v{b + 2 * j}, v{b + 2 * j + 1}')
        st.lds(f'ds_write_b128 v8, {vr(ho, 4)} offset:{ks * 1024}', 'hw')
    if not F:
        body = st; st = main; e = st.e
        left = interleave(st, body, wq_early + pfo, 0, cfg.lnev)
        emit_ops(st, left + wq_late); wq_late = []
    st.wait(lds='all'); e('s_barrier')
    stamp(st, cfg, 2)
    def q_conv(ks):
        o = []
        for qb in range(4):
            d = V_Q + (qb * 4 + ks) * 4; a0 = ACC(2 * ks, qb); a1 = ACC(2 * ks + 1, qb)
            o += [f'v_cvt_pk_bf16_f32 v{d}, v{a0}, v{a0 + 1}', f'v_cvt_pk_bf16_f32 v{d + 1}, v{a0 + 2}, v{a0 + 3}',
                  f'v_cvt_pk_bf16_f32 v{d + 2}, v{a1}, v{a1 + 1}', f'v_cvt_pk_bf16_f32 v{d + 3}, v{a1 + 2}, v{a1 + 3}']
        for qb in range(4):
            d = V_Q + (qb * 4 + ks) * 4
            o += [f'v_permlane16_swap_b32 v{d}, v{d + 2}', f'v_permlane16_swap_b32 v{d + 1}, v{d + 3}']
        return o
    def ta_q(s):
        r = QREG(s); return (V_TA[1], 0) if r == R2 else (V_TA[0], r)
    def refill_q(s):
        if s + 3 < 16: return wq_dma(s + 3)
        return {13: kv_dma('K', 0) + kv_dma('K', 1), 14: kv_dma('V', 0) + kv_dma('V', 1), 15: []}[s]
    gemm(st, cfg, 'wq', [(s // 2, s % 2) for s in range(16)], ta_q, 512, V_BA, lambda ks, qb: qb * 16384 + ks * 1024, refill_q, [] if cfg.zearly else zero, first_ops=wq_late, late=([(2, 3, tail.rest_math())] if F else []) + [(15, 0, q_conv(0) + q_conv(1))], keep=False)
    stamp(st, cfg, 3)
    e('s_nop 3')
    for x in q_conv(2) + q_conv(3): e(x)
    st.wait(vm=[('dK', 0)]); e('s_barrier')
    if F: tail.rest_share(st, R4)
    if cfg.cpf == 2:
        e(f's_lshl_b32 s60, s{S_W}, 10'); e('v_lshl_add_u32 v6, v0, 4, s60'); code_addr(e, 'b', 'L_k1_post', 'L_k1_end', 6, 12)
    st.mark('attn_start')
    def max_ops(b, kb, first):
        o = []
        for qb in range(4):
            r = Sreg(b, kb, qb); m = 4 + qb
            o.append(f'v_max3_f32 v{m}, v{r}, v{r + 1}, ' + (f'v{r + 2}' if first else f'v{m}'))
        for qb in range(4):
            r = Sreg(b, kb, qb); m = 4 + qb
            o.append(f'v_max_f32 v{m}, v{m}, v{r + 3}' if first else f'v_max3_f32 v{m}, v{r + 2}, v{r + 3}, v{m}')
        return o
    def rawA(st, side, first):
        gs = groups_A(0, cfg, raw=True) + groups_A(1, cfg, raw=True)
        gs[2].on_start = lambda S: S['extra'].extend(max_ops(0, 0, first))
        gs[3].on_start = lambda S: S['extra'].extend(max_ops(0, 1, False) + max_ops(1, 0, False))
        S = schedule(st, gs, RING, 16, primed=8, side_gap=lambda i: 3, state=dict(pend=list(side)), P=Policy('order:1,dma_alone:1'))
        assert not S['pend'] and not S['extra']
    def make_negm(st):
        e = st.e
        xlane_reduce(e, [4, 5, 6, 7], [8, 9, 10, 11], 'v_max_f32')
        for qb in range(4):
            for i in range(4): e(f'v_sub_f32 {vr(V_NEGM + 4 * qb + i)}, {f2h(-cfg.B)}, v{4 + qb}')
    rawA(st, kv_dma('K', 2) + kv_dma('K', 3) + kv_dma('V', 2), True)
    e(f's_cmp_lg_u32 s{S_FLAG}, 0'); e('s_cbranch_scc1 L_k1_havemax0')
    e('s_nop 2')
    for x in max_ops(1, 1, False): e(x)
    make_negm(st)
    e('L_k1_havemax0:'); e('s_nop 5')
    e('L_k1_havemax:')
    for b in range(2):
        for kb in range(2):
            for qb in range(4):
                s = Sreg(b, kb, qb)
                for i in (0, 2): e(f'v_pk_add_f32 {vr(s + i, 2)}, {vr(s + i, 2)}, {vr(V_NEGM + 4 * qb, 2)}')
    for i in range(2 * cfg.lv): e(f'v_mov_b32 v{V_LS + i}, 0')
    st.wait(lds='all', vm=[('dK', 1), ('dV', 0)]); e('s_barrier')
    if F:
        e(f's_cmp_lg_u32 s{S_FLAG}, 0'); e('s_cbranch_scc1 L_f_norest'); tail.rest_store(st, R4)
        if cfg.tlb:
            e('v_lshlrev_b32 v4, 18, v0'); e('v_lshlrev_b32 v5, 15, v0')
            srd(e, 72, 58, 59, 8 << 21, off=WS_PART); srd(e, 64, 68, 69, 2 << 20)
            for v_, s_ in ((4, S_WS), (4, 72), (5, 64), (5, 92), (5, 96)): e(f'buffer_load_dword a245, v{v_}, {sr(s_, 4)}, 0 offen')
    pfw1 = []; pfw2 = []
    for r in range(4):
        pfw1 += [(f's_add_u32 s5, s4, {r * 3584}', None), pf('v252', 92, 's5'), pf('v252', 92, 's5', 768)]
    for r in range(7):
        pfw2 += [(f's_add_u32 s5, s7, {r * 2048}', None), pf('v251', 96, 's5')]
    pfe1, pfe2 = pfw1, pfw2
    if cfg.pfw & 8:
        pfe1 = [('s_lshr_b32 s6, s84, 1', None), ('s_mul_i32 s5, s6, 3584', None), ('s_add_u32 s5, s5, s4', None), pf('v252', 92, 's5'), pf('v252', 92, 's5', 768)]
        pfe2 = [('s_lshl_b32 s5, s6, 11', None), ('s_add_u32 s5, s5, s7', None), pf('v251', 96, 's5'), ('s_add_u32 s5, s5, 8192', None), pf('v251', 96, 's5')]
    def tail_extra(t):
        if t == 28: return ([(f'global_load_dwordx4 {ar(A_DUMMY, 4)}, v[12:13], off', 'cpf')] if cfg.cpf == 2 else []) + pfwo + (pfe1[:6] if cfg.pfw else [])
        if t == 29: return [(f's_lshl_b32 s{S_OFFW}, s{S_ROT}, 15', None)] + wo_dma(0) + (pfe2 if cfg.pfw else [])
        if t == 30: return wo_dma(1) + (pfe1[6:] if cfg.pfw else [])
        return []
    z = Stream(); ze = z.e
    ze(f'v_lshrrev_b32 v5, 2, v{V_R}'); ze(f'v_lshl_add_u32 v5, v{V_G}, 2, v5'); ze('v_bfe_u32 v6, v5, 1, 2'); ze(f'v_and_b32 v7, 3, v{V_R}'); ze('v_lshlrev_b32 v7, 3, v7')
    ze('v_lshl_add_u32 v7, v5, 7, v7'); ze(f'v_add_u32 v7, s{S_WB}, v7')
    for nb in range(4): ze(f'v_xor_b32 v5, {nb}, v6'); ze(f'v_lshl_add_u32 {vr(V_TO[0] + nb)}, v5, 5, v7'); ze(f'v_add_u32 {vr(V_TO[1] + nb)}, {R3}, {vr(V_TO[0] + nb)}')
    ze('v_and_b32 v15, 3, v0'); ze('v_lshlrev_b32 v15, 12, v15'); ze(f's_lshl_b32 s62, s{S_W}, 2'); ze(f's_add_u32 s62, s62, {R3}'); ze('v_add_u32 v15, s62, v15')
    ze('v_lshlrev_b32 v14, 4, v0'); ze(f's_lshl_b32 s61, s{S_W}, 2'); ze(f's_sub_u32 s61, s61, s{S_ROT}')
    for m in range(4):
        ze(f's_add_u32 s62, s61, {m}'); ze('s_and_b32 s62, s62, 15'); ze('s_lshl_b32 s62, s62, 12'); ze(f's_add_u32 s62, s62, {R1}'); ze(f'v_add_u32 v{V_P + m}, s62, v14')
    attn_main(st, cfg, tail_extra, z.resolve())
    stamp(st, cfg, 5)
    e('s_setreg_imm32_b32 hwreg(HW_REG_MODE, 4, 2), 3'); e('s_nop 4')
    if cfg.lv:
        lr = [V_S[0] + k for k in range(cfg.lv)]
        for k in range(cfg.lv): e(f'v_add_f32 v{lr[k]}, v{V_LS + 2 * k}, v{V_LS + 2 * k + 1}')
        xlane_reduce(e, lr, [V_S[0] + 4 + k for k in range(cfg.lv)], 'v_add_f32')
    for qb in range(4): e(f'v_accvgpr_read_b32 v{4 + qb}, a{A_L + 4 * qb}' if qb not in LVQ[cfg.lv] else f'v_mov_b32 v{4 + qb}, v{V_S[0] + LVQ[cfg.lv].index(qb)}')
    e(f'v_mov_b32 v{V_S[0] + 8}, {f2h(cfg.thr)}')
    e('v_max3_f32 v8, v4, v5, v6'); e('v_max_f32 v8, v8, v7')
    for qb in range(4): e(f'v_add_f32 v{9}, v{4 + qb}, {"v9" if qb else "0"}')
    e(f'v_cmp_nlt_f32 vcc, v8, v{V_S[0] + 8}'); e('v_cmp_u_f32 s[62:63], v9, v9')
    for qb in range(4): e(f'v_rcp_f32 v{4 + qb}, v{4 + qb}')
    e('s_or_b64 vcc, vcc, s[62:63]'); e('s_cmp_lg_u64 vcc, 0'); e('s_cselect_b32 s61, 1, 0')
    e('v_mov_b32 v11, s61'); st.lds('ds_write_b32 v15, v11', 'flagw')
    k = 0
    for qb in range(4):
        for m in range(4):
            t = V_S[0] + 16 * (k % 4); k += 1
            for hb in range(2):
                for i in range(4): e(f'v_accvgpr_read_b32 v{t + 4 * hb + i}, a{A_O + ((2 * m + hb) * 4 + qb) * 4 + i}')
            sel = f'v[{4 + qb}:{5 + qb}] op_sel_hi:[1,0]' if qb % 2 == 0 else f'v[{3 + qb}:{4 + qb}] op_sel:[0,1] op_sel_hi:[1,1]'
            for i in range(4): e(f'v_pk_mul_f32 {vr(t + 2 * i, 2)}, {vr(t + 2 * i, 2)}, {sel}')
            for i in range(4): e(f'v_cvt_pk_bf16_f32 v{t + 8 + i}, v{t + 2 * i}, v{t + 2 * i + 1}')
            st.lds(f'ds_write_b128 v{V_P + m}, {vr(t + 8, 4)} offset:{qb * 1024}', 'ow')
    e(f'v_add_u32 v{V_BO}, {R1}, v14'); e(f's_add_u32 s61, s{S_WB}, {R3}'); e('v_mov_b32 v10, s61')
    st.wait(lds='all'); e('s_barrier')
    st.lds('ds_read_b128 v[4:7], v10', 'flagr'); st.wait(lds=['flagr'])
    e('v_or3_b32 v4, v4, v5, v6'); e('v_or_b32 v4, v4, v7'); e('s_nop 0'); e('v_readfirstlane_b32 s61, v4'); e('s_nop 3')
    e(f's_andn2_b32 s61, s61, s{S_FLAG}'); e('s_cbranch_scc1 L_k1_slow')
    if F:
        e(f's_mov_b32 s61, {tail.CNT_MB}'); tail.signal(st, S_WS, 's61', 'L_f_sigb')
    stamp(st, cfg, 6)
    def ta_o(s):
        r = OREG(s); return (V_TO[0], 0) if r == R0 else (V_TO[1], r - R3)
    def refill_o(s): return wo_dma(s + 3) if s + 3 < 16 else []
    sadr = [f'v_lshrrev_b32 v4, 1, v{V_R}', 'v_lshlrev_b32 v4, 11, v4', f'v_lshl_add_u32 v4, v{V_PI}, 5, v4', f'v_and_b32 v5, 1, v{V_R}', 'v_lshl_add_u32 v4, v5, 4, v4',
            f's_lshl_b32 s48, s{S_RB}, 16', f's_lshl_b32 s62, s{S_W}, 9', 's_add_u32 s48, s48, s62'] + [f's_add_u32 s{48 + qb}, s48, {16384 * qb}' for qb in range(1, 4)]
    mbchk = []
    if F:
        sadr += [f's_min_u32 s52, s{S_W}, 1', 's_mul_i32 s52, s52, 0x7fff0000', f's_add_u32 s52, s52, {tail.CNT_MB}', 'v_mov_b32 v6, 0']
        mbchk = [(f'buffer_load_dword v255, v6, {sr(S_WS, 4)}, s52 offen sc1', 'mb')]
    def out_half(h):
        ops = []
        for qb in range(4):
            for m in (2 * h, 2 * h + 1):
                d = V_Q + (qb * 4 + m) * 4; a0 = ACC(2 * m, qb); a1 = ACC(2 * m + 1, qb)
                ops += [f'v_cvt_pk_bf16_f32 v{d}, v{a0}, v{a0 + 1}', f'v_cvt_pk_bf16_f32 v{d + 1}, v{a0 + 2}, v{a0 + 3}',
                        f'v_cvt_pk_bf16_f32 v{d + 2}, v{a1}, v{a1 + 1}', f'v_cvt_pk_bf16_f32 v{d + 3}, v{a1 + 2}, v{a1 + 3}']
            for m in (2 * h, 2 * h + 1):
                d = V_Q + (qb * 4 + m) * 4
                ops += [f'v_permlane16_swap_b32 v{d}, v{d + 2}', f'v_permlane16_swap_b32 v{d + 1}, v{d + 3}']
            for m in (2 * h, 2 * h + 1):
                ops.append((f'buffer_store_dwordx4 {vr(V_Q + (qb * 4 + m) * 4, 4)}, v4, {sr(S_PART, 4)}, s{48 + qb} offen offset:{m * 128}{SC}', 'st'))
        return ops
    gemm(st, cfg, 'wo', [(s % 8, s // 8) for s in range(16)], ta_o, 2048, V_BO, lambda ks, qb: ks * 4096 + qb * 1024, refill_o, sadr,
         first_ops=wo_dma(2), late=[(cfg.ost, 3, mbchk + out_half(0))] + ([(cfg.pfs, 3, [x if x[1] else x[0] for x in (pfw1 if cfg.pfw & 2 else []) + (pfw2 if cfg.pfw & 4 else [])])] if cfg.pfw > 1 else []))
    stamp(st, cfg, 7)
    e('s_nop 7')
    for x in out_half(1):
        if isinstance(x, tuple): st.vm(*x)
        else: e(x)
    if FT: tail.tail(st, cfg)
    else: stamp_out(st, cfg, 1, 8, 58, S_W)
    e('s_endpgm')
    segs, order = split_marks(st.resolve())
    NL = 28
    for t in range(4, NL):
        if segs[f'it{t}'] != segs[f'it{t - 4}']:
            import difflib, sys
            sys.stderr.write('\n'.join(list(difflib.unified_diff(segs[f'it{t - 4}'], segs[f'it{t}'], lineterm='', n=2))[:60]) + '\n')
            raise SystemExit(f'iteration {t} differs')
    if cfg.strip:
        import re
        pat = re.compile(cfg.strip.replace('+', '|'))
        for t in range(NL): segs[f'it{t}'] = [x for x in segs[f'it{t}'] if not pat.match(x)]
    out = header(name) + segs['_start'] + ['L_k1_attn_start:'] + segs['attn_start']
    tmp = Stream(); stamp(tmp, cfg, 4); out += tmp.resolve()
    out += [f's_mov_b32 s{S_CNT}, {NL // 4}', '.p2align 6', 'L_k1_loop:']
    for t in range(4): out += segs[f'it{t}']
    out += [f's_sub_u32 s{S_CNT}, s{S_CNT}, 1', f's_cmp_lg_u32 s{S_CNT}, 0', 's_cbranch_scc1 L_k1_loop']
    for t in range(NL, NT): out += (['L_k1_post:'] if t == NL + 2 else []) + segs[f'it{t}']
    out += segs['end']
    st = Stream(); e = st.e
    e('L_k1_slow:')
    e(f's_mov_b32 s{S_FLAG}, 1'); e('s_setreg_imm32_b32 hwreg(HW_REG_MODE, 4, 2), 0')
    e('s_waitcnt vmcnt(0) lgkmcnt(0)'); e('s_barrier')
    e(f's_mov_b32 s{S_OFFK}, 0'); e(f's_mov_b32 s{S_CNT}, {NT}')
    for qb in range(4): e(f'v_mov_b32 v{4 + qb}, 0xff800000')
    e('L_k1_slow_loop:')
    emit_ops(st, kv_dma('K', 0)); st.wait(vm='all'); e('s_barrier')
    rawA(st, [], False)
    e('s_nop 7')
    for x in max_ops(1, 1, False): e(x)
    e('s_barrier')
    e(f's_sub_u32 s{S_CNT}, s{S_CNT}, 1'); e(f's_cmp_lg_u32 s{S_CNT}, 0'); e('s_cbranch_scc1 L_k1_slow_loop')
    make_negm(st)
    for z in zero: e(z)
    e(f's_mov_b32 s{S_OFFK}, 0'); e(f's_mov_b32 s{S_OFFV}, 0')
    for w_, t_ in [('K', 0), ('K', 1), ('V', 0), ('V', 1)]: emit_ops(st, kv_dma(w_, t_))
    st.wait(vm='all'); e('s_barrier'); e('s_branch L_k1_attn_start')
    out += st.resolve() + ['L_k1_end:', 's_endpgm']
    return out, kd(name, 512, 256, 102), f'; @launch {"" if F else "kernel=" + name + " "}grid=(256,1,1) block=(256,1,1) lds=163840'
```

```python
from asmlib import *
def is_m0(t): return t.split(',')[0].endswith('m0')
def emit_ops(st, ops):
    for t, tag in ops:
        if tag: st.vm(t, tag)
        else:
            st.e(t)
            if is_m0(t): st.e('s_nop 0')

class Unit:
    def __init__(self, tag, rd, reg=None, gate=None, vm=None, lead=None):
        self.tag = tag; self.rd = rd; self.reg = reg; self.gate = gate; self.vm = vm; self.lead = lead
class Group:
    def __init__(self, mfs, units=(), hold=(), mark=None, barrier=None, wait_next=0, on_start=None, vmwait=None, sync=False, pre_ops=()):
        self.mfs = mfs; self.units = list(units); self.hold = list(hold); self.mark = mark; self.barrier = barrier
        self.wait_next = wait_next; self.on_start = on_start; self.vmwait = vmwait; self.sync = sync; self.pre_ops = pre_ops

class Policy:
    flex = 0; order = 0; dma_alone = 0; dma_prev = 0; wait_exp = 0; salu_exp = 0; bar_alone = 0; maxlag = 2; maxrd = 2; over = 7
    def __init__(self, s=''):
        for kv in filter(None, s.split(',')):
            k, v = kv.split(':'); setattr(self, k, int(v))

def schedule(st, groups, ring, lead, trans=(), posts=(), side_gap=lambda i: 12, state=None, primed=0, check=None, side_per_gap=1, dense_from=1 << 30, max_wide=1, sort_reads=False, P=Policy()):
    S = state if state is not None else {}
    S.setdefault('pend', []); S.setdefault('extra', []); S.setdefault('lastdma', -1000); S.setdefault('cnt', 0); S.setdefault('log', {})
    trans = list(trans); posts = list(posts)
    idx = 0; units = []
    for g in groups:
        g.start = idx
        for u in g.units: u.need = idx; u.last = None; units.append(u)
        g.n = len(g.mfs(None)); idx += g.n
    total = idx
    for g in groups:
        for u in g.units + g.hold: u.last = g.start + g.n - 1
    c = 0; prev = {}
    for u in units:
        if u.reg is None: u.reg = ring[c % len(ring)]; c += 1
        u.earliest = u.need - (u.lead if u.lead is not None else lead)
        if u.reg in prev: u.earliest = max(u.earliest, prev[u.reg].last)
        if u.gate is not None: u.earliest = max(u.earliest, u.gate.start)
        assert u.earliest < u.need - 3 or u.need == 0 or units.index(u) < primed, (u.tag, u.earliest, u.need)
        prev[u.reg] = u; u.issued = False; u.waited = False
    rq = []
    for u in units:
        ops = u.rd(u.reg)
        if u.vm is not None: rq.append((u, 'vmwait', False))
        for k, t in enumerate(ops): rq.append((u, t, k == len(ops) - 1))
    rq.sort(key=lambda x: (units.index(x[0]) >= primed, x[0].earliest) if sort_reads else 0)
    def pop_read():
        u, t, last = rq.pop(0)
        if t == 'vmwait': st.wait(vm=[u.vm])
        else: st.lds(t, u.tag)
        if last: u.issued = True
    while rq and units.index(rq[0][0]) < primed: pop_read()
    if 'after_prime' in S: S['after_prime'](st, trans, posts, S)
    ntr = S.get('ntr', 0)
    def wait_tags(gi):
        g = groups[gi]; need = [u for u in g.units if not u.waited]
        if not need: return []
        for k in range(1, g.wait_next + 1):
            if gi + k < len(groups) and not groups[gi + k].barrier: need += [u for u in groups[gi + k].units if not u.waited]
        return need
    w0 = wait_tags(0)
    if w0 or groups[0].vmwait:
        assert all(u.issued for u in w0)
        st.wait(lds=[u.tag for u in w0] or None, vm=groups[0].vmwait)
        for u in w0: u.waited = True
    m0 = False; prev = S.get('prev', 'P')
    for gi, g in enumerate(groups):
        if g.mark: st.mark(g.mark); S['log'][g.mark] = (S['cnt'], S['lastdma'] - g.start, len(trans), len(posts), sum(u.issued for u in units), prev)
        if g.barrier:
            for u in g.barrier.get('units', []): assert u.issued, ('not issued before barrier', u.tag)
            assert not S['pend'], ('side ops left at barrier', S['pend'])
            st.wait(lds='all', vm=g.barrier['vm']); st.e('s_barrier')
            for u in units:
                if u.issued: u.waited = True
            S['pend'] = list(g.barrier.get('then', [])); S['cnt'] = 0; m0 = False
        if g.sync: st.e('s_barrier'); m0 = False
        for x in g.pre_ops: st.e(x)
        if g.on_start: g.on_start(S)
        assert all(u.waited for u in g.units), [u.tag for u in g.units if not u.waited]
        mfs = g.mfs([u.reg for u in g.units + g.hold])
        for k, (txt, info) in enumerate(mfs):
            i = g.start + k
            if check: check('mfma', info, i)
            st.e(txt); m0 = False
            lastg = k == g.n - 1
            nxt = groups[gi + 1] if lastg and gi + 1 < len(groups) else None
            wt = wait_tags(gi + 1) if nxt and not nxt.barrier else []
            vw = nxt.vmwait if nxt else None
            bar = bool(nxt and (nxt.barrier or nxt.sync))
            need_rd = any(not u.issued for u in wt)
            def do_wait():
                assert all(u.issued for u in wt), [u.tag for u in wt if not u.issued]
                st.wait(lds=[u.tag for u in wt] or None, vm=vw)
                for u in wt: u.waited = True
            safe = ntr
            dense = i >= dense_from
            backlog = sum(1 for t in trans[:4] if t[0] <= i)
            pend = S['pend']
            dma_due = bool(pend) and pend[0][1] is not None and i - S['lastdma'] >= side_gap(i)
            rd_due = bool(rq) and rq[0][0].earliest <= i
            if P.flex and not dense:
                if bar and P.bar_alone: kind = 'B'
                elif need_rd: kind = 'P'
                elif dma_due and P.dma_alone and (prev != 'E' or not P.dma_prev) and backlog <= P.maxlag: kind = 'D'
                elif backlog and (prev != 'E' or backlog >= 2 or not (rd_due or (posts and posts[0][0] <= safe) or dma_due)) \
                        and not (dma_due and P.dma_alone and P.dma_prev and backlog <= P.maxlag - 1 and prev == 'E') and ((wt or vw) == [] or not (wt or vw) or P.wait_exp): kind = 'E'
                else: kind = 'P'
            else:
                kind = 'E' if (i % 2 == 0 or dense) and backlog else 'P'
                if kind == 'P' and dma_due and P.dma_alone and not bar and not need_rd: kind = 'D'
            waited = False
            if kind == 'E':
                if not dense:
                    if wt or vw: do_wait(); waited = True
                    elif P.salu_exp and pend and pend[0][1] is None: st.e(pend.pop(0)[0]); S['cnt'] += 1
                _, t, key = trans.pop(0); st.e(t); ntr += 1
                if check: check('trans', key, i)
            if kind == 'D':
                if wt or vw: do_wait(); waited = True
                t, tag = pend.pop(0); S['cnt'] += 1; st.vm(t, tag); S['lastdma'] = i
            slots = 0
            if kind == 'P' or (kind == 'E' and dense):
                slots = 2 - (1 if wt or vw else 0) - (2 if nxt and nxt.barrier else 1 if bar else 0)
            if kind == 'P' and not bar and sum(1 for p in posts[:P.over] if p[0] <= safe) >= P.over: slots += 1
            nside = 0; nwide = 0; nrd = 0; valu = kind == 'E' and P.order
            while kind == 'P' or (kind == 'E' and dense):
                ap = bool(posts) and posts[0][0] <= safe
                rd_ok = bool(rq) and rq[0][0].earliest <= i
                force_rd = rd_ok and any(not u.issued for u in wt)
                if rd_ok and 'b128' in rq[0][1] and nwide >= max_wide and not force_rd: rd_ok = False
                if valu and not force_rd and not dense: rd_ok = False
                if rd_ok and nrd >= P.maxrd and not force_rd: rd_ok = False
                side_ok = slots > 0 and pend and not m0 and (pend[0][1] is None or (not P.dma_alone and not (valu and P.order) and i - S['lastdma'] >= side_gap(i) and nside < side_per_gap))
                x_ok = slots > 0 and S['extra'] and not (isinstance(S['extra'][0], tuple) and valu and P.order)
                if rd_ok and (slots > 0 or force_rd):
                    if 'b128' in rq[0][1]: nwide += 1
                    if rq[0][1] != 'vmwait': nrd += 1
                    pop_read(); m0 = False
                elif side_ok and pend[0][1] is not None and P.order:
                    t, tag = pend.pop(0); S['cnt'] += 1; st.vm(t, tag); S['lastdma'] = i; nside += 1
                elif ap and slots > 0 and (posts[0][2] <= i or not pend):
                    p = posts.pop(0); st.e(p[1]); m0 = False; valu = P.order
                    if check: check('post', p[3], i)
                elif side_ok:
                    t, tag = pend.pop(0); S['cnt'] += 1
                    if tag: st.vm(t, tag); S['lastdma'] = i; nside += 1
                    else: st.e(t); m0 = is_m0(t)
                elif ap and slots > 0:
                    p = posts.pop(0); st.e(p[1]); m0 = False; valu = P.order
                    if check: check('post', p[3], i)
                elif x_ok:
                    x = S['extra'].pop(0)
                    if isinstance(x, tuple) and x[0] == 'lds': st.lds(x[1], 'xl')
                    elif isinstance(x, tuple): st.vm(*x)
                    else: st.e(x); valu = P.order and x.startswith('v_')
                    m0 = False
                else: break
                slots -= 1
            if (wt or vw) and not waited: do_wait()
            prev = kind
    assert not rq and not trans and not posts, (len(rq), len(trans), len(posts))
    if m0: st.e('s_nop 0')
    return S
```

```python
from gen_common import *
from engine import *

S_X, S_WQ, S_K, S_V, S_WO, S_WS, S_PART = 8, 12, 16, 20, 24, 28, 32
S_G, S_RB, S_W, S_WB = 36, 37, 38, 39
S_OFFK, S_OFFV, S_M0V, S_CNT, S_OFFW, S_FLAG = 40, 41, 43, 44, 45, 46
S_M0K = S_WB; S_PF = 47; S_ROT = 42
S_T = 48
V_R, V_G, V_PI = 1, 2, 3
V_Q = 16; V_S = [80, 112]; V_P = 144; V_NEGM = 208
V_KA = 224; V_VA = 228; V_DK = 236; V_DV = 240; V_DWO = 242; V_TO = [208, 212]; V_BO = 250
V_ACC = 80
V_DWQ = 16; V_TA = [24, 28]; V_BA = 40; V_MOD = 48; V_HO = 208
A_O = 0; A_FR = 128; A_BF = 128; A_L = 192; A_ONE = 208; A_AF = 212; A_DUMMY = 244
R0, R1, R2, R3, R4 = 0, 32768, 65536, 98304, 131072
LDS_V = R2
NT = 32
RING = [A_FR + 4 * i for i in range(16)]

def O(db, qb): return ar(A_O + (db * 4 + qb) * 4, 4)
def Q(qb, ks): return vr(V_Q + (qb * 4 + ks) * 4, 4)
def Lr(qb): return ar(A_L + qb * 4, 4)
def Sreg(buf, kb, qb): return V_S[buf] + (kb * 4 + qb) * 4
def Preg(h, qb): return V_P + (h % 4) * 16 + qb * 4
def ACC(nb, qb): return V_ACC + (nb * 4 + qb) * 4

class Cfg:
    lead = 20; spread = 0; xlead = 20; S0 = 48; XG = 6; nodma = 0; strip = ''; blead = 30; mw = 2; B = 102; dma_gap = 12; glead = 14; ggap = 1; bspread = 0; gspread = 0; stamps = 0; thr = 2.0 ** 64; prefetch = 0; cpf = 2; G = 4; pfq = 0; krot = 1; npre = 0
    h2sc = 0; k2nt = 1; k0pf = 0; lnev = 24; rot = 0; k3pre = 2; k4pre = 3; pfw = 9; chain = 1; fused = 0; pp = 0; fw = 0; dwl = 1; al = 1; pfo2 = 1; mlate = 1; spec = 0; npa = 4; osc = 0; pfs = 14; lv = 2; hwd = 0; pa = 'flex:1,order:1,dma_alone:1,dma_prev:1,wait_exp:1,salu_exp:1'; pg = 'order:1,dma_alone:1'; p1 = 'order:1,dma_alone:1'; p2 = 'order:1'; gmw = 2; xfirst = 1; tlb = 0; xdelay = 0; k0wait = 1; zearly = 1; w1early = 8; f1gap = 4; nprod = 96; wqlate = 0; f1pre = 8; f2pre = 2; rnt = 1; rotmask = 7; rotsh = 1; ost = 12

def groups_A(h, cfg, raw=False, gate=None):
    tile, hf = h // 2, h % 2
    gs = []
    for kb in range(2):
        off = (tile % 4) * 16384 + (32 * hf + 16 * kb) * 256
        us = [Unit(('K', h, kb, ks), (lambda r, ks=ks, off=off: [f'ds_read_b128 {ar(r, 4)}, {vr(V_KA + ks)} offset:{off}']), gate=gate, lead=cfg.lead + cfg.spread * (3 - ks)) for ks in range(4)]
        def mfs(regs, kb=kb):
            regs = regs or [0] * 4
            order = [(qb, ks if qb % 2 == 0 else 3 - ks, ks == 0, ks == 3) for qb in range(4) for ks in range(4)] if cfg.chain else \
                    [(qb, ks, ks == 0, ks == 3) for ks in range(4) for qb in range(4)]
            r = []
            for qb, ks, first, last in order:
                s = vr(Sreg(h % 2, kb, qb), 4)
                c = ('0' if raw else vr(V_NEGM + 4 * qb, 4)) if first else s
                r.append((f'{MF} {s}, {ar(regs[ks], 4)}, {Q(qb, ks)}, {c}', ('A', h, kb, qb, first, last)))
            return r
        gs.append(Group(mfs, us))
    return gs

def unit_V(h, db):
    off = ((h // 2) % 4) * 16384 + (32 * (h % 2)) * 256
    return Unit(('V', h, db), lambda r: [f'ds_read_b64_tr_b16 {ar(r, 2)}, {vr(V_VA + db)} offset:{off}',
                                          f'ds_read_b64_tr_b16 {ar(r + 2, 2)}, {vr(V_VA + db)} offset:{off + 4096}'])
def groups_C(hs, cfg):
    gs = []
    def order(qb):
        o = list(range(len(hs)))
        return o if qb % 2 == 0 else o[::-1]
    seq = [(qb, k) for qb in range(4) for k in order(qb)] if cfg.chain else [(qb, k) for k in range(len(hs)) for qb in range(4)]
    for db in range(8):
        def mfs(regs, db=db):
            regs = regs or [0] * 2
            return [(f'{MF} {O(db, qb)}, {ar(regs[k], 4)}, {vr(Preg(hs[k], qb), 4)}, {O(db, qb)}', ('C', hs[k], qb)) for qb, k in seq]
        us = [unit_V(h, db) for h in hs]
        for k, u in enumerate(us): u.lead = cfg.lead + cfg.spread * (len(hs) - 1 - k)
        gs.append(Group(mfs, us, wait_next=1 if db % 2 == 0 else 0))
    gs.append(Group(lambda regs: [(f'{MF} {Lr(qb)}, {ar(A_ONE, 4)}, {vr(Preg(hs[k], qb), 4)}, {Lr(qb)}', ('C', hs[k], qb)) for qb, k in seq if qb not in LVQ[cfg.lv]]))
    return gs

LVQ = [[], [2], [1, 3]]
V_LS = 8
def softmax_ops(h, start, base, cfg):
    exps = []; posts = []
    for kb in range(2):
        for qb in range(4):
            s = Sreg(h % 2, kb, qb)
            for i in range(4):
                exps.append((start + 2 * len(exps), f'v_exp_f32 {vr(s + i)}, {vr(s + i)}', (h, kb, qb)))
                if qb in LVQ[cfg.lv]:
                    l = V_LS + 2 * LVQ[cfg.lv].index(qb) + (i & 1)
                    posts.append((base + len(exps), f'v_add_f32 v{l}, v{l}, {vr(s + i)}', start + 2 * len(exps) + 1, (h, kb, qb, 'add')))
                if i & 1:
                    posts.append((base + len(exps), f'v_cvt_pk_bf16_f32 {vr(Preg(h, qb) + 2 * kb + i // 2)}, {vr(s + i - 1)}, {vr(s + i)}', start + 2 * len(exps) + 1, (h, kb, qb)))
    return exps, posts

def kv_dma(which, tile):
    slot = tile % 4
    m0, dv, srdr, off, nv = (S_M0K, V_DK, S_K, S_OFFK, 4) if which == 'K' else (S_M0V, V_DV, S_V, S_OFFV, 2)
    ops = [(f's_add_u32 m0, {sr(m0)}, {slot * 16384}', None)]
    for j in range(4):
        ops.append((f'buffer_load_dwordx4 {vr(dv + j % nv)}, {sr(srdr, 4)}, {sr(off)} offen offset:{j * 1024} lds', ('d' + which, tile)))
    ops.append((f's_add_u32 {sr(off)}, {sr(off)}, 16384', None))
    return ops

def w_dma(name, s, region, dv, srdr, soff, post):
    ops = []
    for j in range(8):
        if j % 4 == 0: ops.append((f's_add_u32 m0, {sr(S_WB)}, {region + (j // 4) * 16384}', None))
        ops.append((f'buffer_load_dwordx4 {vr(dv + j)}, {sr(srdr, 4)}, {sr(soff)} offen offset:{(j % 4) * 1024} lds', (name, s)))
    return ops + [(p, None) for p in post]

def attn_main(st, cfg, tail_extra, last_extra):
    NI = 136 - 2 * cfg.lv; HW = NI // 2 - 2 + cfg.hwd
    PP = 16 + 8 * cfg.lv
    def window(t):
        ops = []
        if t + 3 < NT: ops += kv_dma('V', t + 3)
        if t + 4 < NT: ops += kv_dma('K', t + 4)
        return ops + tail_extra(t)
    def build():
        groups = []; gate = None; idx = 0; exps = []; posts = []
        e0, p0 = softmax_ops(0, -1000, 0, cfg); e1, p1 = softmax_ops(1, cfg.S0 + HW - NI, 32, cfg)
        exps += e0 + e1; posts += p0 + p1
        for t in range(NT):
            if t < NT - 1:
                gs = groups_A(2 * t + 2, cfg, gate=gate) + groups_A(2 * t + 3, cfg, gate=gate)
                cs = groups_C([2 * t, 2 * t + 1], cfg)
                x = cs[cfg.XG]
                x.barrier = dict(vm=[('dV', t + 1)] + ([('dK', t + 2)] if t + 2 < NT else []), units=[u for g in cs for u in g.units], then=window(t + 1))
                for g in cs[cfg.XG:8]:
                    for u in g.units: u.lead = max(u.lead, cfg.xlead + 8 * (cs.index(g) - cfg.XG) + (u.lead - cfg.lead) // 2)
                gs += cs; ngate = x
                for k in range(2):
                    ee, pp = softmax_ops(2 * t + 2 + k, idx + cfg.S0 + HW * k, 32 * (2 * t + 2 + k), cfg); exps += ee; posts += pp
            else:
                gs = groups_C([2 * t], cfg) + groups_C([2 * t + 1], cfg)
                for g in gs:
                    for u in g.units: u.gate = gate; u.lead = min(cfg.lead, 14)
                gs[9].on_start = lambda S: S['extra'].extend(last_extra)
            gs[0].mark = f'it{t}'
            groups += gs; gate = ngate; idx += NI
        return groups, exps, posts
    def check_fn():
        spend = {}; sready = {}; pdone = {};
        def check(kind, key, i):
            if kind == 'mfma' and key[0] == 'A':
                _, h, kb, qb, first, last = key
                if first: assert spend.get((h % 2, kb, qb), 0) == 0, ('S overwritten early', key, i)
                if last: spend[(h % 2, kb, qb)] = 6 if qb in LVQ[cfg.lv] else 2; sready[(h, kb, qb)] = i
            elif kind == 'mfma' and key[0] == 'C':
                if key[1] >= 2: assert pdone.get((key[1], key[2]), (0, 0))[0] == 4 and pdone[(key[1], key[2])][1] < i - 1, ('P not ready', key, i)
                check.lastC[(key[1] % 4, key[2])] = (key[1], i)
            elif kind == 'trans':
                if key[0] >= 2: assert i >= sready[key] + 8, ('S not ready', key, i)
            elif kind == 'post':
                h, kb, qb = key[:3]
                if h >= 2: spend[(h % 2, kb, qb)] -= 1
                if len(key) > 3: return
                c = pdone.get((h, qb), (0, 0)); pdone[(h, qb)] = (c[0] + 1, i)
                if h >= 4: assert check.cnt_c(h - 4, qb), ('P overwritten early', key, i)
        check.lastC = {}
        seen = {}
        def wrap(kind, key, i):
            if kind == 'mfma' and key[0] == 'C': seen[(key[1], key[2])] = seen.get((key[1], key[2]), 0) + 1
            check(kind, key, i)
        check.cnt_c = lambda h, qb: seen.get((h, qb), 0) == (8 if qb in LVQ[cfg.lv] else 9)
        return wrap
    def run(st, pre):
        groups, exps, posts = build()
        npre, lastoff, ntr0, npo0, primed, prev = pre
        def after_prime(st, trans, posts, S):
            emit_ops(st, S['pend'][:npre]); S['pend'] = S['pend'][npre:]
            k = 0
            for n in range(ntr0):
                st.e(trans.pop(0)[1])
                while k < npo0 and posts[0][0] <= n: st.e(posts.pop(0)[1]); k += 1
            st.e('s_nop 0')
            while k < npo0: st.e(posts.pop(0)[1]); k += 1
            S['ntr'] = ntr0
        S = dict(pend=window(0), lastdma=lastoff, after_prime=after_prime, prev=prev)
        nl = NI * (NT - 1)
        exps = [(min(a, nl), b, c) for a, b, c in exps]
        posts = [(a, b, min(c, nl), d) for a, b, c, d in posts]
        S = schedule(st, groups, RING, cfg.lead, exps, posts, side_gap=lambda i: cfg.dma_gap if i < NI * 28 else 6, state=S, primed=primed, check=check_fn(), dense_from=nl, max_wide=cfg.mw, P=Policy(cfg.pa))
        for x in S['extra']: st.e(x)
        st.mark('end')
        return S['log'], len(exps), len(posts)
    log, ne, npo = run(Stream(), (3, -1000, 32 + (NI - cfg.S0 - HW + 1) // 2, PP + (NI - cfg.S0 - HW + 1) // 4 - 1, 4, 'P'))
    def norm(t):
        c, ld, nt, npp, rq, pv = log[f'it{t}']
        return (c, ld, ne - nt - 64 * t, npo - npp - 2 * PP * t, rq - 32 * t, pv)
    n = norm(3)
    assert all(norm(t) == n for t in range(3, NT - 4)), [norm(t) for t in range(2, 8)]
    run(st, n)

def gemm(st, cfg, name, stages, ta, joff, vba, baddr, refill, extra, first_ops=(), late=(), keep=False):
    groups = []; bcur = None; nb_sets = 0; seen = set()
    for s, (kp, half) in enumerate(stages):
        vb, ib = ta(s)
        newb = bcur is None or bcur[0] != kp or stages[s - 1][1] == half
        if newb:
            base = A_BF + 32 * (nb_sets % 2); nb_sets += 1
            bu = [Unit((name + 'B', s, k, qb), (lambda r, k=k, qb=qb, kp=kp: [f'ds_read_b128 {ar(r, 4)}, {vr(vba)} offset:{baddr(2 * kp + k, qb)}']), reg=base + 16 * k + 4 * qb, lead=cfg.blead - cfg.bspread * (2 * qb + k))
                  for qb in range(4) for k in range(2)]
            bcur = (kp, bu)
        bu = bcur[1]
        for n4 in range(4):
            nb = 4 * half + n4
            au = [Unit((name + 'A', s, n4, k), (lambda r, k=k, n4=n4, vb=vb, ib=ib: [f'ds_read_b64_tr_b16 {ar(r, 2)}, {vr(vb + n4)} offset:{ib + 16384 * k}',
                                                                                 f'ds_read_b64_tr_b16 {ar(r + 2, 2)}, {vr(vb + n4)} offset:{ib + 16384 * k + joff}']),
                       vm=(name, s) if n4 == 0 and k == 0 and not (cfg.nodma and s > 2) else None, lead=cfg.glead + cfg.gspread * (1 - k)) for k in range(2)]
            first = nb not in seen; seen.add(nb)
            def mfs(regs, nb=nb, first=first, au=au, bu=bu):
                r = []
                seq = [(qb, k ^ (qb & 1), k == 0) for qb in range(4) for k in range(2)] if cfg.chain else [(qb, k, k == 0) for k in range(2) for qb in range(4)]
                for qb, k, f in seq:
                    c = vr(ACC(nb, qb), 4)
                    r.append((f'{MF} {c}, {ar(au[k].reg or 0, 4)}, {ar(bu[2 * qb + k].reg, 4)}, {0 if first and f else c}', None))
                return r
            if newb and n4 == 0: g = Group(mfs, bu + au)
            else: g = Group(mfs, au, hold=bu)
            def rel(S, s=s, n4=n4):
                if n4 == 3: S['pend'] += refill(s)
                for ls, ln, ops in late:
                    if (ls, ln) == (s, n4): S['extra'] += ops
            g.on_start = rel
            groups.append(g)
    S = dict(pend=list(first_ops), extra=list(extra))
    S = schedule(st, groups, [A_AF + 4 * i for i in range(8)], cfg.glead, side_gap=lambda i: cfg.ggap, state=S, primed=12, sort_reads=True, max_wide=cfg.gmw, P=Policy(cfg.pg))
    if not keep: emit_ops(st, S['pend'])
    for x in S['extra']:
        if isinstance(x, tuple): st.vm(*x)
        else: st.e(x)
    return S['pend']

def gen_k1(cfg, name='k1_attn_kernel'):
    F = cfg.fused == 1; FT = cfg.fused > 0
    if FT: import tail
    if F: name = 'adaLN_cond__gqa_block_cached__dense_activation_relu__prompt_kernel'
    st = Stream(); e = st.e
    cfg.sv = 253
    e('s_cmp_ge_u32 s2, 256'); e('s_cbranch_scc1 L_k1_end')
    e(f's_load_dwordx8 s[48:55], s[0:1], {KA_X}')
    e(f's_load_dwordx2 s[56:57], s[0:1], {KA_WO}'); e(f's_load_dwordx2 s[58:59], s[0:1], {KA_WS}'); e(f's_load_dwordx4 s[4:7], s[0:1], {KA_W1}')
    if cfg.cpf:
        e('v_lshlrev_b32 v6, 4, v0'); code_addr(e, 'a', 'L_k1_body', 'L_k1_end' if cfg.cpf == 1 else 'L_k1_post', 6, 4)
        st.vm(f'global_load_dwordx4 {ar(A_DUMMY, 4)}, v[4:5], off', 'cpf')
        e('L_k1_body:')
    if FT: e(f's_load_dwordx8 s[64:71], s[0:1], {KA_C}'); e('v_mov_b32 v15, v0'); e('s_and_b32 s84, s2, 7'); e('s_lshr_b32 s85, s2, 3')
    stamp(st, cfg, 0)
    lg = {1: 0, 2: 1, 4: 2, 8: 3}[cfg.G]
    e('s_and_b32 s60, s2, 7'); e('s_lshr_b32 s61, s2, 3')
    e(f's_lshl_b32 s{S_G}, s60, {lg}'); e(f's_and_b32 s{S_G}, s{S_G}, 7'); e(f's_and_b32 s62, s61, {cfg.G - 1}'); e(f's_add_u32 s{S_G}, s{S_G}, s62')
    e(f's_lshr_b32 s60, s60, {3 - lg}'); e(f's_lshl_b32 s60, s60, {5 - lg}'); e(f's_lshr_b32 s{S_PF}, s61, {lg}'); e(f's_add_u32 s{S_RB}, s60, s{S_PF}')
    e('v_lshrrev_b32 v4, 6, v0'); e('v_and_b32 v0, 63, v0'); e(f'v_readfirstlane_b32 s{S_W}, v4')
    e(f'v_and_b32 v{V_R}, 15, v0'); e(f'v_lshrrev_b32 v{V_G}, 4, v0')
    e(f'v_and_b32 v4, 1, v{V_G}'); e('v_lshlrev_b32 v4, 1, v4'); e(f'v_lshrrev_b32 v5, 1, v{V_G}'); e(f'v_or_b32 v{V_PI}, v4, v5')
    e(f's_lshl_b32 s{S_WB}, s{S_W}, 12')
    if not cfg.krot: e(f's_mov_b32 s{S_ROT}, 0')
    else: e(f's_and_b32 s{S_ROT}, s{S_PF}, {cfg.rotmask}'); e(f's_lshl_b32 s{S_ROT}, s{S_ROT}, {cfg.rotsh}')
    e('v_lshlrev_b32 v7, 4, v0'); e(f's_lshl_b32 s62, s{S_ROT}, 2')
    e(f's_lshl_b32 s60, s{S_RB}, 16'); e(f's_lshl_b32 s61, s{S_W}, 14'); e('s_add_u32 s60, s60, s61'); e(f's_add_u32 s61, s61, {R3}')
    def x_off():
        for i in range(16):
            e(f'v_xad_u32 v{V_ACC + i}, v0, {i}, s62'); e(f'v_and_b32 v{V_ACC + i}, 63, v{V_ACC + i}'); e(f'v_lshlrev_b32 v{V_ACC + i}, 4, v{V_ACC + i}')
    if not F: x_off()
    e('s_waitcnt lgkmcnt(0)')
    QREG = lambda s: [R0, R2, R1][(s - 13) % 3]
    MODL = QREG(2) + 16384
    if F:
        srd(e, S_WS, 58, 59, WS_PART); srd(e, 80, 70, 71, 256)
        tail.mod_loads(st, cfg); tail.clear_counters(st, cfg); x_off()
    srd(e, S_X, 48, 49, 2048 * 1024)
    def x_dma(st):
        st.e('s_mov_b32 s76, s77')
        for i in range(16):
            if i % 4 == 0:
                st.e(f's_add_u32 m0, s78, {1024 * i}')
                st.e('s_add_u32 s76, s76, 4096' if i else 's_nop 0')
            st.vm(f'buffer_load_dwordx4 v{V_ACC + i}, {sr(S_X, 4)}, s76 offen offset:{1024 * (i % 4)} lds', 'x')
    e('s_mov_b32 s77, s60'); e('s_mov_b32 s78, s61')
    def x_early():
        if F:
            e(f's_cmp_lt_u32 s87, {tail.NU}'); e('s_cbranch_scc1 L_f_xlate'); st.cond = 'xearly'
        x_dma(st)
        if F: st.cond = False; e('L_f_xlate:')
    if not (F and cfg.xdelay): x_early()
    if F and not cfg.mlate: tail.mod_urgent(st, cfg, MODL + 4096, x_dma)
    if not F:
        srd(e, S_WS, 58, 59, WS_PART if FT else 0x1000)
        e(f's_lshl_b32 s62, s{S_ROT}, 8'); e('v_add_u32 v6, s62, v7')
        for j in range(4):
            e(f's_add_u32 m0, s{S_WB}, {MODL + 1024 * j}'); e(f'v_add_u32 v5, {1024 * j}, v6'); e('v_and_b32 v5, 0xfff, v5')
            st.vm(f'buffer_load_dwordx4 v5, {sr(S_WS, 4)}, 0 offen lds', 'mod')
    e(f's_lshl_b32 s62, s{S_G}, 10'); e(f's_sub_u32 s63, {512 * 8192}, s62')
    srd(e, S_WQ, 54, 55, 's63', off='s62')
    e(f's_lshl_b32 s61, s{S_W}, 8'); e('v_lshrrev_b32 v8, 3, v0'); e(f'v_lshl_add_u32 v8, v8, 13, s61')
    e('v_and_b32 v5, 7, v0'); e(f'v_and_b32 v4, 1, v{V_G}'); e('v_lshlrev_b32 v4, 1, v4'); e('v_xor_b32 v4, v4, v5')
    e('v_lshl_add_u32 v9, v4, 4, v8'); e('v_xor_b32 v4, 4, v4'); e('v_lshl_add_u32 v10, v4, 4, v8')
    for j in range(8): e(f'v_add_u32 {vr(V_DWQ + j)}, {65536 * j - 1024 * (j % 4)}, v{9 + (j & 1)}')
    e(f's_lshl_b32 s{S_OFFW}, s{S_ROT}, 18')
    def wq_dma(s):
        if s % 2 == 0: return w_dma('wq', s, QREG(s), V_DWQ, S_WQ, S_OFFW, [f's_add_u32 s3, s{S_OFFW}, 128'])
        return w_dma('wq', s, QREG(s), V_DWQ, S_WQ, 3, [f's_add_u32 s{S_OFFW}, s{S_OFFW}, 524288', f's_and_b32 s{S_OFFW}, s{S_OFFW}, 0x3fffff'])
    def wo_dma(s):
        return w_dma('wo', s, OREG(s), V_DWO, S_WO, S_OFFW, [f's_add_u32 s{S_OFFW}, s{S_OFFW}, {65536 + (128 if s == 7 else 0)}', f's_and_b32 s{S_OFFW}, s{S_OFFW}, 0x7ffff'])
    OREG = lambda s: [R4, R0, R3][s % 3]
    wq_early = wq_dma(0) + wq_dma(1)
    wq2 = wq_dma(2)
    wq_early += wq2[:5]; wq_late = wq2[5:]
    emit_ops(st, wq_early[:cfg.npre]); wq_early = wq_early[cfg.npre:]
    ndum = [0]
    def pf(voff, srdr, soff, imm=0):
        r = A_DUMMY + 4 * (ndum[0] % 3); ndum[0] += 1
        return (f'buffer_load_dwordx4 {ar(r, 4)}, {voff}, {sr(srdr, 4)}, {soff} offen offset:{imm}', 'pf')
    pfo = []
    if cfg.pfq:
        pfo += [(f's_lshl_b32 s5, s{S_PF}, {17 + lg}', None), (f's_lshl_b32 s6, s{S_W}, {15 + lg}', None), ('s_add_u32 s5, s5, s6', None)]
        for i in range(4 * cfg.G): pfo += [pf('v7', S_WQ, 's5'), ('s_add_u32 s5, s5, 8192', None)]
    if cfg.prefetch:
        pfo += [(f's_lshl_b32 s5, s{S_PF}, {11 + lg}', None), (f's_lshl_b32 s6, s{S_W}, {9 + lg}', None), ('s_add_u32 s5, s5, s6', None)]
        for i in range(max(1, cfg.G // 2)): pfo += [pf('v7', S_K, 's5', 1024 * i), pf('v7', S_V, 's5', 1024 * i)]
    pfwo = [(f's_lshl_b32 s5, s{S_RB}, 14', None), (f's_add_u32 s5, s5, s{S_WB}', None)] + [pf('v252', S_WO, 's5', 1024 * i) for i in range(4)]
    if cfg.pfo2:
        pfwo = [(f's_lshl_b32 s5, s{S_ROT}, 15', None), ('s_add_u32 s5, s5, 128', None)] + [pf(f'v{V_DWO + j}', S_WO, 's5', 1024 * (j % 4)) for j in range(8)]
    e(f's_lshl_b32 s62, s{S_G}, 19')
    srd(e, S_K, 50, 51, 524288, off='s62'); srd(e, S_V, 52, 53, 524288, off='s62')
    srd(e, S_WO, 56, 57, 524288, off='s62')
    e(f's_lshl_b32 s62, s{S_G}, 21'); e(f's_add_u32 s62, s62, {WS_PART}')
    srd(e, S_PART, 58, 59, 1 << 21, off='s62')
    e('s_and_b32 s61, s2, 1'); e('s_mul_i32 s62, s61, 1792'); e(f's_sub_u32 s63, {512 * 3584}, s62'); srd(e, 92, 4, 5, 's63', off='s62')
    e('s_lshl_b32 s62, s61, 9'); e(f's_sub_u32 s63, {512 * 3584}, s62'); srd(e, 96, 6, 7, 's63', off='s62')
    e('s_lshr_b32 s4, s2, 3'); e('s_lshl_b32 s4, s4, 2'); e(f's_add_u32 s4, s4, s{S_W}'); e(f's_mul_i32 s7, s4, {14 * 1024}'); e(f's_mul_i32 s4, s4, {4 * 3584}')
    e('v_lshrrev_b32 v251, 5, v0'); e('v_lshlrev_b32 v251, 10, v251'); e('v_and_b32 v4, 31, v0'); e('v_lshl_add_u32 v251, v4, 4, v251')
    e('v_lshlrev_b32 v252, 4, v0')
    e(f's_mov_b32 s{S_OFFK}, 0'); e(f's_mov_b32 s{S_OFFV}, 0'); e(f's_add_u32 s{S_M0V}, s{S_WB}, {LDS_V}'); e(f's_mov_b32 s{S_FLAG}, 0')
    for ks in range(4):
        e(f'v_add_u32 v5, {4 * ks}, v{V_PI}'); e(f'v_xor_b32 v5, v5, v{V_R}'); e('v_lshlrev_b32 v5, 4, v5'); e(f'v_lshl_add_u32 {vr(V_KA + ks)}, v{V_R}, 8, v5')
    e(f'v_lshrrev_b32 v11, 2, v{V_R}'); e(f'v_and_b32 v12, 3, v{V_R}'); e('v_lshlrev_b32 v12, 3, v12')
    e(f'v_lshl_add_u32 v5, v{V_G}, 2, v11'); e('v_and_b32 v13, 7, v5'); e('v_lshl_add_u32 v14, v5, 8, v12'); e(f'v_add_u32 v14, {LDS_V}, v14')
    for db in range(8): e(f'v_xor_b32 v4, {db}, v13'); e(f'v_lshl_add_u32 {vr(V_VA + db)}, v4, 5, v14')
    e(f'v_lshl_add_u32 v9, v{V_G}, 8, s{S_WB}')
    for j in range(4): e(f'v_add_u32 v5, {4 * j}, v{V_G}'); e(f'v_xor_b32 v5, v5, v{V_R}'); e(f'v_lshl_add_u32 {vr(V_DK + j)}, v5, 4, v9')
    for j in range(2): e(f'v_add_u32 v5, {4 * j}, v{V_G}'); e('v_lshlrev_b32 v5, 1, v5'); e(f'v_xor_b32 v5, v5, v{V_R}'); e(f'v_lshl_add_u32 {vr(V_DV + j)}, v5, 4, v9')
    e(f's_lshl_b32 s61, s{S_W}, 8'); e('v_lshrrev_b32 v8, 3, v0'); e(f'v_lshl_add_u32 v8, v8, 10, s61')
    e('v_and_b32 v5, 7, v0'); e(f'v_lshlrev_b32 v4, 1, v{V_G}'); e('v_xor_b32 v4, v4, v5'); e(f'v_lshl_add_u32 {vr(V_DWO)}, v4, 4, v8')
    for j in range(1, 8): e(f'v_add_u32 {vr(V_DWO + j)}, {8192 * j - 1024 * (j % 4)}, {vr(V_DWO)}')
    e(f'v_and_b32 v4, 1, v{V_G}'); e(f'v_lshrrev_b32 v13, 3, v{V_R}'); e('v_lshl_add_u32 v13, v4, 1, v13')
    e(f'v_lshl_add_u32 v5, v{V_G}, 3, v11'); e('v_lshl_add_u32 v14, v5, 7, v12'); e(f'v_add_u32 v14, s{S_WB}, v14')
    for nb in range(4):
        e(f'v_xor_b32 v4, {nb}, v13'); e(f'v_lshl_add_u32 {vr(V_TA[0] + nb)}, v4, 5, v14'); e(f'v_add_u32 {vr(V_TA[1] + nb)}, {R2}, {vr(V_TA[0] + nb)}')
    e(f'v_add_u32 {vr(V_BA)}, {R3}, v7')
    e(f's_lshl_b32 s61, s{S_W}, 14'); e(f'v_add_u32 v8, s61, {vr(V_BA)}')
    e(f's_add_u32 s62, s{S_WB}, {MODL}' if not F else f's_mov_b32 s62, {MODL}'); e(f'v_lshl_add_u32 v9, v{V_G}, 5, s62')
    e(f's_add_u32 s61, s61, {R3}'); e(f'v_lshl_add_u32 v14, v{V_R}, 10, s61')
    for k in range(4): e(f'v_add_u32 v4, {4 * k}, v{V_G}'); e(f'v_xor_b32 v4, v4, v{V_R}'); e(f'v_lshl_add_u32 v{10 + k}, v4, 4, v14')
    zero = [f'v_accvgpr_write_b32 a{A_O + i}, 0' for i in range(128)] + [f'v_accvgpr_write_b32 a{A_L + i}, 0' for i in range(16)]
    zero += ['v_mov_b32 v5, 0x3f803f80'] + [f'v_accvgpr_write_b32 a{A_ONE + i}, v5' for i in range(4)]
    if F and cfg.xdelay == 1: x_early()
    if cfg.zearly:
        for z in zero: e(z)
    if F and cfg.xdelay == 2: x_early()
    if F and cfg.mlate: tail.mod_urgent(st, cfg, MODL + 4096, x_dma)
    main = st; st = Stream(); e = st.e
    if F: tail.x_wait(main, cfg)
    else: main.wait(vm=['x'])
    for ks in range(16): main.lds(f'ds_read_b128 {vr(V_ACC + 8 * ks + 4, 4)}, v{10 + ks % 4} offset:{(ks // 4) * 256}', ('x', ks))
    stamp(main, cfg, 1)
    if cfg.fused == 2 and cfg.stamps: main.e('v_writelane_b32 v253, s88, 2'); main.e('v_writelane_b32 v253, s88, 3'); main.e('v_writelane_b32 v254, s90, 2'); main.e('v_writelane_b32 v254, s90, 3')
    for ks in range(16):
        b = V_ACC + 8 * ks
        if ks % 2 == 0: st.wait(lds=[('x', ks + 1)])
        for j in range(4):
            e(f'v_lshlrev_b32 v{b + 2 * j}, 16, v{b + 4 + j}'); e(f'v_and_b32 v{b + 2 * j + 1}, 0xffff0000, v{b + 4 + j}')
        for j in range(4):
            if ks == 0: continue
            a = V_HO + 2 * j
            e(f'v_pk_add_f32 {vr(a, 2)}, {vr(b + 2 * j, 2)}, {vr(a, 2) if ks > 1 else vr(V_ACC + 2 * j, 2)}')
    a = V_HO
    e(f'v_pk_add_f32 {vr(a, 2)}, {vr(a, 2)}, {vr(a + 2, 2)}'); e(f'v_pk_add_f32 {vr(a + 4, 2)}, {vr(a + 4, 2)}, {vr(a + 6, 2)}')
    e(f'v_pk_add_f32 {vr(a, 2)}, {vr(a, 2)}, {vr(a + 4, 2)}'); e(f'v_add_f32 v4, v{a}, v{a + 1}')
    xlane_reduce(e, [4], [5], 'v_add_f32')
    e(f'v_mul_f32 v4, {f2h(-1.0 / 512)}, v4')
    if F and cfg.spec: tail.mod_spec(st, cfg, S_ROT)
    for ks in range(16):
        b = V_ACC + 8 * ks
        for j in range(4): e(f'v_pk_add_f32 {vr(b + 2 * j, 2)}, {vr(b + 2 * j, 2)}, v[4:5] op_sel_hi:[1,0]')
        for j in range(4):
            if ks == 0: e(f'v_pk_mul_f32 {vr(a + 2 * j, 2)}, {vr(b + 2 * j, 2)}, {vr(b + 2 * j, 2)}')
            else: e(f'v_pk_fma_f32 {vr(a + 2 * j, 2)}, {vr(b + 2 * j, 2)}, {vr(b + 2 * j, 2)}, {vr(a + 2 * j, 2)}')
    def modrd(ks):
        m = V_MOD + 16 * (ks % 2)
        for j in range(4): st.lds(f'ds_read_b128 {vr(m + 4 * j, 4)}, v9 offset:{ks * 256 + (j // 2) * 128 + (j % 2) * 16}', ('mod', ks))
    if not F: st.wait(vm=['mod']); modrd(0); modrd(1)
    e(f'v_pk_add_f32 {vr(a, 2)}, {vr(a, 2)}, {vr(a + 2, 2)}'); e(f'v_pk_add_f32 {vr(a + 4, 2)}, {vr(a + 4, 2)}, {vr(a + 6, 2)}')
    e(f'v_pk_add_f32 {vr(a, 2)}, {vr(a, 2)}, {vr(a + 4, 2)}'); e(f'v_add_f32 v4, v{a}, v{a + 1}')
    xlane_reduce(e, [4], [5], 'v_add_f32')
    e(f'v_mov_b32 v5, {f2h(1e-5)}'); e(f'v_fmac_f32 v5, {f2h(1.0 / 512)}, v4'); e('v_rsq_f32 v4, v5'); e('s_nop 0')
    if F:
        for ks in range(16):
            for j in range(4): e(f'v_pk_mul_f32 {vr(V_ACC + 8 * ks + 2 * j, 2)}, {vr(V_ACC + 8 * ks + 2 * j, 2)}, v[4:5] op_sel_hi:[1,0]')
        left = interleave(main, st, (wq_early + pfo)[:len(wq_early + pfo) - cfg.wqlate], 0, cfg.lnev)
        st = main; e = st.e
        emit_ops(st, left)
        if cfg.wqlate: wq_late = (wq_early + pfo)[-cfg.wqlate:] + wq_late
        stamp(st, cfg, 9)
        tail.mod_fetch(st, cfg, MODL, S_ROT)
        stamp(st, cfg, 10)
        modrd(0); modrd(1)
        if cfg.tlb:
            e('v_lshlrev_b32 v4, 13, v0')
            for s_ in (S_K, S_V, S_WO): st.vm(f'buffer_load_dword a245, v4, {sr(s_, 4)}, 0 offen', 'tlb')
        emit_ops(st, tail.rest_loads())
    hw = []
    for ks in range(16):
        b = V_ACC + 8 * ks; m = V_MOD + 16 * (ks % 2); ho = V_HO + 4 * (ks % 2)
        if not F:
            for j in range(4): e(f'v_pk_mul_f32 {vr(b + 2 * j, 2)}, {vr(b + 2 * j, 2)}, v[4:5] op_sel_hi:[1,0]')
        st.wait(lds=[('mod', ks)])
        for j in range(4): e(f'v_pk_fma_f32 {vr(b + 2 * j, 2)}, {vr(b + 2 * j, 2)}, {vr(m + 2 * j, 2)}, {vr(m + 8 + 2 * j, 2)}')
        if ks + 2 < 16: modrd(ks + 2)
        if hw: st.lds(hw.pop(), 'hw')
        for j in range(4): e(f'v_cvt_pk_bf16_f32 v{ho + j}, v{b + 2 * j}, v{b + 2 * j + 1}')
        hw.append(f'ds_write_b128 v8, {vr(ho, 4)} offset:{ks * 1024}')
        if not cfg.dwl or ks == 15: st.lds(hw.pop(), 'hw')
    if not F:
        body = st; st = main; e = st.e
        left = interleave(st, body, wq_early + pfo, 0, cfg.lnev)
        emit_ops(st, left + wq_late); wq_late = []
    st.wait(lds='all'); e('s_barrier')
    stamp(st, cfg, 2)
    def q_conv(ks):
        o = []
        for qb in range(4):
            d = V_Q + (qb * 4 + ks) * 4; a0 = ACC(2 * ks, qb); a1 = ACC(2 * ks + 1, qb)
            o += [f'v_cvt_pk_bf16_f32 v{d}, v{a0}, v{a0 + 1}', f'v_cvt_pk_bf16_f32 v{d + 1}, v{a0 + 2}, v{a0 + 3}',
                  f'v_cvt_pk_bf16_f32 v{d + 2}, v{a1}, v{a1 + 1}', f'v_cvt_pk_bf16_f32 v{d + 3}, v{a1 + 2}, v{a1 + 3}']
        for qb in range(4):
            d = V_Q + (qb * 4 + ks) * 4
            o += [f'v_permlane16_swap_b32 v{d}, v{d + 2}', f'v_permlane16_swap_b32 v{d + 1}, v{d + 3}']
        return o
    def ta_q(s):
        r = QREG(s); return (V_TA[1], 0) if r == R2 else (V_TA[0], r)
    def refill_q(s):
        if s + 3 < 16: return wq_dma(s + 3)
        return {13: kv_dma('K', 0) + kv_dma('K', 1), 14: kv_dma('V', 0) + kv_dma('V', 1), 15: []}[s]
    gemm(st, cfg, 'wq', [(s // 2, s % 2) for s in range(16)], ta_q, 512, V_BA, lambda ks, qb: qb * 16384 + ks * 1024, refill_q, [] if cfg.zearly else zero, first_ops=wq_late, late=([(2, 3, tail.rest_math())] if F else []) + [(15, 0, q_conv(0) + q_conv(1))], keep=False)
    stamp(st, cfg, 3)
    e('s_nop 3')
    for x in q_conv(2) + q_conv(3): e(x)
    st.wait(vm=[('dK', 0)]); e('s_barrier')
    if F: tail.rest_share(st, R4)
    if cfg.cpf == 2:
        e(f's_lshl_b32 s60, s{S_W}, 10'); e('v_lshl_add_u32 v6, v0, 4, s60'); code_addr(e, 'b', 'L_k1_post', 'L_k1_end', 6, 12)
    st.mark('attn_start')
    def max_ops(b, kb, first):
        o = []
        for qb in range(4):
            r = Sreg(b, kb, qb); m = 4 + qb
            o.append(f'v_max3_f32 v{m}, v{r}, v{r + 1}, ' + (f'v{r + 2}' if first else f'v{m}'))
        for qb in range(4):
            r = Sreg(b, kb, qb); m = 4 + qb
            o.append(f'v_max_f32 v{m}, v{m}, v{r + 3}' if first else f'v_max3_f32 v{m}, v{r + 2}, v{r + 3}, v{m}')
        return o
    def rawA(st, side, first):
        gs = groups_A(0, cfg, raw=True) + groups_A(1, cfg, raw=True)
        gs[2].on_start = lambda S: S['extra'].extend(max_ops(0, 0, first))
        gs[3].on_start = lambda S: S['extra'].extend(max_ops(0, 1, False) + max_ops(1, 0, False))
        S = schedule(st, gs, RING, 16, primed=8, side_gap=lambda i: 3, state=dict(pend=list(side)), P=Policy('order:1,dma_alone:1'))
        assert not S['pend'] and not S['extra']
    def make_negm(st):
        e = st.e
        xlane_reduce(e, [4, 5, 6, 7], [8, 9, 10, 11], 'v_max_f32')
        for qb in range(4):
            for i in range(4): e(f'v_sub_f32 {vr(V_NEGM + 4 * qb + i)}, {f2h(-cfg.B)}, v{4 + qb}')
    rawA(st, kv_dma('K', 2) + kv_dma('K', 3) + kv_dma('V', 2), True)
    e(f's_cmp_lg_u32 s{S_FLAG}, 0'); e('s_cbranch_scc1 L_k1_havemax0')
    e('s_nop 2')
    for x in max_ops(1, 1, False): e(x)
    make_negm(st)
    e('L_k1_havemax0:'); e('s_nop 5')
    e('L_k1_havemax:')
    for b in range(2):
        for kb in range(2):
            for qb in range(4):
                s = Sreg(b, kb, qb)
                for i in (0, 2): e(f'v_pk_add_f32 {vr(s + i, 2)}, {vr(s + i, 2)}, {vr(V_NEGM + 4 * qb, 2)}')
    for i in range(2 * cfg.lv): e(f'v_mov_b32 v{V_LS + i}, 0')
    st.wait(lds='all', vm=[('dK', 1), ('dV', 0)]); e('s_barrier')
    if F:
        e(f's_cmp_lg_u32 s{S_FLAG}, 0'); e('s_cbranch_scc1 L_f_norest'); tail.rest_store(st, R4)
        if cfg.tlb:
            e('v_lshlrev_b32 v4, 18, v0'); e('v_lshlrev_b32 v5, 15, v0')
            srd(e, 72, 58, 59, 8 << 21, off=WS_PART); srd(e, 64, 68, 69, 2 << 20)
            for v_, s_ in ((4, S_WS), (4, 72), (5, 64), (5, 92), (5, 96)): e(f'buffer_load_dword a245, v{v_}, {sr(s_, 4)}, 0 offen')
    pfw1 = []; pfw2 = []
    for r in range(4):
        pfw1 += [(f's_add_u32 s5, s4, {r * 3584}', None), pf('v252', 92, 's5'), pf('v252', 92, 's5', 768)]
    for r in range(7):
        pfw2 += [(f's_add_u32 s5, s7, {r * 2048}', None), pf('v251', 96, 's5')]
    pfe1, pfe2 = pfw1, pfw2
    if cfg.pfw & 8:
        pfe1 = [('s_lshr_b32 s6, s84, 1', None), ('s_mul_i32 s5, s6, 3584', None), ('s_add_u32 s5, s5, s4', None), pf('v252', 92, 's5'), pf('v252', 92, 's5', 768)]
        pfe2 = [('s_lshl_b32 s5, s6, 11', None), ('s_add_u32 s5, s5, s7', None), pf('v251', 96, 's5'), ('s_add_u32 s5, s5, 8192', None), pf('v251', 96, 's5')]
    def tail_extra(t):
        if t == 28: return ([(f'global_load_dwordx4 {ar(A_DUMMY, 4)}, v[12:13], off', 'cpf')] if cfg.cpf == 2 else []) + pfwo + (pfe1[:6] if cfg.pfw else [])
        if t == 29: return [(f's_lshl_b32 s{S_OFFW}, s{S_ROT}, 15', None)] + wo_dma(0) + (pfe2 if cfg.pfw else [])
        if t == 30: return wo_dma(1) + (pfe1[6:] if cfg.pfw else [])
        return []
    z = Stream(); ze = z.e
    ze(f'v_lshrrev_b32 v5, 2, v{V_R}'); ze(f'v_lshl_add_u32 v5, v{V_G}, 2, v5'); ze('v_bfe_u32 v6, v5, 1, 2'); ze(f'v_and_b32 v7, 3, v{V_R}'); ze('v_lshlrev_b32 v7, 3, v7')
    ze('v_lshl_add_u32 v7, v5, 7, v7'); ze(f'v_add_u32 v7, s{S_WB}, v7')
    for nb in range(4): ze(f'v_xor_b32 v5, {nb}, v6'); ze(f'v_lshl_add_u32 {vr(V_TO[0] + nb)}, v5, 5, v7'); ze(f'v_add_u32 {vr(V_TO[1] + nb)}, {R3}, {vr(V_TO[0] + nb)}')
    ze('v_and_b32 v15, 3, v0'); ze('v_lshlrev_b32 v15, 12, v15'); ze(f's_lshl_b32 s62, s{S_W}, 2'); ze(f's_add_u32 s62, s62, {R3}'); ze('v_add_u32 v15, s62, v15')
    ze('v_lshlrev_b32 v14, 4, v0'); ze(f's_lshl_b32 s61, s{S_W}, 2'); ze(f's_sub_u32 s61, s61, s{S_ROT}')
    for m in range(4):
        ze(f's_add_u32 s62, s61, {m}'); ze('s_and_b32 s62, s62, 15'); ze('s_lshl_b32 s62, s62, 12'); ze(f's_add_u32 s62, s62, {R1}'); ze(f'v_add_u32 v{V_P + m}, s62, v14')
    attn_main(st, cfg, tail_extra, z.resolve())
    stamp(st, cfg, 5)
    e('s_setreg_imm32_b32 hwreg(HW_REG_MODE, 4, 2), 3'); e('s_nop 4')
    if cfg.lv:
        lr = [V_S[0] + k for k in range(cfg.lv)]
        for k in range(cfg.lv): e(f'v_add_f32 v{lr[k]}, v{V_LS + 2 * k}, v{V_LS + 2 * k + 1}')
        xlane_reduce(e, lr, [V_S[0] + 4 + k for k in range(cfg.lv)], 'v_add_f32')
    for qb in range(4): e(f'v_accvgpr_read_b32 v{4 + qb}, a{A_L + 4 * qb}' if qb not in LVQ[cfg.lv] else f'v_mov_b32 v{4 + qb}, v{V_S[0] + LVQ[cfg.lv].index(qb)}')
    e(f'v_mov_b32 v{V_S[0] + 8}, {f2h(cfg.thr)}')
    e('v_max3_f32 v8, v4, v5, v6'); e('v_max_f32 v8, v8, v7')
    for qb in range(4): e(f'v_add_f32 v{9}, v{4 + qb}, {"v9" if qb else "0"}')
    e(f'v_cmp_nlt_f32 vcc, v8, v{V_S[0] + 8}'); e('v_cmp_u_f32 s[62:63], v9, v9')
    for qb in range(4): e(f'v_rcp_f32 v{4 + qb}, v{4 + qb}')
    e('s_or_b64 vcc, vcc, s[62:63]'); e('s_cmp_lg_u64 vcc, 0'); e('s_cselect_b32 s61, 1, 0')
    e('v_mov_b32 v11, s61'); st.lds('ds_write_b32 v15, v11', 'flagw')
    k = 0; dw = []
    for qb in range(4):
        for m in range(4):
            t = V_S[0] + 16 * (k % 4); k += 1
            for hb in range(2):
                for i in range(4): e(f'v_accvgpr_read_b32 v{t + 4 * hb + i}, a{A_O + ((2 * m + hb) * 4 + qb) * 4 + i}')
                if hb == 0 and dw: st.lds(dw.pop(), 'ow')
            sel = f'v[{4 + qb}:{5 + qb}] op_sel_hi:[1,0]' if qb % 2 == 0 else f'v[{3 + qb}:{4 + qb}] op_sel:[0,1] op_sel_hi:[1,1]'
            for i in range(4): e(f'v_pk_mul_f32 {vr(t + 2 * i, 2)}, {vr(t + 2 * i, 2)}, {sel}')
            for i in range(4): e(f'v_cvt_pk_bf16_f32 v{t + 8 + i}, v{t + 2 * i}, v{t + 2 * i + 1}')
            dw.append(f'ds_write_b128 v{V_P + m}, {vr(t + 8, 4)} offset:{qb * 1024}')
            if not cfg.dwl: st.lds(dw.pop(), 'ow')
    if dw: st.lds(dw.pop(), 'ow')
    e(f'v_add_u32 v{V_BO}, {R1}, v14'); e(f's_add_u32 s61, s{S_WB}, {R3}'); e('v_mov_b32 v10, s61')
    st.wait(lds='all'); e('s_barrier')
    st.lds('ds_read_b128 v[4:7], v10', 'flagr'); st.wait(lds=['flagr'])
    e('v_or3_b32 v4, v4, v5, v6'); e('v_or_b32 v4, v4, v7'); e('s_nop 0'); e('v_readfirstlane_b32 s61, v4'); e('s_nop 3')
    e(f's_andn2_b32 s61, s61, s{S_FLAG}'); e('s_cbranch_scc1 L_k1_slow')
    if F:
        e(f's_mov_b32 s61, {tail.CNT_MB}'); tail.signal(st, S_WS, 's61', 'L_f_sigb')
    stamp(st, cfg, 6)
    def ta_o(s):
        r = OREG(s); return (V_TO[0], 0) if r == R0 else (V_TO[1], r - R3)
    def refill_o(s): return wo_dma(s + 3) if s + 3 < 16 else []
    sadr = [f'v_lshrrev_b32 v4, 1, v{V_R}', 'v_lshlrev_b32 v4, 11, v4', f'v_lshl_add_u32 v4, v{V_PI}, 5, v4', f'v_and_b32 v5, 1, v{V_R}', 'v_lshl_add_u32 v4, v5, 4, v4',
            f's_lshl_b32 s48, s{S_RB}, 16', f's_lshl_b32 s62, s{S_W}, 9', 's_add_u32 s48, s48, s62'] + [f's_add_u32 s{48 + qb}, s48, {16384 * qb}' for qb in range(1, 4)]
    mbchk = []
    if F:
        sadr += [f's_min_u32 s52, s{S_W}, 1', 's_mul_i32 s52, s52, 0x7fff0000', f's_add_u32 s52, s52, {tail.CNT_MB}', 'v_mov_b32 v6, 0']
        mbchk = [(f'buffer_load_dword v255, v6, {sr(S_WS, 4)}, s52 offen sc1', 'mb')]
    def out_half(h):
        ops = []
        for qb in range(4):
            for m in (2 * h, 2 * h + 1):
                d = V_Q + (qb * 4 + m) * 4; a0 = ACC(2 * m, qb); a1 = ACC(2 * m + 1, qb)
                ops += [f'v_cvt_pk_bf16_f32 v{d}, v{a0}, v{a0 + 1}', f'v_cvt_pk_bf16_f32 v{d + 1}, v{a0 + 2}, v{a0 + 3}',
                        f'v_cvt_pk_bf16_f32 v{d + 2}, v{a1}, v{a1 + 1}', f'v_cvt_pk_bf16_f32 v{d + 3}, v{a1 + 2}, v{a1 + 3}']
            for m in (2 * h, 2 * h + 1):
                d = V_Q + (qb * 4 + m) * 4
                ops += [f'v_permlane16_swap_b32 v{d}, v{d + 2}', f'v_permlane16_swap_b32 v{d + 1}, v{d + 3}']
            for m in (2 * h, 2 * h + 1):
                ops.append((f'buffer_store_dwordx4 {vr(V_Q + (qb * 4 + m) * 4, 4)}, v4, {sr(S_PART, 4)}, s{48 + qb} offen offset:{m * 128}{SC}', 'st'))
        return ops
    gemm(st, cfg, 'wo', [(s % 8, s // 8) for s in range(16)], ta_o, 2048, V_BO, lambda ks, qb: ks * 4096 + qb * 1024, refill_o, sadr,
         first_ops=wo_dma(2), late=[(cfg.ost, 3, mbchk + out_half(0))] + ([(cfg.pfs, 3, [x if x[1] else x[0] for x in (pfw1 if cfg.pfw & 2 else []) + (pfw2 if cfg.pfw & 4 else [])])] if cfg.pfw > 1 else []))
    stamp(st, cfg, 7)
    e('s_nop 7')
    for x in out_half(1):
        if isinstance(x, tuple): st.vm(*x)
        else: e(x)
    if FT: tail.tail(st, cfg)
    else: stamp_out(st, cfg, 1, 8, 58, S_W)
    e('s_endpgm')
    segs, order = split_marks(st.resolve())
    NL = 28
    for t in range(4, NL):
        if segs[f'it{t}'] != segs[f'it{t - 4}']:
            import difflib, sys
            sys.stderr.write('\n'.join(list(difflib.unified_diff(segs[f'it{t - 4}'], segs[f'it{t}'], lineterm='', n=2))[:60]) + '\n')
            raise SystemExit(f'iteration {t} differs')
    if cfg.strip:
        import re
        pat = re.compile(cfg.strip.replace('+', '|'))
        for t in range(NL): segs[f'it{t}'] = [x for x in segs[f'it{t}'] if not pat.match(x)]
    out = header(name) + segs['_start'] + ['L_k1_attn_start:'] + segs['attn_start']
    tmp = Stream(); stamp(tmp, cfg, 4); out += tmp.resolve()
    out += [f's_mov_b32 s{S_CNT}, {NL // 4}', '.p2align 6', 'L_k1_loop:']
    for t in range(4): out += segs[f'it{t}']
    out += [f's_sub_u32 s{S_CNT}, s{S_CNT}, 1', f's_cmp_lg_u32 s{S_CNT}, 0', 's_cbranch_scc1 L_k1_loop']
    for t in range(NL, NT): out += (['L_k1_post:'] if t == NL + 2 else []) + segs[f'it{t}']
    out += segs['end']
    st = Stream(); e = st.e
    e('L_k1_slow:')
    e(f's_mov_b32 s{S_FLAG}, 1'); e('s_setreg_imm32_b32 hwreg(HW_REG_MODE, 4, 2), 0')
    e('s_waitcnt vmcnt(0) lgkmcnt(0)'); e('s_barrier')
    e(f's_mov_b32 s{S_OFFK}, 0'); e(f's_mov_b32 s{S_CNT}, {NT}')
    for qb in range(4): e(f'v_mov_b32 v{4 + qb}, 0xff800000')
    e('L_k1_slow_loop:')
    emit_ops(st, kv_dma('K', 0)); st.wait(vm='all'); e('s_barrier')
    rawA(st, [], False)
    e('s_nop 7')
    for x in max_ops(1, 1, False): e(x)
    e('s_barrier')
    e(f's_sub_u32 s{S_CNT}, s{S_CNT}, 1'); e(f's_cmp_lg_u32 s{S_CNT}, 0'); e('s_cbranch_scc1 L_k1_slow_loop')
    make_negm(st)
    for z in zero: e(z)
    e(f's_mov_b32 s{S_OFFK}, 0'); e(f's_mov_b32 s{S_OFFV}, 0')
    for w_, t_ in [('K', 0), ('K', 1), ('V', 0), ('V', 1)]: emit_ops(st, kv_dma(w_, t_))
    st.wait(vm='all'); e('s_barrier'); e('s_branch L_k1_attn_start')
    out += st.resolve() + ['L_k1_end:', 's_endpgm']
    return out, kd(name, 512, 256, 102), f'; @launch {"" if F else "kernel=" + name + " "}grid=(256,1,1) block=(256,1,1) lds=163840'
```

```python
from gen_common import *
from engine import *

S_X, S_WQ, S_K, S_V, S_WO, S_WS, S_PART = 8, 12, 16, 20, 24, 28, 32
S_G, S_RB, S_W, S_WB = 36, 37, 38, 39
S_OFFK, S_OFFV, S_M0V, S_CNT, S_OFFW, S_FLAG = 40, 41, 43, 44, 45, 46
S_M0K = S_WB; S_PF = 47; S_ROT = 42
S_T = 48
V_R, V_G, V_PI = 1, 2, 3
V_Q = 16; V_S = [80, 112]; V_P = 144; V_NEGM = 208
V_KA = 224; V_VA = 228; V_DK = 236; V_DV = 240; V_DWO = 242; V_TO = [208, 212]; V_BO = 250
V_ACC = 80
V_DWQ = 16; V_TA = [24, 28]; V_BA = 40; V_MOD = 48; V_HO = 208
A_O = 0; A_FR = 128; A_BF = 128; A_L = 192; A_ONE = 208; A_AF = 212; A_DUMMY = 244
R0, R1, R2, R3, R4 = 0, 32768, 65536, 98304, 131072
LDS_V = R2
NT = 32
RING = [A_FR + 4 * i for i in range(16)]

def O(db, qb): return ar(A_O + (db * 4 + qb) * 4, 4)
def Q(qb, ks): return vr(V_Q + (qb * 4 + ks) * 4, 4)
def Lr(qb): return ar(A_L + qb * 4, 4)
def Sreg(buf, kb, qb): return V_S[buf] + (kb * 4 + qb) * 4
def Preg(h, qb): return V_P + (h % 4) * 16 + qb * 4
def ACC(nb, qb): return V_ACC + (nb * 4 + qb) * 4

class Cfg:
    lead = 20; spread = 0; xlead = 20; S0 = 48; XG = 6; nodma = 0; strip = ''; blead = 30; mw = 2; B = 102; dma_gap = 12; glead = 14; ggap = 1; bspread = 0; gspread = 0; stamps = 0; thr = 2.0 ** 64; prefetch = 0; cpf = 2; G = 4; pfq = 0; krot = 1; npre = 0
    h2sc = 0; k2nt = 1; k0pf = 0; lnev = 32; rot = 0; k3pre = 2; k4pre = 3; pfw = 9; chain = 1; fused = 0; chx = 1; alate = 1; xp = 0; specpos = 0; lnx = 1; pp = 0; fw = 0; dwl = 1; al = 1; pfo2 = 1; mlate = 1; spec = 0; npa = 4; osc = 0; pfs = 14; lv = 2; hwd = 0; pa = 'flex:1,order:1,dma_alone:1,dma_prev:1,wait_exp:1,salu_exp:1'; pg = 'order:1,dma_alone:1'; p1 = 'order:1,dma_alone:1'; p2 = 'order:1'; gmw = 2; xfirst = 1; tlb = 0; xdelay = 0; k0wait = 1; zearly = 1; w1early = 8; f1gap = 4; nprod = 96; wqlate = 0; f1pre = 8; f2pre = 2; rnt = 1; rotmask = 7; rotsh = 1; ost = 12

def groups_A(h, cfg, raw=False, gate=None):
    tile, hf = h // 2, h % 2
    gs = []
    for kb in range(2):
        off = (tile % 4) * 16384 + (32 * hf + 16 * kb) * 256
        us = [Unit(('K', h, kb, ks), (lambda r, ks=ks, off=off: [f'ds_read_b128 {ar(r, 4)}, {vr(V_KA + ks)} offset:{off}']), gate=gate, lead=cfg.lead + cfg.spread * (3 - ks)) for ks in range(4)]
        def mfs(regs, kb=kb):
            regs = regs or [0] * 4
            order = [(qb, ks if qb % 2 == 0 else 3 - ks, ks == 0, ks == 3) for qb in range(4) for ks in range(4)] if cfg.chain else \
                    [(qb, ks, ks == 0, ks == 3) for ks in range(4) for qb in range(4)]
            r = []
            for qb, ks, first, last in order:
                s = vr(Sreg(h % 2, kb, qb), 4)
                c = ('0' if raw else vr(V_NEGM + 4 * qb, 4)) if first else s
                r.append((f'{MF} {s}, {ar(regs[ks], 4)}, {Q(qb, ks)}, {c}', ('A', h, kb, qb, first, last)))
            return r
        gs.append(Group(mfs, us))
    return gs

def unit_V(h, db):
    off = ((h // 2) % 4) * 16384 + (32 * (h % 2)) * 256
    return Unit(('V', h, db), lambda r: [f'ds_read_b64_tr_b16 {ar(r, 2)}, {vr(V_VA + db)} offset:{off}',
                                          f'ds_read_b64_tr_b16 {ar(r + 2, 2)}, {vr(V_VA + db)} offset:{off + 4096}'])
def groups_C(hs, cfg):
    gs = []
    def order(qb):
        o = list(range(len(hs)))
        return o if qb % 2 == 0 else o[::-1]
    seq = [(qb, k) for qb in range(4) for k in order(qb)] if cfg.chain else [(qb, k) for k in range(len(hs)) for qb in range(4)]
    for db in range(8):
        def mfs(regs, db=db):
            regs = regs or [0] * 2
            return [(f'{MF} {O(db, qb)}, {ar(regs[k], 4)}, {vr(Preg(hs[k], qb), 4)}, {O(db, qb)}', ('C', hs[k], qb)) for qb, k in seq]
        us = [unit_V(h, db) for h in hs]
        for k, u in enumerate(us): u.lead = cfg.lead + cfg.spread * (len(hs) - 1 - k)
        gs.append(Group(mfs, us, wait_next=1 if db % 2 == 0 else 0))
    gs.append(Group(lambda regs: [(f'{MF} {Lr(qb)}, {ar(A_ONE, 4)}, {vr(Preg(hs[k], qb), 4)}, {Lr(qb)}', ('C', hs[k], qb)) for qb, k in seq if qb not in LVQ[cfg.lv]]))
    return gs

LVQ = [[], [2], [1, 3]]
V_LS = 8
def softmax_ops(h, start, base, cfg):
    exps = []; posts = []
    for kb in range(2):
        for qb in range(4):
            s = Sreg(h % 2, kb, qb)
            for i in range(4):
                exps.append((start + 2 * len(exps), f'v_exp_f32 {vr(s + i)}, {vr(s + i)}', (h, kb, qb)))
                if qb in LVQ[cfg.lv]:
                    l = V_LS + 2 * LVQ[cfg.lv].index(qb) + (i & 1)
                    posts.append((base + len(exps), f'v_add_f32 v{l}, v{l}, {vr(s + i)}', start + 2 * len(exps) + 1, (h, kb, qb, 'add')))
                if i & 1:
                    posts.append((base + len(exps), f'v_cvt_pk_bf16_f32 {vr(Preg(h, qb) + 2 * kb + i // 2)}, {vr(s + i - 1)}, {vr(s + i)}', start + 2 * len(exps) + 1, (h, kb, qb)))
    return exps, posts

def kv_dma(which, tile):
    slot = tile % 4
    m0, dv, srdr, off, nv = (S_M0K, V_DK, S_K, S_OFFK, 4) if which == 'K' else (S_M0V, V_DV, S_V, S_OFFV, 2)
    ops = [(f's_add_u32 m0, {sr(m0)}, {slot * 16384}', None)]
    for j in range(4):
        ops.append((f'buffer_load_dwordx4 {vr(dv + j % nv)}, {sr(srdr, 4)}, {sr(off)} offen offset:{j * 1024} lds', ('d' + which, tile)))
    ops.append((f's_add_u32 {sr(off)}, {sr(off)}, 16384', None))
    return ops

def w_dma(name, s, region, dv, srdr, soff, post):
    ops = []
    for j in range(8):
        if j % 4 == 0: ops.append((f's_add_u32 m0, {sr(S_WB)}, {region + (j // 4) * 16384}', None))
        ops.append((f'buffer_load_dwordx4 {vr(dv + j)}, {sr(srdr, 4)}, {sr(soff)} offen offset:{(j % 4) * 1024} lds', (name, s)))
    return ops + [(p, None) for p in post]

def attn_main(st, cfg, tail_extra, last_extra):
    NI = 136 - 2 * cfg.lv; HW = NI // 2 - 2 + cfg.hwd
    PP = 16 + 8 * cfg.lv
    def window(t):
        ops = []
        if t + 3 < NT: ops += kv_dma('V', t + 3)
        if t + 4 < NT: ops += kv_dma('K', t + 4)
        return ops + tail_extra(t)
    def build():
        groups = []; gate = None; idx = 0; exps = []; posts = []
        e0, p0 = softmax_ops(0, -1000, 0, cfg); e1, p1 = softmax_ops(1, cfg.S0 + HW - NI, 32, cfg)
        exps += e0 + e1; posts += p0 + p1
        for t in range(NT):
            if t < NT - 1:
                gs = groups_A(2 * t + 2, cfg, gate=gate) + groups_A(2 * t + 3, cfg, gate=gate)
                cs = groups_C([2 * t, 2 * t + 1], cfg)
                x = cs[cfg.XG]
                x.barrier = dict(vm=[('dV', t + 1)] + ([('dK', t + 2)] if t + 2 < NT else []), units=[u for g in cs for u in g.units], then=window(t + 1))
                for g in cs[cfg.XG:8]:
                    for u in g.units: u.lead = max(u.lead, cfg.xlead + 8 * (cs.index(g) - cfg.XG) + (u.lead - cfg.lead) // 2)
                gs += cs; ngate = x
                for k in range(2):
                    ee, pp = softmax_ops(2 * t + 2 + k, idx + cfg.S0 + HW * k, 32 * (2 * t + 2 + k), cfg); exps += ee; posts += pp
            else:
                gs = groups_C([2 * t], cfg) + groups_C([2 * t + 1], cfg)
                for g in gs:
                    for u in g.units: u.gate = gate; u.lead = min(cfg.lead, 14)
                gs[9].on_start = lambda S: S['extra'].extend(last_extra)
            gs[0].mark = f'it{t}'
            groups += gs; gate = ngate; idx += NI
        return groups, exps, posts
    def check_fn():
        spend = {}; sready = {}; pdone = {};
        def check(kind, key, i):
            if kind == 'mfma' and key[0] == 'A':
                _, h, kb, qb, first, last = key
                if first: assert spend.get((h % 2, kb, qb), 0) == 0, ('S overwritten early', key, i)
                if last: spend[(h % 2, kb, qb)] = 6 if qb in LVQ[cfg.lv] else 2; sready[(h, kb, qb)] = i
            elif kind == 'mfma' and key[0] == 'C':
                if key[1] >= 2: assert pdone.get((key[1], key[2]), (0, 0))[0] == 4 and pdone[(key[1], key[2])][1] < i - 1, ('P not ready', key, i)
                check.lastC[(key[1] % 4, key[2])] = (key[1], i)
            elif kind == 'trans':
                if key[0] >= 2: assert i >= sready[key] + 8, ('S not ready', key, i)
            elif kind == 'post':
                h, kb, qb = key[:3]
                if h >= 2: spend[(h % 2, kb, qb)] -= 1
                if len(key) > 3: return
                c = pdone.get((h, qb), (0, 0)); pdone[(h, qb)] = (c[0] + 1, i)
                if h >= 4: assert check.cnt_c(h - 4, qb), ('P overwritten early', key, i)
        check.lastC = {}
        seen = {}
        def wrap(kind, key, i):
            if kind == 'mfma' and key[0] == 'C': seen[(key[1], key[2])] = seen.get((key[1], key[2]), 0) + 1
            check(kind, key, i)
        check.cnt_c = lambda h, qb: seen.get((h, qb), 0) == (8 if qb in LVQ[cfg.lv] else 9)
        return wrap
    def run(st, pre):
        groups, exps, posts = build()
        npre, lastoff, ntr0, npo0, primed, prev = pre
        def after_prime(st, trans, posts, S):
            emit_ops(st, S['pend'][:npre]); S['pend'] = S['pend'][npre:]
            k = 0
            for n in range(ntr0):
                st.e(trans.pop(0)[1])
                while k < npo0 and posts[0][0] <= n: st.e(posts.pop(0)[1]); k += 1
            st.e('s_nop 0')
            while k < npo0: st.e(posts.pop(0)[1]); k += 1
            S['ntr'] = ntr0
        S = dict(pend=window(0), lastdma=lastoff, after_prime=after_prime, prev=prev)
        nl = NI * (NT - 1)
        exps = [(min(a, nl), b, c) for a, b, c in exps]
        posts = [(a, b, min(c, nl), d) for a, b, c, d in posts]
        S = schedule(st, groups, RING, cfg.lead, exps, posts, side_gap=lambda i: cfg.dma_gap if i < NI * 28 else 6, state=S, primed=primed, check=check_fn(), dense_from=nl, max_wide=cfg.mw, P=Policy(cfg.pa))
        for x in S['extra']: st.e(x)
        st.mark('end')
        return S['log'], len(exps), len(posts)
    log, ne, npo = run(Stream(), (3, -1000, 32 + (NI - cfg.S0 - HW + 1) // 2, PP + (NI - cfg.S0 - HW + 1) // 4 - 1, 4, 'P'))
    def norm(t):
        c, ld, nt, npp, rq, pv = log[f'it{t}']
        return (c, ld, ne - nt - 64 * t, npo - npp - 2 * PP * t, rq - 32 * t, pv)
    n = norm(3)
    assert all(norm(t) == n for t in range(3, NT - 4)), [norm(t) for t in range(2, 8)]
    run(st, n)

def gemm(st, cfg, name, stages, ta, joff, vba, baddr, refill, extra, first_ops=(), late=(), keep=False):
    groups = []; bcur = None; nb_sets = 0; seen = set()
    for s, (kp, half) in enumerate(stages):
        vb, ib = ta(s)
        newb = bcur is None or bcur[0] != kp or stages[s - 1][1] == half
        if newb:
            base = A_BF + 32 * (nb_sets % 2); nb_sets += 1
            bu = [Unit((name + 'B', s, k, qb), (lambda r, k=k, qb=qb, kp=kp: [f'ds_read_b128 {ar(r, 4)}, {vr(vba)} offset:{baddr(2 * kp + k, qb)}']), reg=base + 16 * k + 4 * qb, lead=cfg.blead - cfg.bspread * (2 * qb + k))
                  for qb in range(4) for k in range(2)]
            bcur = (kp, bu)
        bu = bcur[1]
        for n4 in range(4):
            nb = 4 * half + n4
            au = [Unit((name + 'A', s, n4, k), (lambda r, k=k, n4=n4, vb=vb, ib=ib: [f'ds_read_b64_tr_b16 {ar(r, 2)}, {vr(vb + n4)} offset:{ib + 16384 * k}',
                                                                                 f'ds_read_b64_tr_b16 {ar(r + 2, 2)}, {vr(vb + n4)} offset:{ib + 16384 * k + joff}']),
                       vm=(name, s) if n4 == 0 and k == 0 and not (cfg.nodma and s > 2) else None, lead=cfg.glead + cfg.gspread * (1 - k)) for k in range(2)]
            first = nb not in seen; seen.add(nb)
            def mfs(regs, nb=nb, first=first, au=au, bu=bu):
                r = []
                seq = [(qb, k ^ (qb & 1), k == 0) for qb in range(4) for k in range(2)] if cfg.chain else [(qb, k, k == 0) for k in range(2) for qb in range(4)]
                for qb, k, f in seq:
                    c = vr(ACC(nb, qb), 4)
                    r.append((f'{MF} {c}, {ar(au[k].reg or 0, 4)}, {ar(bu[2 * qb + k].reg, 4)}, {0 if first and f else c}', None))
                return r
            if newb and n4 == 0: g = Group(mfs, bu + au)
            else: g = Group(mfs, au, hold=bu)
            def rel(S, s=s, n4=n4):
                if n4 == 3: S['pend'] += refill(s)
                for ls, ln, ops in late:
                    if (ls, ln) == (s, n4): S['extra'] += ops
            g.on_start = rel
            groups.append(g)
    S = dict(pend=list(first_ops), extra=list(extra))
    S = schedule(st, groups, [A_AF + 4 * i for i in range(8)], cfg.glead, side_gap=lambda i: cfg.ggap, state=S, primed=12, sort_reads=True, max_wide=cfg.gmw, P=Policy(cfg.pg))
    if not keep: emit_ops(st, S['pend'])
    for x in S['extra']:
        if isinstance(x, tuple): st.vm(*x)
        else: st.e(x)
    return S['pend']

def gen_k1(cfg, name='k1_attn_kernel'):
    F = cfg.fused == 1; FT = cfg.fused > 0
    if FT: import tail
    if F: name = 'adaLN_cond__gqa_block_cached__dense_activation_relu__prompt_kernel'
    st = Stream(); e = st.e
    cfg.sv = 253
    e('s_cmp_ge_u32 s2, 256'); e('s_cbranch_scc1 L_k1_end')
    e(f's_load_dwordx8 s[48:55], s[0:1], {KA_X}')
    e(f's_load_dwordx2 s[56:57], s[0:1], {KA_WO}'); e(f's_load_dwordx2 s[58:59], s[0:1], {KA_WS}'); e(f's_load_dwordx4 s[4:7], s[0:1], {KA_W1}')
    if cfg.cpf:
        e('v_lshlrev_b32 v6, 4, v0'); code_addr(e, 'a', 'L_k1_body', 'L_k1_end' if cfg.cpf == 1 else 'L_k1_post', 6, 4)
        st.vm(f'global_load_dwordx4 {ar(A_DUMMY, 4)}, v[4:5], off', 'cpf')
        e('L_k1_body:')
    if FT: e(f's_load_dwordx8 s[64:71], s[0:1], {KA_C}'); e('v_mov_b32 v15, v0'); e('s_and_b32 s84, s2, 7'); e('s_lshr_b32 s85, s2, 3')
    stamp(st, cfg, 0)
    lg = {1: 0, 2: 1, 4: 2, 8: 3}[cfg.G]
    e('s_and_b32 s60, s2, 7'); e('s_lshr_b32 s61, s2, 3')
    e(f's_lshl_b32 s{S_G}, s60, {lg}'); e(f's_and_b32 s{S_G}, s{S_G}, 7'); e(f's_and_b32 s62, s61, {cfg.G - 1}'); e(f's_add_u32 s{S_G}, s{S_G}, s62')
    e(f's_lshr_b32 s60, s60, {3 - lg}'); e(f's_lshl_b32 s60, s60, {5 - lg}'); e(f's_lshr_b32 s{S_PF}, s61, {lg}'); e(f's_add_u32 s{S_RB}, s60, s{S_PF}')
    e('v_lshrrev_b32 v4, 6, v0'); e('v_and_b32 v0, 63, v0'); e(f'v_readfirstlane_b32 s{S_W}, v4')
    e(f'v_and_b32 v{V_R}, 15, v0'); e(f'v_lshrrev_b32 v{V_G}, 4, v0')
    e(f'v_and_b32 v4, 1, v{V_G}'); e('v_lshlrev_b32 v4, 1, v4'); e(f'v_lshrrev_b32 v5, 1, v{V_G}'); e(f'v_or_b32 v{V_PI}, v4, v5')
    e(f's_lshl_b32 s{S_WB}, s{S_W}, 12')
    if not cfg.krot: e(f's_mov_b32 s{S_ROT}, 0')
    else: e(f's_and_b32 s{S_ROT}, s{S_PF}, {cfg.rotmask}'); e(f's_lshl_b32 s{S_ROT}, s{S_ROT}, {cfg.rotsh}')
    e('v_lshlrev_b32 v7, 4, v0'); e(f's_lshl_b32 s62, s{S_ROT}, 2')
    e(f's_lshl_b32 s60, s{S_RB}, 16'); e(f's_lshl_b32 s61, s{S_W}, 14'); e('s_add_u32 s60, s60, s61'); e(f's_add_u32 s61, s61, {R3}')
    def x_off():
        for i in range(16):
            e(f'v_xad_u32 v{V_ACC + i}, v0, {i}, s62'); e(f'v_and_b32 v{V_ACC + i}, 63, v{V_ACC + i}'); e(f'v_lshlrev_b32 v{V_ACC + i}, 4, v{V_ACC + i}')
    if not F: x_off()
    e('s_waitcnt lgkmcnt(0)')
    QREG = lambda s: [R0, R2, R1][(s - 13) % 3]
    MODL = QREG(2) + 16384
    if F:
        srd(e, S_WS, 58, 59, WS_PART); srd(e, 80, 70, 71, 256)
        tail.mod_loads(st, cfg); tail.clear_counters(st, cfg); x_off()
    srd(e, S_X, 48, 49, 2048 * 1024)
    def x_dma(st):
        st.e('s_mov_b32 s76, s77')
        for i in range(16):
            if i % 4 == 0:
                st.e(f's_add_u32 m0, s78, {1024 * i}')
                st.e('s_add_u32 s76, s76, 4096' if i else 's_nop 0')
            st.vm(f'buffer_load_dwordx4 v{V_ACC + i}, {sr(S_X, 4)}, s76 offen offset:{1024 * (i % 4)} lds', 'x')
    e('s_mov_b32 s77, s60'); e('s_mov_b32 s78, s61')
    def x_early():
        if F:
            e(f's_cmp_lt_u32 s87, {tail.NU}'); e('s_cbranch_scc1 L_f_xlate'); st.cond = 'xearly'
        x_dma(st)
        if F: st.cond = False; e('L_f_xlate:')
    if not (F and cfg.xdelay): x_early()
    if F and not cfg.mlate: tail.mod_urgent(st, cfg, MODL + 4096, x_dma)
    if not F:
        srd(e, S_WS, 58, 59, WS_PART if FT else 0x1000)
        e(f's_lshl_b32 s62, s{S_ROT}, 8'); e('v_add_u32 v6, s62, v7')
        for j in range(4):
            e(f's_add_u32 m0, s{S_WB}, {MODL + 1024 * j}'); e(f'v_add_u32 v5, {1024 * j}, v6'); e('v_and_b32 v5, 0xfff, v5')
            st.vm(f'buffer_load_dwordx4 v5, {sr(S_WS, 4)}, 0 offen lds', 'mod')
    e(f's_lshl_b32 s62, s{S_G}, 10'); e(f's_sub_u32 s63, {512 * 8192}, s62')
    srd(e, S_WQ, 54, 55, 's63', off='s62')
    e(f's_lshl_b32 s61, s{S_W}, 8'); e('v_lshrrev_b32 v8, 3, v0'); e(f'v_lshl_add_u32 v8, v8, 13, s61')
    e('v_and_b32 v5, 7, v0'); e(f'v_and_b32 v4, 1, v{V_G}'); e('v_lshlrev_b32 v4, 1, v4'); e('v_xor_b32 v4, v4, v5')
    e('v_lshl_add_u32 v9, v4, 4, v8'); e('v_xor_b32 v4, 4, v4'); e('v_lshl_add_u32 v10, v4, 4, v8')
    for j in range(8): e(f'v_add_u32 {vr(V_DWQ + j)}, {65536 * j - 1024 * (j % 4)}, v{9 + (j & 1)}')
    e(f's_lshl_b32 s{S_OFFW}, s{S_ROT}, 18')
    def wq_dma(s):
        if s % 2 == 0: return w_dma('wq', s, QREG(s), V_DWQ, S_WQ, S_OFFW, [f's_add_u32 s3, s{S_OFFW}, 128'])
        return w_dma('wq', s, QREG(s), V_DWQ, S_WQ, 3, [f's_add_u32 s{S_OFFW}, s{S_OFFW}, 524288', f's_and_b32 s{S_OFFW}, s{S_OFFW}, 0x3fffff'])
    def wo_dma(s):
        return w_dma('wo', s, OREG(s), V_DWO, S_WO, S_OFFW, [f's_add_u32 s{S_OFFW}, s{S_OFFW}, {65536 + (128 if s == 7 else 0)}', f's_and_b32 s{S_OFFW}, s{S_OFFW}, 0x7ffff'])
    OREG = lambda s: [R4, R0, R3][s % 3]
    wq_early = wq_dma(0) + wq_dma(1)
    wq2 = wq_dma(2)
    wq_early += wq2[:5]; wq_late = wq2[5:]
    emit_ops(st, wq_early[:cfg.npre]); wq_early = wq_early[cfg.npre:]
    ndum = [0]
    def pf(voff, srdr, soff, imm=0):
        r = A_DUMMY + 4 * (ndum[0] % 3); ndum[0] += 1
        return (f'buffer_load_dwordx4 {ar(r, 4)}, {voff}, {sr(srdr, 4)}, {soff} offen offset:{imm}', 'pf')
    pfo = []
    if cfg.pfq:
        pfo += [(f's_lshl_b32 s5, s{S_PF}, {17 + lg}', None), (f's_lshl_b32 s6, s{S_W}, {15 + lg}', None), ('s_add_u32 s5, s5, s6', None)]
        for i in range(4 * cfg.G): pfo += [pf('v7', S_WQ, 's5'), ('s_add_u32 s5, s5, 8192', None)]
    if cfg.prefetch:
        pfo += [(f's_lshl_b32 s5, s{S_PF}, {11 + lg}', None), (f's_lshl_b32 s6, s{S_W}, {9 + lg}', None), ('s_add_u32 s5, s5, s6', None)]
        for i in range(max(1, cfg.G // 2)): pfo += [pf('v7', S_K, 's5', 1024 * i), pf('v7', S_V, 's5', 1024 * i)]
    pfwo = [(f's_lshl_b32 s5, s{S_RB}, 14', None), (f's_add_u32 s5, s5, s{S_WB}', None)] + [pf('v252', S_WO, 's5', 1024 * i) for i in range(4)]
    if cfg.pfo2:
        pfwo = [(f's_lshl_b32 s5, s{S_ROT}, 15', None), ('s_add_u32 s5, s5, 128', None)] + [pf(f'v{V_DWO + j}', S_WO, 's5', 1024 * (j % 4)) for j in range(8)]
    e(f's_lshl_b32 s62, s{S_G}, 19')
    srd(e, S_K, 50, 51, 524288, off='s62'); srd(e, S_V, 52, 53, 524288, off='s62')
    srd(e, S_WO, 56, 57, 524288, off='s62')
    e(f's_lshl_b32 s62, s{S_G}, 21'); e(f's_add_u32 s62, s62, {WS_PART}')
    srd(e, S_PART, 58, 59, 1 << 21, off='s62')
    e('s_and_b32 s61, s2, 1'); e('s_mul_i32 s62, s61, 1792'); e(f's_sub_u32 s63, {512 * 3584}, s62'); srd(e, 92, 4, 5, 's63', off='s62')
    e('s_lshl_b32 s62, s61, 9'); e(f's_sub_u32 s63, {512 * 3584}, s62'); srd(e, 96, 6, 7, 's63', off='s62')
    e('s_lshr_b32 s4, s2, 3'); e('s_lshl_b32 s4, s4, 2'); e(f's_add_u32 s4, s4, s{S_W}'); e(f's_mul_i32 s7, s4, {14 * 1024}'); e(f's_mul_i32 s4, s4, {4 * 3584}')
    e('v_lshrrev_b32 v251, 5, v0'); e('v_lshlrev_b32 v251, 10, v251'); e('v_and_b32 v4, 31, v0'); e('v_lshl_add_u32 v251, v4, 4, v251')
    e('v_lshlrev_b32 v252, 4, v0')
    e(f's_mov_b32 s{S_OFFK}, 0'); e(f's_mov_b32 s{S_OFFV}, 0'); e(f's_add_u32 s{S_M0V}, s{S_WB}, {LDS_V}'); e(f's_mov_b32 s{S_FLAG}, 0')
    for ks in range(4):
        e(f'v_add_u32 v5, {4 * ks}, v{V_PI}'); e(f'v_xor_b32 v5, v5, v{V_R}'); e('v_lshlrev_b32 v5, 4, v5'); e(f'v_lshl_add_u32 {vr(V_KA + ks)}, v{V_R}, 8, v5')
    e(f'v_lshrrev_b32 v11, 2, v{V_R}'); e(f'v_and_b32 v12, 3, v{V_R}'); e('v_lshlrev_b32 v12, 3, v12')
    e(f'v_lshl_add_u32 v5, v{V_G}, 2, v11'); e('v_and_b32 v13, 7, v5'); e('v_lshl_add_u32 v14, v5, 8, v12'); e(f'v_add_u32 v14, {LDS_V}, v14')
    for db in range(8): e(f'v_xor_b32 v4, {db}, v13'); e(f'v_lshl_add_u32 {vr(V_VA + db)}, v4, 5, v14')
    e(f'v_lshl_add_u32 v9, v{V_G}, 8, s{S_WB}')
    for j in range(4): e(f'v_add_u32 v5, {4 * j}, v{V_G}'); e(f'v_xor_b32 v5, v5, v{V_R}'); e(f'v_lshl_add_u32 {vr(V_DK + j)}, v5, 4, v9')
    for j in range(2): e(f'v_add_u32 v5, {4 * j}, v{V_G}'); e('v_lshlrev_b32 v5, 1, v5'); e(f'v_xor_b32 v5, v5, v{V_R}'); e(f'v_lshl_add_u32 {vr(V_DV + j)}, v5, 4, v9')
    e(f's_lshl_b32 s61, s{S_W}, 8'); e('v_lshrrev_b32 v8, 3, v0'); e(f'v_lshl_add_u32 v8, v8, 10, s61')
    e('v_and_b32 v5, 7, v0'); e(f'v_lshlrev_b32 v4, 1, v{V_G}'); e('v_xor_b32 v4, v4, v5'); e(f'v_lshl_add_u32 {vr(V_DWO)}, v4, 4, v8')
    for j in range(1, 8): e(f'v_add_u32 {vr(V_DWO + j)}, {8192 * j - 1024 * (j % 4)}, {vr(V_DWO)}')
    e(f'v_and_b32 v4, 1, v{V_G}'); e(f'v_lshrrev_b32 v13, 3, v{V_R}'); e('v_lshl_add_u32 v13, v4, 1, v13')
    e(f'v_lshl_add_u32 v5, v{V_G}, 3, v11'); e('v_lshl_add_u32 v14, v5, 7, v12'); e(f'v_add_u32 v14, s{S_WB}, v14')
    for nb in range(4):
        e(f'v_xor_b32 v4, {nb}, v13'); e(f'v_lshl_add_u32 {vr(V_TA[0] + nb)}, v4, 5, v14'); e(f'v_add_u32 {vr(V_TA[1] + nb)}, {R2}, {vr(V_TA[0] + nb)}')
    e(f'v_add_u32 {vr(V_BA)}, {R3}, v7')
    e(f's_lshl_b32 s61, s{S_W}, 14'); e(f'v_add_u32 v8, s61, {vr(V_BA)}')
    e(f's_add_u32 s62, s{S_WB}, {MODL}' if not F else f's_mov_b32 s62, {MODL}'); e(f'v_lshl_add_u32 v9, v{V_G}, 5, s62')
    e(f's_add_u32 s61, s61, {R3}'); e(f'v_lshl_add_u32 v14, v{V_R}, 10, s61')
    for k in range(4): e(f'v_add_u32 v4, {4 * k}, v{V_G}'); e(f'v_xor_b32 v4, v4, v{V_R}'); e(f'v_lshl_add_u32 v{10 + k}, v4, 4, v14')
    zero = [f'v_accvgpr_write_b32 a{A_O + i}, 0' for i in range(128)] + [f'v_accvgpr_write_b32 a{A_L + i}, 0' for i in range(16)]
    zero += ['v_mov_b32 v5, 0x3f803f80'] + [f'v_accvgpr_write_b32 a{A_ONE + i}, v5' for i in range(4)]
    if F and cfg.xdelay == 1: x_early()
    if cfg.zearly:
        for z in zero: e(z)
    if F and cfg.xdelay == 2: x_early()
    if F and cfg.mlate: tail.mod_urgent(st, cfg, MODL + 4096, x_dma)
    main = st; st = Stream(); e = st.e
    if F: tail.x_wait(main, cfg)
    else: main.wait(vm=['x'])
    for ks in range(16): main.lds(f'ds_read_b128 {vr(V_ACC + 8 * ks + 4, 4)}, v{10 + ks % 4} offset:{(ks // 4) * 256}', ('x', ks))
    stamp(main, cfg, 1)
    if cfg.fused == 2 and cfg.stamps: main.e('v_writelane_b32 v253, s88, 2'); main.e('v_writelane_b32 v253, s88, 3'); main.e('v_writelane_b32 v254, s90, 2'); main.e('v_writelane_b32 v254, s90, 3')
    for ks in range(16):
        b = V_ACC + 8 * ks
        if ks % 2 == 0: st.wait(lds=[('x', ks + 1)])
        for j in range(4):
            e(f'v_lshlrev_b32 v{b + 2 * j}, 16, v{b + 4 + j}'); e(f'v_and_b32 v{b + 2 * j + 1}, 0xffff0000, v{b + 4 + j}')
        for j in range(4):
            if ks == 0: continue
            a = V_HO + 2 * j
            e(f'v_pk_add_f32 {vr(a, 2)}, {vr(b + 2 * j, 2)}, {vr(a, 2) if ks > 1 else vr(V_ACC + 2 * j, 2)}')
    a = V_HO
    e(f'v_pk_add_f32 {vr(a, 2)}, {vr(a, 2)}, {vr(a + 2, 2)}'); e(f'v_pk_add_f32 {vr(a + 4, 2)}, {vr(a + 4, 2)}, {vr(a + 6, 2)}')
    e(f'v_pk_add_f32 {vr(a, 2)}, {vr(a, 2)}, {vr(a + 4, 2)}'); e(f'v_add_f32 v4, v{a}, v{a + 1}')
    xlane_reduce(e, [4], [5], 'v_add_f32')
    e(f'v_mul_f32 v4, {f2h(-1.0 / 512)}, v4')
    if F and cfg.spec and cfg.specpos == 0: tail.mod_spec(st, cfg, S_ROT)
    for ks in range(16):
        b = V_ACC + 8 * ks
        for j in range(4): e(f'v_pk_add_f32 {vr(b + 2 * j, 2)}, {vr(b + 2 * j, 2)}, v[4:5] op_sel_hi:[1,0]')
        for j in range(4):
            if ks == 0: e(f'v_pk_mul_f32 {vr(a + 2 * j, 2)}, {vr(b + 2 * j, 2)}, {vr(b + 2 * j, 2)}')
            else: e(f'v_pk_fma_f32 {vr(a + 2 * j, 2)}, {vr(b + 2 * j, 2)}, {vr(b + 2 * j, 2)}, {vr(a + 2 * j, 2)}')
    def modrd(ks):
        m = V_MOD + 16 * (ks % 2)
        for j in range(4): st.lds(f'ds_read_b128 {vr(m + 4 * j, 4)}, v9 offset:{ks * 256 + (j // 2) * 128 + (j % 2) * 16}', ('mod', ks))
    if not F: st.wait(vm=['mod']); modrd(0); modrd(1)
    e(f'v_pk_add_f32 {vr(a, 2)}, {vr(a, 2)}, {vr(a + 2, 2)}'); e(f'v_pk_add_f32 {vr(a + 4, 2)}, {vr(a + 4, 2)}, {vr(a + 6, 2)}')
    e(f'v_pk_add_f32 {vr(a, 2)}, {vr(a, 2)}, {vr(a + 4, 2)}'); e(f'v_add_f32 v4, v{a}, v{a + 1}')
    xlane_reduce(e, [4], [5], 'v_add_f32')
    e(f'v_mov_b32 v5, {f2h(1e-5)}'); e(f'v_fmac_f32 v5, {f2h(1.0 / 512)}, v4'); e('v_rsq_f32 v4, v5'); e('s_nop 0')
    if F:
        if cfg.spec and cfg.specpos == 1: tail.mod_spec(st, cfg, S_ROT)
        for ks in range(16):
            b = V_ACC + 8 * ks
            for j in range(4): e(f'v_pk_mul_f32 {vr(b + 2 * j, 2)}, {vr(b + 2 * j, 2)}, v[4:5] op_sel_hi:[1,0]')
            if cfg.lnx:
                ho = V_HO + 4 * (ks % 2)
                for j in range(4): e(f'v_cvt_pk_bf16_f32 v{ho + j}, v{b + 2 * j}, v{b + 2 * j + 1}')
                st.lds(f'ds_write_b128 v8, {vr(ho, 4)} offset:{ks * 1024}', 'xw')
        if cfg.lnx:
            e(f'v_add_u32 v10, s{S_WB}, v{V_BA}'); e(f's_lshl_b32 s60, s{S_W}, 10'); e('v_add_u32 v9, s60, v9')
            if cfg.spec and cfg.specpos == 2: tail.mod_spec(st, cfg, S_ROT)
            st.wait(lds='all'); e('s_barrier')
            for n in range(16): st.lds(f'ds_read_b128 {vr(V_ACC + 8 * n + 4, 4)}, v10 offset:{(n % 4) * 16384 + (n // 4) * 1024}', ('xn', n))
            for n in range(16):
                b = V_ACC + 8 * n
                if n % 2 == 0: st.wait(lds=[('xn', n + 1)])
                if n == 4 and cfg.spec and cfg.specpos == 3: tail.mod_spec(st, cfg, S_ROT)
                for j in range(4): e(f'v_lshlrev_b32 v{b + 2 * j}, 16, v{b + 4 + j}'); e(f'v_and_b32 v{b + 2 * j + 1}, 0xffff0000, v{b + 4 + j}')
        left = interleave(main, st, (wq_early + pfo)[:len(wq_early + pfo) - cfg.wqlate], 0, cfg.lnev)
        st = main; e = st.e
        emit_ops(st, left)
        if cfg.wqlate: wq_late = (wq_early + pfo)[-cfg.wqlate:] + wq_late
        stamp(st, cfg, 9)
        tail.mod_fetch(st, cfg, MODL, S_ROT)
        stamp(st, cfg, 10)
        modrd(0); modrd(1)
        if cfg.tlb:
            e('v_lshlrev_b32 v4, 13, v0')
            for s_ in (S_K, S_V, S_WO): st.vm(f'buffer_load_dword a245, v4, {sr(s_, 4)}, 0 offen', 'tlb')
        emit_ops(st, tail.rest_loads())
    hw = []
    if F and cfg.lnx:
        for n in range(16):
            b = V_ACC + 8 * n; i = n // 4; m = V_MOD + 16 * (i % 2); ho = V_HO + 4 * (n % 2)
            if n % 4 == 0: st.wait(lds=[('mod', i)])
            for j in range(4): e(f'v_pk_fma_f32 {vr(b + 2 * j, 2)}, {vr(b + 2 * j, 2)}, {vr(m + 2 * j, 2)}, {vr(m + 8 + 2 * j, 2)}')
            if n % 4 == 3 and i + 2 < 4: modrd(i + 2)
            if hw: st.lds(hw.pop(), 'hw')
            for j in range(4): e(f'v_cvt_pk_bf16_f32 v{ho + j}, v{b + 2 * j}, v{b + 2 * j + 1}')
            hw.append(f'ds_write_b128 v10, {vr(ho, 4)} offset:{(n % 4) * 16384 + i * 1024}')
        st.lds(hw.pop(), 'hw')
    for ks in range(0 if F and cfg.lnx else 16):
        b = V_ACC + 8 * ks; m = V_MOD + 16 * (ks % 2); ho = V_HO + 4 * (ks % 2)
        if not F:
            for j in range(4): e(f'v_pk_mul_f32 {vr(b + 2 * j, 2)}, {vr(b + 2 * j, 2)}, v[4:5] op_sel_hi:[1,0]')
        st.wait(lds=[('mod', ks)])
        for j in range(4): e(f'v_pk_fma_f32 {vr(b + 2 * j, 2)}, {vr(b + 2 * j, 2)}, {vr(m + 2 * j, 2)}, {vr(m + 8 + 2 * j, 2)}')
        if ks + 2 < 16: modrd(ks + 2)
        if hw: st.lds(hw.pop(), 'hw')
        for j in range(4): e(f'v_cvt_pk_bf16_f32 v{ho + j}, v{b + 2 * j}, v{b + 2 * j + 1}')
        hw.append(f'ds_write_b128 v8, {vr(ho, 4)} offset:{ks * 1024}')
        if not cfg.dwl or ks == 15: st.lds(hw.pop(), 'hw')
    if not F:
        body = st; st = main; e = st.e
        left = interleave(st, body, wq_early + pfo, 0, cfg.lnev)
        emit_ops(st, left + wq_late); wq_late = []
    st.wait(lds='all'); e('s_barrier')
    stamp(st, cfg, 2)
    def q_conv(ks):
        o = []
        for qb in range(4):
            d = V_Q + (qb * 4 + ks) * 4; a0 = ACC(2 * ks, qb); a1 = ACC(2 * ks + 1, qb)
            o += [f'v_cvt_pk_bf16_f32 v{d}, v{a0}, v{a0 + 1}', f'v_cvt_pk_bf16_f32 v{d + 1}, v{a0 + 2}, v{a0 + 3}',
                  f'v_cvt_pk_bf16_f32 v{d + 2}, v{a1}, v{a1 + 1}', f'v_cvt_pk_bf16_f32 v{d + 3}, v{a1 + 2}, v{a1 + 3}']
        for qb in range(4):
            d = V_Q + (qb * 4 + ks) * 4
            o += [f'v_permlane16_swap_b32 v{d}, v{d + 2}', f'v_permlane16_swap_b32 v{d + 1}, v{d + 3}']
        return o
    def ta_q(s):
        r = QREG(s); return (V_TA[1], 0) if r == R2 else (V_TA[0], r)
    def refill_q(s):
        if s + 3 < 16: return wq_dma(s + 3)
        return {13: kv_dma('K', 0) + kv_dma('K', 1), 14: kv_dma('V', 0) + kv_dma('V', 1), 15: []}[s]
    gemm(st, cfg, 'wq', [(s // 2, s % 2) for s in range(16)], ta_q, 512, V_BA, lambda ks, qb: qb * 16384 + ks * 1024, refill_q, [] if cfg.zearly else zero, first_ops=wq_late, late=([(2, 3, tail.rest_math())] if F else []) + [(15, 0, q_conv(0) + q_conv(1))], keep=False)
    stamp(st, cfg, 3)
    e('s_nop 3')
    for x in q_conv(2) + q_conv(3): e(x)
    st.wait(vm=[('dK', 0)]); e('s_barrier')
    if F: tail.rest_share(st, R4)
    if cfg.cpf == 2:
        e(f's_lshl_b32 s60, s{S_W}, 10'); e('v_lshl_add_u32 v6, v0, 4, s60'); code_addr(e, 'b', 'L_k1_post', 'L_k1_end', 6, 12)
    st.mark('attn_start')
    def max_ops(b, kb, first):
        o = []
        for qb in range(4):
            r = Sreg(b, kb, qb); m = 4 + qb
            o.append(f'v_max3_f32 v{m}, v{r}, v{r + 1}, ' + (f'v{r + 2}' if first else f'v{m}'))
        for qb in range(4):
            r = Sreg(b, kb, qb); m = 4 + qb
            o.append(f'v_max_f32 v{m}, v{m}, v{r + 3}' if first else f'v_max3_f32 v{m}, v{r + 2}, v{r + 3}, v{m}')
        return o
    def rawA(st, side, first):
        gs = groups_A(0, cfg, raw=True) + groups_A(1, cfg, raw=True)
        gs[2].on_start = lambda S: S['extra'].extend(max_ops(0, 0, first))
        gs[3].on_start = lambda S: S['extra'].extend(max_ops(0, 1, False) + max_ops(1, 0, False))
        S = schedule(st, gs, RING, 16, primed=8, side_gap=lambda i: 3, state=dict(pend=list(side)), P=Policy('order:1,dma_alone:1'))
        assert not S['pend'] and not S['extra']
    def make_negm(st):
        e = st.e
        xlane_reduce(e, [4, 5, 6, 7], [8, 9, 10, 11], 'v_max_f32')
        for qb in range(4):
            for i in range(4): e(f'v_sub_f32 {vr(V_NEGM + 4 * qb + i)}, {f2h(-cfg.B)}, v{4 + qb}')
    rawA(st, kv_dma('K', 2) + kv_dma('K', 3) + kv_dma('V', 2), True)
    e(f's_cmp_lg_u32 s{S_FLAG}, 0'); e('s_cbranch_scc1 L_k1_havemax0')
    e('s_nop 2')
    for x in max_ops(1, 1, False): e(x)
    make_negm(st)
    e('L_k1_havemax0:'); e('s_nop 5')
    e('L_k1_havemax:')
    for b in range(2):
        for kb in range(2):
            for qb in range(4):
                s = Sreg(b, kb, qb)
                for i in (0, 2): e(f'v_pk_add_f32 {vr(s + i, 2)}, {vr(s + i, 2)}, {vr(V_NEGM + 4 * qb, 2)}')
    for i in range(2 * cfg.lv): e(f'v_mov_b32 v{V_LS + i}, 0')
    st.wait(lds='all', vm=[('dK', 1), ('dV', 0)]); e('s_barrier')
    if F:
        e(f's_cmp_lg_u32 s{S_FLAG}, 0'); e('s_cbranch_scc1 L_f_norest'); tail.rest_store(st, R4)
        if cfg.tlb:
            e('v_lshlrev_b32 v4, 18, v0'); e('v_lshlrev_b32 v5, 15, v0')
            srd(e, 72, 58, 59, 8 << 21, off=WS_PART); srd(e, 64, 68, 69, 2 << 20)
            for v_, s_ in ((4, S_WS), (4, 72), (5, 64), (5, 92), (5, 96)): e(f'buffer_load_dword a245, v{v_}, {sr(s_, 4)}, 0 offen')
    pfw1 = []; pfw2 = []
    for r in range(4):
        pfw1 += [(f's_add_u32 s5, s4, {r * 3584}', None), pf('v252', 92, 's5'), pf('v252', 92, 's5', 768)]
    for r in range(7):
        pfw2 += [(f's_add_u32 s5, s7, {r * 2048}', None), pf('v251', 96, 's5')]
    pfe1, pfe2 = pfw1, pfw2
    if cfg.pfw & 8:
        pfe1 = [('s_lshr_b32 s6, s84, 1', None), ('s_mul_i32 s5, s6, 3584', None), ('s_add_u32 s5, s5, s4', None), pf('v252', 92, 's5'), pf('v252', 92, 's5', 768)]
        pfe2 = [('s_lshl_b32 s5, s6, 11', None), ('s_add_u32 s5, s5, s7', None), pf('v251', 96, 's5'), ('s_add_u32 s5, s5, 8192', None), pf('v251', 96, 's5')]
    def tail_extra(t):
        if t == 28: return ([(f'global_load_dwordx4 {ar(A_DUMMY, 4)}, v[12:13], off', 'cpf')] if cfg.cpf == 2 else []) + pfwo + (pfe1[:6] if cfg.pfw else [])
        if t == 29: return [(f's_lshl_b32 s{S_OFFW}, s{S_ROT}, 15', None)] + wo_dma(0) + (pfe2 if cfg.pfw else [])
        if t == 30: return wo_dma(1) + (pfe1[6:] if cfg.pfw else [])
        return []
    z = Stream(); ze = z.e
    ze(f'v_lshrrev_b32 v5, 2, v{V_R}'); ze(f'v_lshl_add_u32 v5, v{V_G}, 2, v5'); ze('v_bfe_u32 v6, v5, 1, 2'); ze(f'v_and_b32 v7, 3, v{V_R}'); ze('v_lshlrev_b32 v7, 3, v7')
    ze('v_lshl_add_u32 v7, v5, 7, v7'); ze(f'v_add_u32 v7, s{S_WB}, v7')
    for nb in range(4): ze(f'v_xor_b32 v5, {nb}, v6'); ze(f'v_lshl_add_u32 {vr(V_TO[0] + nb)}, v5, 5, v7'); ze(f'v_add_u32 {vr(V_TO[1] + nb)}, {R3}, {vr(V_TO[0] + nb)}')
    ze('v_and_b32 v15, 3, v0'); ze('v_lshlrev_b32 v15, 12, v15'); ze(f's_lshl_b32 s62, s{S_W}, 2'); ze(f's_add_u32 s62, s62, {R3}'); ze('v_add_u32 v15, s62, v15')
    ze('v_lshlrev_b32 v14, 4, v0'); ze(f's_lshl_b32 s61, s{S_W}, 2'); ze(f's_sub_u32 s61, s61, s{S_ROT}')
    for m in range(4):
        ze(f's_add_u32 s62, s61, {m}'); ze('s_and_b32 s62, s62, 15'); ze('s_lshl_b32 s62, s62, 12'); ze(f's_add_u32 s62, s62, {R1}'); ze(f'v_add_u32 v{V_P + m}, s62, v14')
    attn_main(st, cfg, tail_extra, z.resolve())
    stamp(st, cfg, 5)
    e('s_setreg_imm32_b32 hwreg(HW_REG_MODE, 4, 2), 3'); e('s_nop 4')
    if cfg.lv:
        lr = [V_S[0] + k for k in range(cfg.lv)]
        for k in range(cfg.lv): e(f'v_add_f32 v{lr[k]}, v{V_LS + 2 * k}, v{V_LS + 2 * k + 1}')
        xlane_reduce(e, lr, [V_S[0] + 4 + k for k in range(cfg.lv)], 'v_add_f32')
    for qb in range(4): e(f'v_accvgpr_read_b32 v{4 + qb}, a{A_L + 4 * qb}' if qb not in LVQ[cfg.lv] else f'v_mov_b32 v{4 + qb}, v{V_S[0] + LVQ[cfg.lv].index(qb)}')
    e(f'v_mov_b32 v{V_S[0] + 8}, {f2h(cfg.thr)}')
    e('v_max3_f32 v8, v4, v5, v6'); e('v_max_f32 v8, v8, v7')
    for qb in range(4): e(f'v_add_f32 v{9}, v{4 + qb}, {"v9" if qb else "0"}')
    e(f'v_cmp_nlt_f32 vcc, v8, v{V_S[0] + 8}'); e('v_cmp_u_f32 s[62:63], v9, v9')
    for qb in range(4): e(f'v_rcp_f32 v{4 + qb}, v{4 + qb}')
    e('s_or_b64 vcc, vcc, s[62:63]'); e('s_cmp_lg_u64 vcc, 0'); e('s_cselect_b32 s61, 1, 0')
    e('v_mov_b32 v11, s61'); st.lds('ds_write_b32 v15, v11', 'flagw')
    k = 0; dw = []
    for qb in range(4):
        for m in range(4):
            t = V_S[0] + 16 * (k % 4); k += 1
            for hb in range(2):
                for i in range(4): e(f'v_accvgpr_read_b32 v{t + 4 * hb + i}, a{A_O + ((2 * m + hb) * 4 + qb) * 4 + i}')
                if hb == 0 and dw: st.lds(dw.pop(), 'ow')
            sel = f'v[{4 + qb}:{5 + qb}] op_sel_hi:[1,0]' if qb % 2 == 0 else f'v[{3 + qb}:{4 + qb}] op_sel:[0,1] op_sel_hi:[1,1]'
            for i in range(4): e(f'v_pk_mul_f32 {vr(t + 2 * i, 2)}, {vr(t + 2 * i, 2)}, {sel}')
            for i in range(4): e(f'v_cvt_pk_bf16_f32 v{t + 8 + i}, v{t + 2 * i}, v{t + 2 * i + 1}')
            dw.append(f'ds_write_b128 v{V_P + m}, {vr(t + 8, 4)} offset:{qb * 1024}')
            if not cfg.dwl: st.lds(dw.pop(), 'ow')
    if dw: st.lds(dw.pop(), 'ow')
    e(f'v_add_u32 v{V_BO}, {R1}, v14'); e(f's_add_u32 s61, s{S_WB}, {R3}'); e('v_mov_b32 v10, s61')
    st.wait(lds='all'); e('s_barrier')
    st.lds('ds_read_b128 v[4:7], v10', 'flagr'); st.wait(lds=['flagr'])
    e('v_or3_b32 v4, v4, v5, v6'); e('v_or_b32 v4, v4, v7'); e('s_nop 0'); e('v_readfirstlane_b32 s61, v4'); e('s_nop 3')
    e(f's_andn2_b32 s61, s61, s{S_FLAG}'); e('s_cbranch_scc1 L_k1_slow')
    if F:
        e(f's_mov_b32 s61, {tail.CNT_MB}'); tail.signal(st, S_WS, 's61', 'L_f_sigb')
    stamp(st, cfg, 6)
    def ta_o(s):
        r = OREG(s); return (V_TO[0], 0) if r == R0 else (V_TO[1], r - R3)
    def refill_o(s): return wo_dma(s + 3) if s + 3 < 16 else []
    sadr = [f'v_lshrrev_b32 v4, 1, v{V_R}', 'v_lshlrev_b32 v4, 11, v4', f'v_lshl_add_u32 v4, v{V_PI}, 5, v4', f'v_and_b32 v5, 1, v{V_R}', 'v_lshl_add_u32 v4, v5, 4, v4',
            f's_lshl_b32 s48, s{S_RB}, 16', f's_lshl_b32 s62, s{S_W}, 9', 's_add_u32 s48, s48, s62'] + [f's_add_u32 s{48 + qb}, s48, {16384 * qb}' for qb in range(1, 4)]
    mbchk = []
    if F:
        sadr += [f's_min_u32 s52, s{S_W}, 1', 's_mul_i32 s52, s52, 0x7fff0000', f's_add_u32 s52, s52, {tail.CNT_MB}', 'v_mov_b32 v6, 0']
        mbchk = [(f'buffer_load_dword v255, v6, {sr(S_WS, 4)}, s52 offen sc1', 'mb')]
    def out_half(h):
        ops = []
        for qb in range(4):
            for m in (2 * h, 2 * h + 1):
                d = V_Q + (qb * 4 + m) * 4; a0 = ACC(2 * m, qb); a1 = ACC(2 * m + 1, qb)
                ops += [f'v_cvt_pk_bf16_f32 v{d}, v{a0}, v{a0 + 1}', f'v_cvt_pk_bf16_f32 v{d + 1}, v{a0 + 2}, v{a0 + 3}',
                        f'v_cvt_pk_bf16_f32 v{d + 2}, v{a1}, v{a1 + 1}', f'v_cvt_pk_bf16_f32 v{d + 3}, v{a1 + 2}, v{a1 + 3}']
            for m in (2 * h, 2 * h + 1):
                d = V_Q + (qb * 4 + m) * 4
                ops += [f'v_permlane16_swap_b32 v{d}, v{d + 2}', f'v_permlane16_swap_b32 v{d + 1}, v{d + 3}']
            for m in (2 * h, 2 * h + 1):
                ops.append((f'buffer_store_dwordx4 {vr(V_Q + (qb * 4 + m) * 4, 4)}, v4, {sr(S_PART, 4)}, s{48 + qb} offen offset:{m * 128}{SC}', 'st'))
        return ops
    gemm(st, cfg, 'wo', [(s % 8, s // 8) for s in range(16)], ta_o, 2048, V_BO, lambda ks, qb: ks * 4096 + qb * 1024, refill_o, sadr,
         first_ops=wo_dma(2), late=[(cfg.ost, 3, mbchk + out_half(0))] + ([(cfg.pfs, 3, [x if x[1] else x[0] for x in (pfw1 if cfg.pfw & 2 else []) + (pfw2 if cfg.pfw & 4 else [])])] if cfg.pfw > 1 else []))
    stamp(st, cfg, 7)
    e('s_nop 7')
    for x in out_half(1):
        if isinstance(x, tuple): st.vm(*x)
        else: e(x)
    if FT: tail.tail(st, cfg)
    else: stamp_out(st, cfg, 1, 8, 58, S_W)
    e('s_endpgm')
    segs, order = split_marks(st.resolve())
    NL = 28
    for t in range(4, NL):
        if segs[f'it{t}'] != segs[f'it{t - 4}']:
            import difflib, sys
            sys.stderr.write('\n'.join(list(difflib.unified_diff(segs[f'it{t - 4}'], segs[f'it{t}'], lineterm='', n=2))[:60]) + '\n')
            raise SystemExit(f'iteration {t} differs')
    if cfg.strip:
        import re
        pat = re.compile(cfg.strip.replace('+', '|'))
        for t in range(NL): segs[f'it{t}'] = [x for x in segs[f'it{t}'] if not pat.match(x)]
    out = header(name) + segs['_start'] + ['L_k1_attn_start:'] + segs['attn_start']
    tmp = Stream(); stamp(tmp, cfg, 4); out += tmp.resolve()
    out += [f's_mov_b32 s{S_CNT}, {NL // 4}', '.p2align 6', 'L_k1_loop:']
    for t in range(4): out += segs[f'it{t}']
    out += [f's_sub_u32 s{S_CNT}, s{S_CNT}, 1', f's_cmp_lg_u32 s{S_CNT}, 0', 's_cbranch_scc1 L_k1_loop']
    for t in range(NL, NT): out += (['L_k1_post:'] if t == NL + 2 else []) + segs[f'it{t}']
    out += segs['end']
    st = Stream(); e = st.e
    e('L_k1_slow:')
    e(f's_mov_b32 s{S_FLAG}, 1'); e('s_setreg_imm32_b32 hwreg(HW_REG_MODE, 4, 2), 0')
    e('s_waitcnt vmcnt(0) lgkmcnt(0)'); e('s_barrier')
    e(f's_mov_b32 s{S_OFFK}, 0'); e(f's_mov_b32 s{S_CNT}, {NT}')
    for qb in range(4): e(f'v_mov_b32 v{4 + qb}, 0xff800000')
    e('L_k1_slow_loop:')
    emit_ops(st, kv_dma('K', 0)); st.wait(vm='all'); e('s_barrier')
    rawA(st, [], False)
    e('s_nop 7')
    for x in max_ops(1, 1, False): e(x)
    e('s_barrier')
    e(f's_sub_u32 s{S_CNT}, s{S_CNT}, 1'); e(f's_cmp_lg_u32 s{S_CNT}, 0'); e('s_cbranch_scc1 L_k1_slow_loop')
    make_negm(st)
    for z in zero: e(z)
    e(f's_mov_b32 s{S_OFFK}, 0'); e(f's_mov_b32 s{S_OFFV}, 0')
    for w_, t_ in [('K', 0), ('K', 1), ('V', 0), ('V', 1)]: emit_ops(st, kv_dma(w_, t_))
    st.wait(vm='all'); e('s_barrier'); e('s_branch L_k1_attn_start')
    out += st.resolve() + ['L_k1_end:', 's_endpgm']
    return out, kd(name, 512, 256, 102), f'; @launch {"" if F else "kernel=" + name + " "}grid=(256,1,1) block=(256,1,1) lds=163840'
```

```python
import sys
from gen_common import *
import k0, k1
cfg = k1.Cfg(); kernels = '01234'
for a in sys.argv[1:]:
    k, v = a.split('=')
    if k == 'kernels': kernels = v
    else: setattr(cfg, k, int(v) if v.lstrip('-').isdigit() else v)
parts = []
if cfg.fused: kernels = '1' if cfg.fused == 1 else '01'
if '0' in kernels: parts.append(k0.gen_k0(cfg))
if '1' in kernels: parts.append(k1.gen_k1(cfg))
if '2' in kernels:
    import k2; parts.append(k2.gen_k2(cfg))
if '3' in kernels:
    import k3; parts.append(k3.gen_k3(cfg))
if '4' in kernels:
    import k4; parts.append(k4.gen_k4(cfg))
pre = int(getattr(cfg, 'epre', 0)); post = int(getattr(cfg, 'epost', 0))
lines = [p[2] for p in parts]
order = str(getattr(cfg, 'order', ''))
if order: lines = [lines[int(c)] for c in order.lstrip('x')]
if pre or post:
    parts.append((header('empty_kernel') + ['s_endpgm'], kd('empty_kernel', 8, 8), ''))
    el = '; @launch kernel=empty_kernel grid=(256,1,1) block=(256,1,1) lds=0'
    lines = [el] * pre + lines + [el] * post
NOTES = '''; adaLN + GQA attention + ReLU FFN block in one launch: 256 workgroups of 4 waves, one per CU (160 KiB LDS, 512 registers per wave).
; Kernarg: x, k, v, wq, wo, (B_x unused), w1, w2, c, w_mod, out, debug, ws at byte offsets 0, 8, ... 96.
; Generated text (own Python generator: MFMA stream scheduler with counted waits); all MFMAs are 16x16x32 bf16 with short accumulate chains.
; Workgroup = 64 query rows x the 4 heads of one kv group, wave = one head.
;  1. mod = silu(c) @ w_mod: 32 workgroups produce sa / 1+ca (self-validating words in 8 replicas), every workgroup 8 columns of the rest.
;  2. LN1 + modulation -> h (LDS), Q^T = wq^T h^T with wave-private LDS weight rings (LDS-DMA + transposing reads), log2(e)/sqrt(128) folded in.
;  3. attention on S^T = K Q^T - m - 102 (m = true row maximum of the first 64 keys, entered as the MFMA C operand), P = exp2(S^T),
;     O^T += V^T P^T, row sums by MFMA / vector adds. After the loop the row sums are checked; if one is not below 2^64 (or is NaN)
;     the workgroup takes the true maximum over all keys and runs the attention again (L_k1_slow).
;  4. output projection partial (own kv group) -> ws; hand-off by counters; sum of 8 partials + residual + LN2 (8 rows per workgroup);
;     hand-off; FFN1 tile 128 x 112; hand-off; FFN2 tile 64 x 64 (K split over the waves) + residual -> out.
; Hand-off words live in ws; workgroup 255 zeroes them at the start and says so in d_debug[0]. Every wait is bounded.
; Workgroup id % 8 is used only to pick work that shares cache lines (speed); correctness does not depend on placement.'''.split('\n')
if cfg.fused == 1: lines = lines + NOTES
out = lines + ['.amdgcn_target "amdgcn-amd-amdhsa--gfx950"', '.text']
import align
for p in parts: out += align.align(p[0]) if cfg.al else p[0]
out += ['.section .rodata,"a"']
for p in parts: out += ['.p2align 6', p[1]]
print('\n'.join(out))
```

```python
from gen_common import *
from engine import *

S_X, S_WQ, S_K, S_V, S_WO, S_WS, S_PART = 8, 12, 16, 20, 24, 28, 32
S_G, S_RB, S_W, S_WB = 36, 37, 38, 39
S_OFFK, S_OFFV, S_M0V, S_CNT, S_OFFW, S_FLAG = 40, 41, 43, 44, 45, 46
S_M0K = S_WB; S_PF = 47; S_ROT = 42
S_T = 48
V_R, V_G, V_PI = 1, 2, 3
V_Q = 16; V_S = [80, 112]; V_P = 144; V_NEGM = 208
V_KA = 224; V_VA = 228; V_DK = 236; V_DV = 240; V_DWO = 242; V_TO = [208, 212]; V_BO = 250
V_ACC = 80
V_DWQ = 16; V_TA = [24, 28]; V_BA = 40; V_MOD = 48; V_HO = 208
A_O = 0; A_FR = 128; A_BF = 128; A_L = 192; A_ONE = 208; A_AF = 212; A_DUMMY = 244
R0, R1, R2, R3, R4 = 0, 32768, 65536, 98304, 131072
LDS_V = R2
NT = 32
RING = [A_FR + 4 * i for i in range(16)]

def O(db, qb): return ar(A_O + (db * 4 + qb) * 4, 4)
def Q(qb, ks): return vr(V_Q + (qb * 4 + ks) * 4, 4)
def Lr(qb): return ar(A_L + qb * 4, 4)
def Sreg(buf, kb, qb): return V_S[buf] + (kb * 4 + qb) * 4
def Preg(h, qb): return V_P + (h % 4) * 16 + qb * 4
def ACC(nb, qb): return V_ACC + (nb * 4 + qb) * 4

class Cfg:
    lead = 20; spread = 0; xlead = 20; S0 = 48; XG = 6; nodma = 0; strip = ''; blead = 30; mw = 2; B = 102; dma_gap = 12; glead = 14; ggap = 1; bspread = 0; gspread = 0; stamps = 0; thr = 2.0 ** 64; prefetch = 0; cpf = 3; G = 4; pfq = 0; krot = 1; npre = 0
    h2sc = 0; k2nt = 1; k0pf = 0; lnev = 32; rot = 0; k3pre = 2; k4pre = 3; pfw = 9; chain = 1; fused = 0; diagpad = 0; chx = 1; alate = 1; xp = 0; specpos = 0; lnx = 1; pp = 0; fw = 0; dwl = 1; al = 1; pfo2 = 1; mlate = 1; spec = 0; npa = 4; osc = 0; pfs = 14; lv = 2; hwd = 0; pa = 'flex:1,order:1,dma_alone:1,dma_prev:1,wait_exp:1,salu_exp:1'; pg = 'order:1,dma_alone:1'; p1 = 'order:1,dma_alone:1'; p2 = 'order:1'; gmw = 2; xfirst = 1; tlb = 0; xdelay = 0; k0wait = 1; zearly = 1; w1early = 8; f1gap = 4; nprod = 96; wqlate = 0; f1pre = 8; f2pre = 2; rnt = 1; rotmask = 7; rotsh = 1; ost = 12

def groups_A(h, cfg, raw=False, gate=None):
    tile, hf = h // 2, h % 2
    gs = []
    for kb in range(2):
        off = (tile % 4) * 16384 + (32 * hf + 16 * kb) * 256
        us = [Unit(('K', h, kb, ks), (lambda r, ks=ks, off=off: [f'ds_read_b128 {ar(r, 4)}, {vr(V_KA + ks)} offset:{off}']), gate=gate, lead=cfg.lead + cfg.spread * (3 - ks)) for ks in range(4)]
        def mfs(regs, kb=kb):
            regs = regs or [0] * 4
            order = [(qb, ks if qb % 2 == 0 else 3 - ks, ks == 0, ks == 3) for qb in range(4) for ks in range(4)] if cfg.chain else \
                    [(qb, ks, ks == 0, ks == 3) for ks in range(4) for qb in range(4)]
            r = []
            for qb, ks, first, last in order:
                s = vr(Sreg(h % 2, kb, qb), 4)
                c = ('0' if raw else vr(V_NEGM + 4 * qb, 4)) if first else s
                r.append((f'{MF} {s}, {ar(regs[ks], 4)}, {Q(qb, ks)}, {c}', ('A', h, kb, qb, first, last)))
            return r
        gs.append(Group(mfs, us))
    return gs

def unit_V(h, db):
    off = ((h // 2) % 4) * 16384 + (32 * (h % 2)) * 256
    return Unit(('V', h, db), lambda r: [f'ds_read_b64_tr_b16 {ar(r, 2)}, {vr(V_VA + db)} offset:{off}',
                                          f'ds_read_b64_tr_b16 {ar(r + 2, 2)}, {vr(V_VA + db)} offset:{off + 4096}'])
def groups_C(hs, cfg):
    gs = []
    def order(qb):
        o = list(range(len(hs)))
        return o if qb % 2 == 0 else o[::-1]
    seq = [(qb, k) for qb in range(4) for k in order(qb)] if cfg.chain else [(qb, k) for k in range(len(hs)) for qb in range(4)]
    for db in range(8):
        def mfs(regs, db=db):
            regs = regs or [0] * 2
            return [(f'{MF} {O(db, qb)}, {ar(regs[k], 4)}, {vr(Preg(hs[k], qb), 4)}, {O(db, qb)}', ('C', hs[k], qb)) for qb, k in seq]
        us = [unit_V(h, db) for h in hs]
        for k, u in enumerate(us): u.lead = cfg.lead + cfg.spread * (len(hs) - 1 - k)
        gs.append(Group(mfs, us, wait_next=1 if db % 2 == 0 else 0))
    gs.append(Group(lambda regs: [(f'{MF} {Lr(qb)}, {ar(A_ONE, 4)}, {vr(Preg(hs[k], qb), 4)}, {Lr(qb)}', ('C', hs[k], qb)) for qb, k in seq if qb not in LVQ[cfg.lv]]))
    return gs

LVQ = [[], [2], [1, 3]]
V_LS = 8
def softmax_ops(h, start, base, cfg):
    exps = []; posts = []
    for kb in range(2):
        for qb in range(4):
            s = Sreg(h % 2, kb, qb)
            for i in range(4):
                exps.append((start + 2 * len(exps), f'v_exp_f32 {vr(s + i)}, {vr(s + i)}', (h, kb, qb)))
                if qb in LVQ[cfg.lv]:
                    l = V_LS + 2 * LVQ[cfg.lv].index(qb) + (i & 1)
                    posts.append((base + len(exps), f'v_add_f32 v{l}, v{l}, {vr(s + i)}', start + 2 * len(exps) + 1, (h, kb, qb, 'add')))
                if i & 1:
                    posts.append((base + len(exps), f'v_cvt_pk_bf16_f32 {vr(Preg(h, qb) + 2 * kb + i // 2)}, {vr(s + i - 1)}, {vr(s + i)}', start + 2 * len(exps) + 1, (h, kb, qb)))
    return exps, posts

def kv_dma(which, tile):
    slot = tile % 4
    m0, dv, srdr, off, nv = (S_M0K, V_DK, S_K, S_OFFK, 4) if which == 'K' else (S_M0V, V_DV, S_V, S_OFFV, 2)
    ops = [(f's_add_u32 m0, {sr(m0)}, {slot * 16384}', None)]
    for j in range(4):
        ops.append((f'buffer_load_dwordx4 {vr(dv + j % nv)}, {sr(srdr, 4)}, {sr(off)} offen offset:{j * 1024} lds', ('d' + which, tile)))
    ops.append((f's_add_u32 {sr(off)}, {sr(off)}, 16384', None))
    return ops

def w_dma(name, s, region, dv, srdr, soff, post):
    ops = []
    for j in range(8):
        if j % 4 == 0: ops.append((f's_add_u32 m0, {sr(S_WB)}, {region + (j // 4) * 16384}', None))
        ops.append((f'buffer_load_dwordx4 {vr(dv + j)}, {sr(srdr, 4)}, {sr(soff)} offen offset:{(j % 4) * 1024} lds', (name, s)))
    return ops + [(p, None) for p in post]

def attn_main(st, cfg, tail_extra, last_extra):
    NI = 136 - 2 * cfg.lv; HW = NI // 2 - 2 + cfg.hwd
    PP = 16 + 8 * cfg.lv
    def window(t):
        ops = []
        if cfg.cpf == 3 and t % 4 == 2 and t < 28: ops.append((f'global_load_dwordx4 {ar(A_DUMMY, 4)}, v[12:13], off', 'cpf'))
        if t + 3 < NT: ops += kv_dma('V', t + 3)
        if t + 4 < NT: ops += kv_dma('K', t + 4)
        return ops + tail_extra(t)
    def build():
        groups = []; gate = None; idx = 0; exps = []; posts = []
        e0, p0 = softmax_ops(0, -1000, 0, cfg); e1, p1 = softmax_ops(1, cfg.S0 + HW - NI, 32, cfg)
        exps += e0 + e1; posts += p0 + p1
        for t in range(NT):
            if t < NT - 1:
                gs = groups_A(2 * t + 2, cfg, gate=gate) + groups_A(2 * t + 3, cfg, gate=gate)
                cs = groups_C([2 * t, 2 * t + 1], cfg)
                x = cs[cfg.XG]
                x.barrier = dict(vm=[('dV', t + 1)] + ([('dK', t + 2)] if t + 2 < NT else []), units=[u for g in cs for u in g.units], then=window(t + 1))
                for g in cs[cfg.XG:8]:
                    for u in g.units: u.lead = max(u.lead, cfg.xlead + 8 * (cs.index(g) - cfg.XG) + (u.lead - cfg.lead) // 2)
                gs += cs; ngate = x
                for k in range(2):
                    ee, pp = softmax_ops(2 * t + 2 + k, idx + cfg.S0 + HW * k, 32 * (2 * t + 2 + k), cfg); exps += ee; posts += pp
            else:
                gs = groups_C([2 * t], cfg) + groups_C([2 * t + 1], cfg)
                for g in gs:
                    for u in g.units: u.gate = gate; u.lead = min(cfg.lead, 14)
                gs[9].on_start = lambda S: S['extra'].extend(last_extra)
            gs[0].mark = f'it{t}'
            groups += gs; gate = ngate; idx += NI
        return groups, exps, posts
    def check_fn():
        spend = {}; sready = {}; pdone = {};
        def check(kind, key, i):
            if kind == 'mfma' and key[0] == 'A':
                _, h, kb, qb, first, last = key
                if first: assert spend.get((h % 2, kb, qb), 0) == 0, ('S overwritten early', key, i)
                if last: spend[(h % 2, kb, qb)] = 6 if qb in LVQ[cfg.lv] else 2; sready[(h, kb, qb)] = i
            elif kind == 'mfma' and key[0] == 'C':
                if key[1] >= 2: assert pdone.get((key[1], key[2]), (0, 0))[0] == 4 and pdone[(key[1], key[2])][1] < i - 1, ('P not ready', key, i)
                check.lastC[(key[1] % 4, key[2])] = (key[1], i)
            elif kind == 'trans':
                if key[0] >= 2: assert i >= sready[key] + 8, ('S not ready', key, i)
            elif kind == 'post':
                h, kb, qb = key[:3]
                if h >= 2: spend[(h % 2, kb, qb)] -= 1
                if len(key) > 3: return
                c = pdone.get((h, qb), (0, 0)); pdone[(h, qb)] = (c[0] + 1, i)
                if h >= 4: assert check.cnt_c(h - 4, qb), ('P overwritten early', key, i)
        check.lastC = {}
        seen = {}
        def wrap(kind, key, i):
            if kind == 'mfma' and key[0] == 'C': seen[(key[1], key[2])] = seen.get((key[1], key[2]), 0) + 1
            check(kind, key, i)
        check.cnt_c = lambda h, qb: seen.get((h, qb), 0) == (8 if qb in LVQ[cfg.lv] else 9)
        return wrap
    def run(st, pre):
        groups, exps, posts = build()
        npre, lastoff, ntr0, npo0, primed, prev = pre
        def after_prime(st, trans, posts, S):
            emit_ops(st, S['pend'][:npre]); S['pend'] = S['pend'][npre:]
            k = 0
            for n in range(ntr0):
                st.e(trans.pop(0)[1])
                while k < npo0 and posts[0][0] <= n: st.e(posts.pop(0)[1]); k += 1
            st.e('s_nop 0')
            while k < npo0: st.e(posts.pop(0)[1]); k += 1
            S['ntr'] = ntr0
        S = dict(pend=window(0), lastdma=lastoff, after_prime=after_prime, prev=prev)
        nl = NI * (NT - 1)
        exps = [(min(a, nl), b, c) for a, b, c in exps]
        posts = [(a, b, min(c, nl), d) for a, b, c, d in posts]
        S = schedule(st, groups, RING, cfg.lead, exps, posts, side_gap=lambda i: cfg.dma_gap if i < NI * 28 else 6, state=S, primed=primed, check=check_fn(), dense_from=nl, max_wide=cfg.mw, P=Policy(cfg.pa))
        for x in S['extra']: st.e(x)
        st.mark('end')
        return S['log'], len(exps), len(posts)
    log, ne, npo = run(Stream(), (3, -1000, 32 + (NI - cfg.S0 - HW + 1) // 2, PP + (NI - cfg.S0 - HW + 1) // 4 - 1, 4, 'P'))
    def norm(t):
        c, ld, nt, npp, rq, pv = log[f'it{t}']
        return (c, ld, ne - nt - 64 * t, npo - npp - 2 * PP * t, rq - 32 * t, pv)
    n = norm(3)
    n = norm(4)
    assert all(norm(t) == n for t in range(4, NT - 4, 4)), [norm(t) for t in range(2, 12)]
    run(st, n)

def gemm(st, cfg, name, stages, ta, joff, vba, baddr, refill, extra, first_ops=(), late=(), keep=False):
    groups = []; bcur = None; nb_sets = 0; seen = set()
    for s, (kp, half) in enumerate(stages):
        vb, ib = ta(s)
        newb = bcur is None or bcur[0] != kp or stages[s - 1][1] == half
        if newb:
            base = A_BF + 32 * (nb_sets % 2); nb_sets += 1
            bu = [Unit((name + 'B', s, k, qb), (lambda r, k=k, qb=qb, kp=kp: [f'ds_read_b128 {ar(r, 4)}, {vr(vba)} offset:{baddr(2 * kp + k, qb)}']), reg=base + 16 * k + 4 * qb, lead=cfg.blead - cfg.bspread * (2 * qb + k))
                  for qb in range(4) for k in range(2)]
            bcur = (kp, bu)
        bu = bcur[1]
        for n4 in range(4):
            nb = 4 * half + n4
            au = [Unit((name + 'A', s, n4, k), (lambda r, k=k, n4=n4, vb=vb, ib=ib: [f'ds_read_b64_tr_b16 {ar(r, 2)}, {vr(vb + n4)} offset:{ib + 16384 * k}',
                                                                                 f'ds_read_b64_tr_b16 {ar(r + 2, 2)}, {vr(vb + n4)} offset:{ib + 16384 * k + joff}']),
                       vm=(name, s) if n4 == 0 and k == 0 and not (cfg.nodma and s > 2) else None, lead=cfg.glead + cfg.gspread * (1 - k)) for k in range(2)]
            first = nb not in seen; seen.add(nb)
            def mfs(regs, nb=nb, first=first, au=au, bu=bu):
                r = []
                seq = [(qb, k ^ (qb & 1), k == 0) for qb in range(4) for k in range(2)] if cfg.chain else [(qb, k, k == 0) for k in range(2) for qb in range(4)]
                for qb, k, f in seq:
                    c = vr(ACC(nb, qb), 4)
                    r.append((f'{MF} {c}, {ar(au[k].reg or 0, 4)}, {ar(bu[2 * qb + k].reg, 4)}, {0 if first and f else c}', None))
                return r
            if newb and n4 == 0: g = Group(mfs, bu + au)
            else: g = Group(mfs, au, hold=bu)
            def rel(S, s=s, n4=n4):
                if n4 == 3: S['pend'] += refill(s)
                for ls, ln, ops in late:
                    if (ls, ln) == (s, n4): S['extra'] += ops
            g.on_start = rel
            groups.append(g)
    S = dict(pend=list(first_ops), extra=list(extra))
    S = schedule(st, groups, [A_AF + 4 * i for i in range(8)], cfg.glead, side_gap=lambda i: cfg.ggap, state=S, primed=12, sort_reads=True, max_wide=cfg.gmw, P=Policy(cfg.pg))
    if not keep: emit_ops(st, S['pend'])
    for x in S['extra']:
        if isinstance(x, tuple): st.vm(*x)
        else: st.e(x)
    return S['pend']

def gen_k1(cfg, name='k1_attn_kernel'):
    F = cfg.fused == 1; FT = cfg.fused > 0
    if FT: import tail
    if F: name = 'adaLN_cond__gqa_block_cached__dense_activation_relu__prompt_kernel'
    st = Stream(); e = st.e
    cfg.sv = 253
    e('s_cmp_ge_u32 s2, 256'); e('s_cbranch_scc1 L_k1_end')
    e(f's_load_dwordx8 s[48:55], s[0:1], {KA_X}')
    e(f's_load_dwordx2 s[56:57], s[0:1], {KA_WO}'); e(f's_load_dwordx2 s[58:59], s[0:1], {KA_WS}'); e(f's_load_dwordx4 s[4:7], s[0:1], {KA_W1}')
    if cfg.cpf:
        e('v_lshlrev_b32 v6, 4, v0'); code_addr(e, 'a', 'L_k1_body', 'L_k1_end' if cfg.cpf == 1 else 'L_k1_post', 6, 4)
        st.vm(f'global_load_dwordx4 {ar(A_DUMMY, 4)}, v[4:5], off', 'cpf')
        e('L_k1_body:')
    if FT: e(f's_load_dwordx8 s[64:71], s[0:1], {KA_C}'); e('v_mov_b32 v15, v0'); e('s_and_b32 s84, s2, 7'); e('s_lshr_b32 s85, s2, 3')
    stamp(st, cfg, 0)
    if cfg.diagpad: e('s_memrealtime s[100:101]')
    lg = {1: 0, 2: 1, 4: 2, 8: 3}[cfg.G]
    e('s_and_b32 s60, s2, 7'); e('s_lshr_b32 s61, s2, 3')
    e(f's_lshl_b32 s{S_G}, s60, {lg}'); e(f's_and_b32 s{S_G}, s{S_G}, 7'); e(f's_and_b32 s62, s61, {cfg.G - 1}'); e(f's_add_u32 s{S_G}, s{S_G}, s62')
    e(f's_lshr_b32 s60, s60, {3 - lg}'); e(f's_lshl_b32 s60, s60, {5 - lg}'); e(f's_lshr_b32 s{S_PF}, s61, {lg}'); e(f's_add_u32 s{S_RB}, s60, s{S_PF}')
    e('v_lshrrev_b32 v4, 6, v0'); e('v_and_b32 v0, 63, v0'); e(f'v_readfirstlane_b32 s{S_W}, v4')
    e(f'v_and_b32 v{V_R}, 15, v0'); e(f'v_lshrrev_b32 v{V_G}, 4, v0')
    e(f'v_and_b32 v4, 1, v{V_G}'); e('v_lshlrev_b32 v4, 1, v4'); e(f'v_lshrrev_b32 v5, 1, v{V_G}'); e(f'v_or_b32 v{V_PI}, v4, v5')
    e(f's_lshl_b32 s{S_WB}, s{S_W}, 12')
    if not cfg.krot: e(f's_mov_b32 s{S_ROT}, 0')
    else: e(f's_and_b32 s{S_ROT}, s{S_PF}, {cfg.rotmask}'); e(f's_lshl_b32 s{S_ROT}, s{S_ROT}, {cfg.rotsh}')
    e('v_lshlrev_b32 v7, 4, v0'); e(f's_lshl_b32 s62, s{S_ROT}, 2')
    e(f's_lshl_b32 s60, s{S_RB}, 16'); e(f's_lshl_b32 s61, s{S_W}, 14'); e('s_add_u32 s60, s60, s61'); e(f's_add_u32 s61, s61, {R3}')
    def x_off():
        for i in range(16):
            e(f'v_xad_u32 v{V_ACC + i}, v0, {i}, s62'); e(f'v_and_b32 v{V_ACC + i}, 63, v{V_ACC + i}'); e(f'v_lshlrev_b32 v{V_ACC + i}, 4, v{V_ACC + i}')
    if not F: x_off()
    e('s_waitcnt lgkmcnt(0)')
    QREG = lambda s: [R0, R2, R1][(s - 13) % 3]
    MODL = QREG(2) + 16384
    if F:
        srd(e, S_WS, 58, 59, WS_PART); srd(e, 80, 70, 71, 256)
        tail.mod_loads(st, cfg); tail.clear_counters(st, cfg); x_off()
    srd(e, S_X, 48, 49, 2048 * 1024)
    def x_dma(st):
        st.e('s_mov_b32 s76, s77')
        for i in range(16):
            if i % 4 == 0:
                st.e(f's_add_u32 m0, s78, {1024 * i}')
                st.e('s_add_u32 s76, s76, 4096' if i else 's_nop 0')
            st.vm(f'buffer_load_dwordx4 v{V_ACC + i}, {sr(S_X, 4)}, s76 offen offset:{1024 * (i % 4)} lds', 'x')
    e('s_mov_b32 s77, s60'); e('s_mov_b32 s78, s61')
    def x_early():
        if F:
            e(f's_cmp_lt_u32 s87, {tail.NU}'); e('s_cbranch_scc1 L_f_xlate'); st.cond = 'xearly'
        x_dma(st)
        if F: st.cond = False; e('L_f_xlate:')
    if not (F and cfg.xdelay): x_early()
    if F and not cfg.mlate: tail.mod_urgent(st, cfg, MODL + 4096, x_dma)
    if not F:
        srd(e, S_WS, 58, 59, WS_PART if FT else 0x1000)
        e(f's_lshl_b32 s62, s{S_ROT}, 8'); e('v_add_u32 v6, s62, v7')
        for j in range(4):
            e(f's_add_u32 m0, s{S_WB}, {MODL + 1024 * j}'); e(f'v_add_u32 v5, {1024 * j}, v6'); e('v_and_b32 v5, 0xfff, v5')
            st.vm(f'buffer_load_dwordx4 v5, {sr(S_WS, 4)}, 0 offen lds', 'mod')
    e(f's_lshl_b32 s62, s{S_G}, 10'); e(f's_sub_u32 s63, {512 * 8192}, s62')
    srd(e, S_WQ, 54, 55, 's63', off='s62')
    e(f's_lshl_b32 s61, s{S_W}, 8'); e('v_lshrrev_b32 v8, 3, v0'); e(f'v_lshl_add_u32 v8, v8, 13, s61')
    e('v_and_b32 v5, 7, v0'); e(f'v_and_b32 v4, 1, v{V_G}'); e('v_lshlrev_b32 v4, 1, v4'); e('v_xor_b32 v4, v4, v5')
    e('v_lshl_add_u32 v9, v4, 4, v8'); e('v_xor_b32 v4, 4, v4'); e('v_lshl_add_u32 v10, v4, 4, v8')
    for j in range(8): e(f'v_add_u32 {vr(V_DWQ + j)}, {65536 * j - 1024 * (j % 4)}, v{9 + (j & 1)}')
    e(f's_lshl_b32 s{S_OFFW}, s{S_ROT}, 18')
    def wq_dma(s):
        if s % 2 == 0: return w_dma('wq', s, QREG(s), V_DWQ, S_WQ, S_OFFW, [f's_add_u32 s3, s{S_OFFW}, 128'])
        return w_dma('wq', s, QREG(s), V_DWQ, S_WQ, 3, [f's_add_u32 s{S_OFFW}, s{S_OFFW}, 524288', f's_and_b32 s{S_OFFW}, s{S_OFFW}, 0x3fffff'])
    def wo_dma(s):
        return w_dma('wo', s, OREG(s), V_DWO, S_WO, S_OFFW, [f's_add_u32 s{S_OFFW}, s{S_OFFW}, {65536 + (128 if s == 7 else 0)}', f's_and_b32 s{S_OFFW}, s{S_OFFW}, 0x7ffff'])
    OREG = lambda s: [R4, R0, R3][s % 3]
    wq_early = wq_dma(0) + wq_dma(1)
    wq2 = wq_dma(2)
    wq_early += wq2[:5]; wq_late = wq2[5:]
    emit_ops(st, wq_early[:cfg.npre]); wq_early = wq_early[cfg.npre:]
    ndum = [0]
    def pf(voff, srdr, soff, imm=0):
        r = A_DUMMY + 4 * (ndum[0] % 3); ndum[0] += 1
        return (f'buffer_load_dwordx4 {ar(r, 4)}, {voff}, {sr(srdr, 4)}, {soff} offen offset:{imm}', 'pf')
    pfo = []
    if cfg.pfq:
        pfo += [(f's_lshl_b32 s5, s{S_PF}, {17 + lg}', None), (f's_lshl_b32 s6, s{S_W}, {15 + lg}', None), ('s_add_u32 s5, s5, s6', None)]
        for i in range(4 * cfg.G): pfo += [pf('v7', S_WQ, 's5'), ('s_add_u32 s5, s5, 8192', None)]
    if cfg.prefetch:
        pfo += [(f's_lshl_b32 s5, s{S_PF}, {11 + lg}', None), (f's_lshl_b32 s6, s{S_W}, {9 + lg}', None), ('s_add_u32 s5, s5, s6', None)]
        for i in range(max(1, cfg.G // 2)): pfo += [pf('v7', S_K, 's5', 1024 * i), pf('v7', S_V, 's5', 1024 * i)]
    pfwo = [(f's_lshl_b32 s5, s{S_RB}, 14', None), (f's_add_u32 s5, s5, s{S_WB}', None)] + [pf('v252', S_WO, 's5', 1024 * i) for i in range(4)]
    if cfg.pfo2:
        pfwo = [(f's_lshl_b32 s5, s{S_ROT}, 15', None), ('s_add_u32 s5, s5, 128', None)] + [pf(f'v{V_DWO + j}', S_WO, 's5', 1024 * (j % 4)) for j in range(8)]
    e(f's_lshl_b32 s62, s{S_G}, 19')
    srd(e, S_K, 50, 51, 524288, off='s62'); srd(e, S_V, 52, 53, 524288, off='s62')
    srd(e, S_WO, 56, 57, 524288, off='s62')
    e(f's_lshl_b32 s62, s{S_G}, 21'); e(f's_add_u32 s62, s62, {WS_PART}')
    srd(e, S_PART, 58, 59, 1 << 21, off='s62')
    e('s_and_b32 s61, s2, 1'); e('s_mul_i32 s62, s61, 1792'); e(f's_sub_u32 s63, {512 * 3584}, s62'); srd(e, 92, 4, 5, 's63', off='s62')
    e('s_lshl_b32 s62, s61, 9'); e(f's_sub_u32 s63, {512 * 3584}, s62'); srd(e, 96, 6, 7, 's63', off='s62')
    e('s_lshr_b32 s4, s2, 3'); e('s_lshl_b32 s4, s4, 2'); e(f's_add_u32 s4, s4, s{S_W}'); e(f's_mul_i32 s7, s4, {14 * 1024}'); e(f's_mul_i32 s4, s4, {4 * 3584}')
    e('v_lshrrev_b32 v251, 5, v0'); e('v_lshlrev_b32 v251, 10, v251'); e('v_and_b32 v4, 31, v0'); e('v_lshl_add_u32 v251, v4, 4, v251')
    e('v_lshlrev_b32 v252, 4, v0')
    e(f's_mov_b32 s{S_OFFK}, 0'); e(f's_mov_b32 s{S_OFFV}, 0'); e(f's_add_u32 s{S_M0V}, s{S_WB}, {LDS_V}'); e(f's_mov_b32 s{S_FLAG}, 0')
    for ks in range(4):
        e(f'v_add_u32 v5, {4 * ks}, v{V_PI}'); e(f'v_xor_b32 v5, v5, v{V_R}'); e('v_lshlrev_b32 v5, 4, v5'); e(f'v_lshl_add_u32 {vr(V_KA + ks)}, v{V_R}, 8, v5')
    e(f'v_lshrrev_b32 v11, 2, v{V_R}'); e(f'v_and_b32 v12, 3, v{V_R}'); e('v_lshlrev_b32 v12, 3, v12')
    e(f'v_lshl_add_u32 v5, v{V_G}, 2, v11'); e('v_and_b32 v13, 7, v5'); e('v_lshl_add_u32 v14, v5, 8, v12'); e(f'v_add_u32 v14, {LDS_V}, v14')
    for db in range(8): e(f'v_xor_b32 v4, {db}, v13'); e(f'v_lshl_add_u32 {vr(V_VA + db)}, v4, 5, v14')
    e(f'v_lshl_add_u32 v9, v{V_G}, 8, s{S_WB}')
    for j in range(4): e(f'v_add_u32 v5, {4 * j}, v{V_G}'); e(f'v_xor_b32 v5, v5, v{V_R}'); e(f'v_lshl_add_u32 {vr(V_DK + j)}, v5, 4, v9')
    for j in range(2): e(f'v_add_u32 v5, {4 * j}, v{V_G}'); e('v_lshlrev_b32 v5, 1, v5'); e(f'v_xor_b32 v5, v5, v{V_R}'); e(f'v_lshl_add_u32 {vr(V_DV + j)}, v5, 4, v9')
    e(f's_lshl_b32 s61, s{S_W}, 8'); e('v_lshrrev_b32 v8, 3, v0'); e(f'v_lshl_add_u32 v8, v8, 10, s61')
    e('v_and_b32 v5, 7, v0'); e(f'v_lshlrev_b32 v4, 1, v{V_G}'); e('v_xor_b32 v4, v4, v5'); e(f'v_lshl_add_u32 {vr(V_DWO)}, v4, 4, v8')
    for j in range(1, 8): e(f'v_add_u32 {vr(V_DWO + j)}, {8192 * j - 1024 * (j % 4)}, {vr(V_DWO)}')
    e(f'v_and_b32 v4, 1, v{V_G}'); e(f'v_lshrrev_b32 v13, 3, v{V_R}'); e('v_lshl_add_u32 v13, v4, 1, v13')
    e(f'v_lshl_add_u32 v5, v{V_G}, 3, v11'); e('v_lshl_add_u32 v14, v5, 7, v12'); e(f'v_add_u32 v14, s{S_WB}, v14')
    for nb in range(4):
        e(f'v_xor_b32 v4, {nb}, v13'); e(f'v_lshl_add_u32 {vr(V_TA[0] + nb)}, v4, 5, v14'); e(f'v_add_u32 {vr(V_TA[1] + nb)}, {R2}, {vr(V_TA[0] + nb)}')
    e(f'v_add_u32 {vr(V_BA)}, {R3}, v7')
    e(f's_lshl_b32 s61, s{S_W}, 14'); e(f'v_add_u32 v8, s61, {vr(V_BA)}')
    e(f's_add_u32 s62, s{S_WB}, {MODL}' if not F else f's_mov_b32 s62, {MODL}'); e(f'v_lshl_add_u32 v9, v{V_G}, 5, s62')
    e(f's_add_u32 s61, s61, {R3}'); e(f'v_lshl_add_u32 v14, v{V_R}, 10, s61')
    for k in range(4): e(f'v_add_u32 v4, {4 * k}, v{V_G}'); e(f'v_xor_b32 v4, v4, v{V_R}'); e(f'v_lshl_add_u32 v{10 + k}, v4, 4, v14')
    zero = [f'v_accvgpr_write_b32 a{A_O + i}, 0' for i in range(128)] + [f'v_accvgpr_write_b32 a{A_L + i}, 0' for i in range(16)]
    zero += ['v_mov_b32 v5, 0x3f803f80'] + [f'v_accvgpr_write_b32 a{A_ONE + i}, v5' for i in range(4)]
    if F and cfg.xdelay == 1: x_early()
    if cfg.zearly:
        for z in zero: e(z)
    if F and cfg.xdelay == 2: x_early()
    if F and cfg.mlate: tail.mod_urgent(st, cfg, MODL + 4096, x_dma)
    main = st; st = Stream(); e = st.e
    if F: tail.x_wait(main, cfg)
    else: main.wait(vm=['x'])
    for ks in range(16): main.lds(f'ds_read_b128 {vr(V_ACC + 8 * ks + 4, 4)}, v{10 + ks % 4} offset:{(ks // 4) * 256}', ('x', ks))
    stamp(main, cfg, 1)
    if cfg.fused == 2 and cfg.stamps: main.e('v_writelane_b32 v253, s88, 2'); main.e('v_writelane_b32 v253, s88, 3'); main.e('v_writelane_b32 v254, s90, 2'); main.e('v_writelane_b32 v254, s90, 3')
    for ks in range(16):
        b = V_ACC + 8 * ks
        if ks % 2 == 0: st.wait(lds=[('x', ks + 1)])
        for j in range(4):
            e(f'v_lshlrev_b32 v{b + 2 * j}, 16, v{b + 4 + j}'); e(f'v_and_b32 v{b + 2 * j + 1}, 0xffff0000, v{b + 4 + j}')
        for j in range(4):
            if ks == 0: continue
            a = V_HO + 2 * j
            e(f'v_pk_add_f32 {vr(a, 2)}, {vr(b + 2 * j, 2)}, {vr(a, 2) if ks > 1 else vr(V_ACC + 2 * j, 2)}')
    a = V_HO
    e(f'v_pk_add_f32 {vr(a, 2)}, {vr(a, 2)}, {vr(a + 2, 2)}'); e(f'v_pk_add_f32 {vr(a + 4, 2)}, {vr(a + 4, 2)}, {vr(a + 6, 2)}')
    e(f'v_pk_add_f32 {vr(a, 2)}, {vr(a, 2)}, {vr(a + 4, 2)}'); e(f'v_add_f32 v4, v{a}, v{a + 1}')
    xlane_reduce(e, [4], [5], 'v_add_f32')
    e(f'v_mul_f32 v4, {f2h(-1.0 / 512)}, v4')
    if F and cfg.spec and cfg.specpos == 0: tail.mod_spec(st, cfg, S_ROT)
    for ks in range(16):
        b = V_ACC + 8 * ks
        for j in range(4): e(f'v_pk_add_f32 {vr(b + 2 * j, 2)}, {vr(b + 2 * j, 2)}, v[4:5] op_sel_hi:[1,0]')
        for j in range(4):
            if ks == 0: e(f'v_pk_mul_f32 {vr(a + 2 * j, 2)}, {vr(b + 2 * j, 2)}, {vr(b + 2 * j, 2)}')
            else: e(f'v_pk_fma_f32 {vr(a + 2 * j, 2)}, {vr(b + 2 * j, 2)}, {vr(b + 2 * j, 2)}, {vr(a + 2 * j, 2)}')
    def modrd(ks):
        m = V_MOD + 16 * (ks % 2)
        for j in range(4): st.lds(f'ds_read_b128 {vr(m + 4 * j, 4)}, v9 offset:{ks * 256 + (j // 2) * 128 + (j % 2) * 16}', ('mod', ks))
    if not F: st.wait(vm=['mod']); modrd(0); modrd(1)
    e(f'v_pk_add_f32 {vr(a, 2)}, {vr(a, 2)}, {vr(a + 2, 2)}'); e(f'v_pk_add_f32 {vr(a + 4, 2)}, {vr(a + 4, 2)}, {vr(a + 6, 2)}')
    e(f'v_pk_add_f32 {vr(a, 2)}, {vr(a, 2)}, {vr(a + 4, 2)}'); e(f'v_add_f32 v4, v{a}, v{a + 1}')
    xlane_reduce(e, [4], [5], 'v_add_f32')
    e(f'v_mov_b32 v5, {f2h(1e-5)}'); e(f'v_fmac_f32 v5, {f2h(1.0 / 512)}, v4'); e('v_rsq_f32 v4, v5'); e('s_nop 0')
    if F:
        if cfg.spec and cfg.specpos == 1: tail.mod_spec(st, cfg, S_ROT)
        for ks in range(16):
            b = V_ACC + 8 * ks
            for j in range(4): e(f'v_pk_mul_f32 {vr(b + 2 * j, 2)}, {vr(b + 2 * j, 2)}, v[4:5] op_sel_hi:[1,0]')
            if cfg.lnx:
                ho = V_HO + 4 * (ks % 2)
                for j in range(4): e(f'v_cvt_pk_bf16_f32 v{ho + j}, v{b + 2 * j}, v{b + 2 * j + 1}')
                st.lds(f'ds_write_b128 v8, {vr(ho, 4)} offset:{ks * 1024}', 'xw')
        if cfg.lnx:
            e(f'v_add_u32 v10, s{S_WB}, v{V_BA}'); e(f's_lshl_b32 s60, s{S_W}, 10'); e('v_add_u32 v9, s60, v9')
            if cfg.spec and cfg.specpos == 2: tail.mod_spec(st, cfg, S_ROT)
            st.wait(lds='all'); e('s_barrier')
            for n in range(16): st.lds(f'ds_read_b128 {vr(V_ACC + 8 * n + 4, 4)}, v10 offset:{(n % 4) * 16384 + (n // 4) * 1024}', ('xn', n))
            for n in range(16):
                b = V_ACC + 8 * n
                if n % 2 == 0: st.wait(lds=[('xn', n + 1)])
                if n == 4 and cfg.spec and cfg.specpos == 3: tail.mod_spec(st, cfg, S_ROT)
                for j in range(4): e(f'v_lshlrev_b32 v{b + 2 * j}, 16, v{b + 4 + j}'); e(f'v_and_b32 v{b + 2 * j + 1}, 0xffff0000, v{b + 4 + j}')
        left = interleave(main, st, (wq_early + pfo)[:len(wq_early + pfo) - cfg.wqlate], 0, cfg.lnev)
        st = main; e = st.e
        emit_ops(st, left)
        if cfg.wqlate: wq_late = (wq_early + pfo)[-cfg.wqlate:] + wq_late
        stamp(st, cfg, 9)
        tail.mod_fetch(st, cfg, MODL, S_ROT)
        stamp(st, cfg, 10)
        modrd(0); modrd(1)
        if cfg.tlb:
            e('v_lshlrev_b32 v4, 13, v0')
            for s_ in (S_K, S_V, S_WO): st.vm(f'buffer_load_dword a245, v4, {sr(s_, 4)}, 0 offen', 'tlb')
        emit_ops(st, tail.rest_loads())
    hw = []
    if F and cfg.lnx:
        for n in range(16):
            b = V_ACC + 8 * n; i = n // 4; m = V_MOD + 16 * (i % 2); ho = V_HO + 4 * (n % 2)
            if n % 4 == 0: st.wait(lds=[('mod', i)])
            for j in range(4): e(f'v_pk_fma_f32 {vr(b + 2 * j, 2)}, {vr(b + 2 * j, 2)}, {vr(m + 2 * j, 2)}, {vr(m + 8 + 2 * j, 2)}')
            if n % 4 == 3 and i + 2 < 4: modrd(i + 2)
            if hw: st.lds(hw.pop(), 'hw')
            for j in range(4): e(f'v_cvt_pk_bf16_f32 v{ho + j}, v{b + 2 * j}, v{b + 2 * j + 1}')
            hw.append(f'ds_write_b128 v10, {vr(ho, 4)} offset:{(n % 4) * 16384 + i * 1024}')
        st.lds(hw.pop(), 'hw')
    for ks in range(0 if F and cfg.lnx else 16):
        b = V_ACC + 8 * ks; m = V_MOD + 16 * (ks % 2); ho = V_HO + 4 * (ks % 2)
        if not F:
            for j in range(4): e(f'v_pk_mul_f32 {vr(b + 2 * j, 2)}, {vr(b + 2 * j, 2)}, v[4:5] op_sel_hi:[1,0]')
        st.wait(lds=[('mod', ks)])
        for j in range(4): e(f'v_pk_fma_f32 {vr(b + 2 * j, 2)}, {vr(b + 2 * j, 2)}, {vr(m + 2 * j, 2)}, {vr(m + 8 + 2 * j, 2)}')
        if ks + 2 < 16: modrd(ks + 2)
        if hw: st.lds(hw.pop(), 'hw')
        for j in range(4): e(f'v_cvt_pk_bf16_f32 v{ho + j}, v{b + 2 * j}, v{b + 2 * j + 1}')
        hw.append(f'ds_write_b128 v8, {vr(ho, 4)} offset:{ks * 1024}')
        if not cfg.dwl or ks == 15: st.lds(hw.pop(), 'hw')
    if not F:
        body = st; st = main; e = st.e
        left = interleave(st, body, wq_early + pfo, 0, cfg.lnev)
        emit_ops(st, left + wq_late); wq_late = []
    st.wait(lds='all'); e('s_barrier')
    stamp(st, cfg, 2)
    def q_conv(ks):
        o = []
        for qb in range(4):
            d = V_Q + (qb * 4 + ks) * 4; a0 = ACC(2 * ks, qb); a1 = ACC(2 * ks + 1, qb)
            o += [f'v_cvt_pk_bf16_f32 v{d}, v{a0}, v{a0 + 1}', f'v_cvt_pk_bf16_f32 v{d + 1}, v{a0 + 2}, v{a0 + 3}',
                  f'v_cvt_pk_bf16_f32 v{d + 2}, v{a1}, v{a1 + 1}', f'v_cvt_pk_bf16_f32 v{d + 3}, v{a1 + 2}, v{a1 + 3}']
        for qb in range(4):
            d = V_Q + (qb * 4 + ks) * 4
            o += [f'v_permlane16_swap_b32 v{d}, v{d + 2}', f'v_permlane16_swap_b32 v{d + 1}, v{d + 3}']
        return o
    def ta_q(s):
        r = QREG(s); return (V_TA[1], 0) if r == R2 else (V_TA[0], r)
    def refill_q(s):
        if s + 3 < 16: return wq_dma(s + 3)
        return {13: kv_dma('K', 0) + kv_dma('K', 1), 14: kv_dma('V', 0) + kv_dma('V', 1), 15: []}[s]
    gemm(st, cfg, 'wq', [(s // 2, s % 2) for s in range(16)], ta_q, 512, V_BA, lambda ks, qb: qb * 16384 + ks * 1024, refill_q, [] if cfg.zearly else zero, first_ops=wq_late, late=([(2, 3, tail.rest_math())] if F else []) + [(15, 0, q_conv(0) + q_conv(1))], keep=False)
    stamp(st, cfg, 3)
    e('s_nop 3')
    for x in q_conv(2) + q_conv(3): e(x)
    st.wait(vm=[('dK', 0)]); e('s_barrier')
    if F: tail.rest_share(st, R4)
    if cfg.cpf >= 2:
        e(f's_lshl_b32 s60, s{S_W}, 10'); e('v_lshl_add_u32 v6, v0, 4, s60'); code_addr(e, 'b', 'L_k1_post', 'L_k1_end', 6, 12)
    st.mark('attn_start')
    def max_ops(b, kb, first):
        o = []
        for qb in range(4):
            r = Sreg(b, kb, qb); m = 4 + qb
            o.append(f'v_max3_f32 v{m}, v{r}, v{r + 1}, ' + (f'v{r + 2}' if first else f'v{m}'))
        for qb in range(4):
            r = Sreg(b, kb, qb); m = 4 + qb
            o.append(f'v_max_f32 v{m}, v{m}, v{r + 3}' if first else f'v_max3_f32 v{m}, v{r + 2}, v{r + 3}, v{m}')
        return o
    def rawA(st, side, first):
        gs = groups_A(0, cfg, raw=True) + groups_A(1, cfg, raw=True)
        gs[2].on_start = lambda S: S['extra'].extend(max_ops(0, 0, first))
        gs[3].on_start = lambda S: S['extra'].extend(max_ops(0, 1, False) + max_ops(1, 0, False))
        S = schedule(st, gs, RING, 16, primed=8, side_gap=lambda i: 3, state=dict(pend=list(side)), P=Policy('order:1,dma_alone:1'))
        assert not S['pend'] and not S['extra']
    def make_negm(st):
        e = st.e
        xlane_reduce(e, [4, 5, 6, 7], [8, 9, 10, 11], 'v_max_f32')
        for qb in range(4):
            for i in range(4): e(f'v_sub_f32 {vr(V_NEGM + 4 * qb + i)}, {f2h(-cfg.B)}, v{4 + qb}')
    rawA(st, kv_dma('K', 2) + kv_dma('K', 3) + kv_dma('V', 2), True)
    e(f's_cmp_lg_u32 s{S_FLAG}, 0'); e('s_cbranch_scc1 L_k1_havemax0')
    e('s_nop 2')
    for x in max_ops(1, 1, False): e(x)
    make_negm(st)
    e('L_k1_havemax0:'); e('s_nop 5')
    e('L_k1_havemax:')
    for b in range(2):
        for kb in range(2):
            for qb in range(4):
                s = Sreg(b, kb, qb)
                for i in (0, 2): e(f'v_pk_add_f32 {vr(s + i, 2)}, {vr(s + i, 2)}, {vr(V_NEGM + 4 * qb, 2)}')
    for i in range(2 * cfg.lv): e(f'v_mov_b32 v{V_LS + i}, 0')
    st.wait(lds='all', vm=[('dK', 1), ('dV', 0)]); e('s_barrier')
    if F:
        e(f's_cmp_lg_u32 s{S_FLAG}, 0'); e('s_cbranch_scc1 L_f_norest'); tail.rest_store(st, R4)
        if cfg.tlb:
            e('v_lshlrev_b32 v4, 18, v0'); e('v_lshlrev_b32 v5, 15, v0')
            srd(e, 72, 58, 59, 8 << 21, off=WS_PART); srd(e, 64, 68, 69, 2 << 20)
            for v_, s_ in ((4, S_WS), (4, 72), (5, 64), (5, 92), (5, 96)): e(f'buffer_load_dword a245, v{v_}, {sr(s_, 4)}, 0 offen')
    pfw1 = []; pfw2 = []
    for r in range(4):
        pfw1 += [(f's_add_u32 s5, s4, {r * 3584}', None), pf('v252', 92, 's5'), pf('v252', 92, 's5', 768)]
    for r in range(7):
        pfw2 += [(f's_add_u32 s5, s7, {r * 2048}', None), pf('v251', 96, 's5')]
    pfe1, pfe2 = pfw1, pfw2
    if cfg.pfw & 8:
        pfe1 = [('s_lshr_b32 s6, s84, 1', None), ('s_mul_i32 s5, s6, 3584', None), ('s_add_u32 s5, s5, s4', None), pf('v252', 92, 's5'), pf('v252', 92, 's5', 768)]
        pfe2 = [('s_lshl_b32 s5, s6, 11', None), ('s_add_u32 s5, s5, s7', None), pf('v251', 96, 's5'), ('s_add_u32 s5, s5, 8192', None), pf('v251', 96, 's5')]
    def tail_extra(t):
        cp = [(f'global_load_dwordx4 {ar(A_DUMMY, 4)}, v[12:13], off', 'cpf')]
        if cfg.cpf == 3 and t == 31: return cp
        if t == 28: return (cp if cfg.cpf == 2 else []) + pfwo + (pfe1[:6] if cfg.pfw else [])
        if t == 29: return [(f's_lshl_b32 s{S_OFFW}, s{S_ROT}, 15', None)] + wo_dma(0) + (pfe2 if cfg.pfw else [])
        if t == 30: return wo_dma(1) + (pfe1[6:] if cfg.pfw else [])
        return []
    z = Stream(); ze = z.e
    ze(f'v_lshrrev_b32 v5, 2, v{V_R}'); ze(f'v_lshl_add_u32 v5, v{V_G}, 2, v5'); ze('v_bfe_u32 v6, v5, 1, 2'); ze(f'v_and_b32 v7, 3, v{V_R}'); ze('v_lshlrev_b32 v7, 3, v7')
    ze('v_lshl_add_u32 v7, v5, 7, v7'); ze(f'v_add_u32 v7, s{S_WB}, v7')
    for nb in range(4): ze(f'v_xor_b32 v5, {nb}, v6'); ze(f'v_lshl_add_u32 {vr(V_TO[0] + nb)}, v5, 5, v7'); ze(f'v_add_u32 {vr(V_TO[1] + nb)}, {R3}, {vr(V_TO[0] + nb)}')
    ze('v_and_b32 v15, 3, v0'); ze('v_lshlrev_b32 v15, 12, v15'); ze(f's_lshl_b32 s62, s{S_W}, 2'); ze(f's_add_u32 s62, s62, {R3}'); ze('v_add_u32 v15, s62, v15')
    ze('v_lshlrev_b32 v14, 4, v0'); ze(f's_lshl_b32 s61, s{S_W}, 2'); ze(f's_sub_u32 s61, s61, s{S_ROT}')
    for m in range(4):
        ze(f's_add_u32 s62, s61, {m}'); ze('s_and_b32 s62, s62, 15'); ze('s_lshl_b32 s62, s62, 12'); ze(f's_add_u32 s62, s62, {R1}'); ze(f'v_add_u32 v{V_P + m}, s62, v14')
    attn_main(st, cfg, tail_extra, z.resolve())
    stamp(st, cfg, 5)
    e('s_setreg_imm32_b32 hwreg(HW_REG_MODE, 4, 2), 3'); e('s_nop 4')
    if cfg.lv:
        lr = [V_S[0] + k for k in range(cfg.lv)]
        for k in range(cfg.lv): e(f'v_add_f32 v{lr[k]}, v{V_LS + 2 * k}, v{V_LS + 2 * k + 1}')
        xlane_reduce(e, lr, [V_S[0] + 4 + k for k in range(cfg.lv)], 'v_add_f32')
    for qb in range(4): e(f'v_accvgpr_read_b32 v{4 + qb}, a{A_L + 4 * qb}' if qb not in LVQ[cfg.lv] else f'v_mov_b32 v{4 + qb}, v{V_S[0] + LVQ[cfg.lv].index(qb)}')
    e(f'v_mov_b32 v{V_S[0] + 8}, {f2h(cfg.thr)}')
    e('v_max3_f32 v8, v4, v5, v6'); e('v_max_f32 v8, v8, v7')
    for qb in range(4): e(f'v_add_f32 v{9}, v{4 + qb}, {"v9" if qb else "0"}')
    e(f'v_cmp_nlt_f32 vcc, v8, v{V_S[0] + 8}'); e('v_cmp_u_f32 s[62:63], v9, v9')
    for qb in range(4): e(f'v_rcp_f32 v{4 + qb}, v{4 + qb}')
    e('s_or_b64 vcc, vcc, s[62:63]'); e('s_cmp_lg_u64 vcc, 0'); e('s_cselect_b32 s61, 1, 0')
    e('v_mov_b32 v11, s61'); st.lds('ds_write_b32 v15, v11', 'flagw')
    k = 0; dw = []
    for qb in range(4):
        for m in range(4):
            t = V_S[0] + 16 * (k % 4); k += 1
            for hb in range(2):
                for i in range(4): e(f'v_accvgpr_read_b32 v{t + 4 * hb + i}, a{A_O + ((2 * m + hb) * 4 + qb) * 4 + i}')
                if hb == 0 and dw: st.lds(dw.pop(), 'ow')
            sel = f'v[{4 + qb}:{5 + qb}] op_sel_hi:[1,0]' if qb % 2 == 0 else f'v[{3 + qb}:{4 + qb}] op_sel:[0,1] op_sel_hi:[1,1]'
            for i in range(4): e(f'v_pk_mul_f32 {vr(t + 2 * i, 2)}, {vr(t + 2 * i, 2)}, {sel}')
            for i in range(4): e(f'v_cvt_pk_bf16_f32 v{t + 8 + i}, v{t + 2 * i}, v{t + 2 * i + 1}')
            dw.append(f'ds_write_b128 v{V_P + m}, {vr(t + 8, 4)} offset:{qb * 1024}')
            if not cfg.dwl: st.lds(dw.pop(), 'ow')
    if dw: st.lds(dw.pop(), 'ow')
    e(f'v_add_u32 v{V_BO}, {R1}, v14'); e(f's_add_u32 s61, s{S_WB}, {R3}'); e('v_mov_b32 v10, s61')
    st.wait(lds='all'); e('s_barrier')
    st.lds('ds_read_b128 v[4:7], v10', 'flagr'); st.wait(lds=['flagr'])
    e('v_or3_b32 v4, v4, v5, v6'); e('v_or_b32 v4, v4, v7'); e('s_nop 0'); e('v_readfirstlane_b32 s61, v4'); e('s_nop 3')
    e(f's_andn2_b32 s61, s61, s{S_FLAG}'); e('s_cbranch_scc1 L_k1_slow')
    if F:
        e(f's_mov_b32 s61, {tail.CNT_MB}'); tail.signal(st, S_WS, 's61', 'L_f_sigb')
    stamp(st, cfg, 6)
    def ta_o(s):
        r = OREG(s); return (V_TO[0], 0) if r == R0 else (V_TO[1], r - R3)
    def refill_o(s): return wo_dma(s + 3) if s + 3 < 16 else []
    sadr = [f'v_lshrrev_b32 v4, 1, v{V_R}', 'v_lshlrev_b32 v4, 11, v4', f'v_lshl_add_u32 v4, v{V_PI}, 5, v4', f'v_and_b32 v5, 1, v{V_R}', 'v_lshl_add_u32 v4, v5, 4, v4',
            f's_lshl_b32 s48, s{S_RB}, 16', f's_lshl_b32 s62, s{S_W}, 9', 's_add_u32 s48, s48, s62'] + [f's_add_u32 s{48 + qb}, s48, {16384 * qb}' for qb in range(1, 4)]
    mbchk = []
    if F:
        sadr += [f's_min_u32 s52, s{S_W}, 1', 's_mul_i32 s52, s52, 0x7fff0000', f's_add_u32 s52, s52, {tail.CNT_MB}', 'v_mov_b32 v6, 0']
        mbchk = [(f'buffer_load_dword v255, v6, {sr(S_WS, 4)}, s52 offen sc1', 'mb')]
    def out_half(h):
        ops = []
        for qb in range(4):
            for m in (2 * h, 2 * h + 1):
                d = V_Q + (qb * 4 + m) * 4; a0 = ACC(2 * m, qb); a1 = ACC(2 * m + 1, qb)
                ops += [f'v_cvt_pk_bf16_f32 v{d}, v{a0}, v{a0 + 1}', f'v_cvt_pk_bf16_f32 v{d + 1}, v{a0 + 2}, v{a0 + 3}',
                        f'v_cvt_pk_bf16_f32 v{d + 2}, v{a1}, v{a1 + 1}', f'v_cvt_pk_bf16_f32 v{d + 3}, v{a1 + 2}, v{a1 + 3}']
            for m in (2 * h, 2 * h + 1):
                d = V_Q + (qb * 4 + m) * 4
                ops += [f'v_permlane16_swap_b32 v{d}, v{d + 2}', f'v_permlane16_swap_b32 v{d + 1}, v{d + 3}']
            for m in (2 * h, 2 * h + 1):
                ops.append((f'buffer_store_dwordx4 {vr(V_Q + (qb * 4 + m) * 4, 4)}, v4, {sr(S_PART, 4)}, s{48 + qb} offen offset:{m * 128}{SC}', 'st'))
        return ops
    gemm(st, cfg, 'wo', [(s % 8, s // 8) for s in range(16)], ta_o, 2048, V_BO, lambda ks, qb: ks * 4096 + qb * 1024, refill_o, sadr,
         first_ops=wo_dma(2), late=[(cfg.ost, 3, mbchk + out_half(0))] + ([(cfg.pfs, 3, [x if x[1] else x[0] for x in (pfw1 if cfg.pfw & 2 else []) + (pfw2 if cfg.pfw & 4 else [])])] if cfg.pfw > 1 else []))
    stamp(st, cfg, 7)
    e('s_nop 7')
    for x in out_half(1):
        if isinstance(x, tuple): st.vm(*x)
        else: e(x)
    if FT: tail.tail(st, cfg)
    else: stamp_out(st, cfg, 1, 8, 58, S_W)
    if cfg.diagpad:
        e('s_waitcnt vmcnt(0)'); e('L_pad:'); e('s_memrealtime s[88:89]'); e('s_waitcnt lgkmcnt(0)'); e('s_sub_u32 s88, s88, s100'); e(f's_cmp_lt_u32 s88, {cfg.diagpad * 100}'); e('s_cbranch_scc1 L_pad')
    e('s_endpgm')
    segs, order = split_marks(st.resolve())
    NL = 28
    for t in range(4, NL):
        if segs[f'it{t}'] != segs[f'it{t - 4}']:
            import difflib, sys
            sys.stderr.write('\n'.join(list(difflib.unified_diff(segs[f'it{t - 4}'], segs[f'it{t}'], lineterm='', n=2))[:60]) + '\n')
            raise SystemExit(f'iteration {t} differs')
    if cfg.strip:
        import re
        pat = re.compile(cfg.strip.replace('+', '|'))
        for t in range(NL): segs[f'it{t}'] = [x for x in segs[f'it{t}'] if not pat.match(x)]
    out = header(name) + segs['_start'] + ['L_k1_attn_start:'] + segs['attn_start']
    tmp = Stream(); stamp(tmp, cfg, 4); out += tmp.resolve()
    out += [f's_mov_b32 s{S_CNT}, {NL // 4}', '.p2align 6', 'L_k1_loop:']
    for t in range(4): out += segs[f'it{t}']
    out += [f's_sub_u32 s{S_CNT}, s{S_CNT}, 1', f's_cmp_lg_u32 s{S_CNT}, 0', 's_cbranch_scc1 L_k1_loop']
    for t in range(NL, NT): out += (['L_k1_post:'] if t == NL + (2 if cfg.cpf != 3 else 0) else []) + segs[f'it{t}']
    out += segs['end']
    st = Stream(); e = st.e
    e('L_k1_slow:')
    e(f's_mov_b32 s{S_FLAG}, 1'); e('s_setreg_imm32_b32 hwreg(HW_REG_MODE, 4, 2), 0')
    e('s_waitcnt vmcnt(0) lgkmcnt(0)'); e('s_barrier')
    e(f's_mov_b32 s{S_OFFK}, 0'); e(f's_mov_b32 s{S_CNT}, {NT}')
    for qb in range(4): e(f'v_mov_b32 v{4 + qb}, 0xff800000')
    e('L_k1_slow_loop:')
    emit_ops(st, kv_dma('K', 0)); st.wait(vm='all'); e('s_barrier')
    rawA(st, [], False)
    e('s_nop 7')
    for x in max_ops(1, 1, False): e(x)
    e('s_barrier')
    e(f's_sub_u32 s{S_CNT}, s{S_CNT}, 1'); e(f's_cmp_lg_u32 s{S_CNT}, 0'); e('s_cbranch_scc1 L_k1_slow_loop')
    make_negm(st)
    for z in zero: e(z)
    e(f's_mov_b32 s{S_OFFK}, 0'); e(f's_mov_b32 s{S_OFFV}, 0')
    for w_, t_ in [('K', 0), ('K', 1), ('V', 0), ('V', 1)]: emit_ops(st, kv_dma(w_, t_))
    st.wait(vm='all'); e('s_barrier'); e('s_branch L_k1_attn_start')
    out += st.resolve() + ['L_k1_end:', 's_endpgm']
    return out, kd(name, 512, 256, 102), f'; @launch {"" if F else "kernel=" + name + " "}grid=(256,1,1) block=(256,1,1) lds=163840'
```

```python
from gen_common import *
from engine import *

S_X, S_WQ, S_K, S_V, S_WO, S_WS, S_PART = 8, 12, 16, 20, 24, 28, 32
S_G, S_RB, S_W, S_WB = 36, 37, 38, 39
S_OFFK, S_OFFV, S_M0V, S_CNT, S_OFFW, S_FLAG = 40, 41, 43, 44, 45, 46
S_M0K = S_WB; S_PF = 47; S_ROT = 42
S_T = 48
V_R, V_G, V_PI = 1, 2, 3
V_Q = 16; V_S = [80, 112]; V_P = 144; V_NEGM = 208
V_KA = 224; V_VA = 228; V_DK = 236; V_DV = 240; V_DWO = 242; V_TO = [208, 212]; V_BO = 250
V_ACC = 80
V_DWQ = 16; V_TA = [24, 28]; V_BA = 40; V_MOD = 48; V_HO = 208
A_O = 0; A_FR = 128; A_BF = 128; A_L = 192; A_ONE = 208; A_AF = 212; A_DUMMY = 244
R0, R1, R2, R3, R4 = 0, 32768, 65536, 98304, 131072
LDS_V = R2
NT = 32
RING = [A_FR + 4 * i for i in range(16)]

def O(db, qb): return ar(A_O + (db * 4 + qb) * 4, 4)
def Q(qb, ks): return vr(V_Q + (qb * 4 + ks) * 4, 4)
def Lr(qb): return ar(A_L + qb * 4, 4)
def Sreg(buf, kb, qb): return V_S[buf] + (kb * 4 + qb) * 4
def Preg(h, qb): return V_P + (h % 4) * 16 + qb * 4
def ACC(nb, qb): return V_ACC + (nb * 4 + qb) * 4

class Cfg:
    lead = 20; spread = 0; xlead = 20; S0 = 48; XG = 6; nodma = 0; strip = ''; blead = 30; mw = 2; B = 102; dma_gap = 12; glead = 14; ggap = 1; bspread = 0; gspread = 0; stamps = 0; thr = 2.0 ** 64; prefetch = 0; cpf = 3; G = 4; pfq = 0; krot = 1; npre = 0
    h2sc = 0; k2nt = 1; k0pf = 0; lnev = 32; rot = 0; k3pre = 2; k4pre = 3; pfw = 9; chain = 1; fused = 0; par = 'px'; flpos = 0; lst = 0; f2x = 0; ntm = 0; ovl = 0; diagpad = 0; chx = 1; alate = 1; xp = 0; specpos = 0; lnx = 1; pp = 0; fw = 0; dwl = 1; al = 1; pfo2 = 1; mlate = 1; spec = 0; npa = 4; osc = 0; pfs = 14; lv = 2; hwd = 0; pa = 'flex:1,order:1,dma_alone:1,dma_prev:1,wait_exp:1,salu_exp:1'; pg = 'order:1,dma_alone:1'; p1 = 'order:1,dma_alone:1'; p2 = 'order:1'; gmw = 2; xfirst = 1; tlb = 0; xdelay = 0; k0wait = 1; zearly = 1; w1early = 8; f1gap = 4; nprod = 96; wqlate = 0; f1pre = 8; f2pre = 2; rnt = 1; rotmask = 7; rotsh = 1; ost = 12

def groups_A(h, cfg, raw=False, gate=None):
    tile, hf = h // 2, h % 2
    gs = []
    for kb in range(2):
        off = (tile % 4) * 16384 + (32 * hf + 16 * kb) * 256
        us = [Unit(('K', h, kb, ks), (lambda r, ks=ks, off=off: [f'ds_read_b128 {ar(r, 4)}, {vr(V_KA + ks)} offset:{off}']), gate=gate, lead=cfg.lead + cfg.spread * (3 - ks)) for ks in range(4)]
        def mfs(regs, kb=kb):
            regs = regs or [0] * 4
            order = [(qb, ks if qb % 2 == 0 else 3 - ks, ks == 0, ks == 3) for qb in range(4) for ks in range(4)] if cfg.chain else \
                    [(qb, ks, ks == 0, ks == 3) for ks in range(4) for qb in range(4)]
            r = []
            for qb, ks, first, last in order:
                s = vr(Sreg(h % 2, kb, qb), 4)
                c = ('0' if raw else vr(V_NEGM + 4 * qb, 4)) if first else s
                r.append((f'{MF} {s}, {ar(regs[ks], 4)}, {Q(qb, ks)}, {c}', ('A', h, kb, qb, first, last)))
            return r
        gs.append(Group(mfs, us))
    return gs

def unit_V(h, db):
    off = ((h // 2) % 4) * 16384 + (32 * (h % 2)) * 256
    return Unit(('V', h, db), lambda r: [f'ds_read_b64_tr_b16 {ar(r, 2)}, {vr(V_VA + db)} offset:{off}',
                                          f'ds_read_b64_tr_b16 {ar(r + 2, 2)}, {vr(V_VA + db)} offset:{off + 4096}'])
def groups_C(hs, cfg):
    gs = []
    def order(qb):
        o = list(range(len(hs)))
        return o if qb % 2 == 0 else o[::-1]
    seq = [(qb, k) for qb in range(4) for k in order(qb)] if cfg.chain else [(qb, k) for k in range(len(hs)) for qb in range(4)]
    for db in range(8):
        def mfs(regs, db=db):
            regs = regs or [0] * 2
            return [(f'{MF} {O(db, qb)}, {ar(regs[k], 4)}, {vr(Preg(hs[k], qb), 4)}, {O(db, qb)}', ('C', hs[k], qb)) for qb, k in seq]
        us = [unit_V(h, db) for h in hs]
        for k, u in enumerate(us): u.lead = cfg.lead + cfg.spread * (len(hs) - 1 - k)
        gs.append(Group(mfs, us, wait_next=1 if db % 2 == 0 else 0))
    gs.append(Group(lambda regs: [(f'{MF} {Lr(qb)}, {ar(A_ONE, 4)}, {vr(Preg(hs[k], qb), 4)}, {Lr(qb)}', ('C', hs[k], qb)) for qb, k in seq if qb not in LVQ[cfg.lv]]))
    return gs

LVQ = [[], [2], [1, 3]]
V_LS = 8
def softmax_ops(h, start, base, cfg):
    exps = []; posts = []
    for kb in range(2):
        for qb in range(4):
            s = Sreg(h % 2, kb, qb)
            for i in range(4):
                exps.append((start + 2 * len(exps), f'v_exp_f32 {vr(s + i)}, {vr(s + i)}', (h, kb, qb)))
                if qb in LVQ[cfg.lv]:
                    l = V_LS + 2 * LVQ[cfg.lv].index(qb) + (i & 1)
                    posts.append((base + len(exps), f'v_add_f32 v{l}, v{l}, {vr(s + i)}', start + 2 * len(exps) + 1, (h, kb, qb, 'add')))
                if i & 1:
                    posts.append((base + len(exps), f'v_cvt_pk_bf16_f32 {vr(Preg(h, qb) + 2 * kb + i // 2)}, {vr(s + i - 1)}, {vr(s + i)}', start + 2 * len(exps) + 1, (h, kb, qb)))
    return exps, posts

NTF = {}
def kv_dma(which, tile):
    slot = tile % 4
    m0, dv, srdr, off, nv = (S_M0K, V_DK, S_K, S_OFFK, 4) if which == 'K' else (S_M0V, V_DV, S_V, S_OFFV, 2)
    ops = [(f's_add_u32 m0, {sr(m0)}, {slot * 16384}', None)]
    for j in range(4):
        ops.append((f'buffer_load_dwordx4 {vr(dv + j % nv)}, {sr(srdr, 4)}, {sr(off)} offen offset:{j * 1024}{NTF.get("kv", "")} lds', ('d' + which, tile)))
    ops.append((f's_add_u32 {sr(off)}, {sr(off)}, 16384', None))
    return ops

def w_dma(name, s, region, dv, srdr, soff, post):
    ops = []
    for j in range(8):
        if j % 4 == 0: ops.append((f's_add_u32 m0, {sr(S_WB)}, {region + (j // 4) * 16384}', None))
        ops.append((f'buffer_load_dwordx4 {vr(dv + j)}, {sr(srdr, 4)}, {sr(soff)} offen offset:{(j % 4) * 1024}{NTF.get(name, "")} lds', (name, s)))
    return ops + [(p, None) for p in post]

def attn_main(st, cfg, tail_extra, last_extra):
    NI = 136 - 2 * cfg.lv; HW = NI // 2 - 2 + cfg.hwd
    PP = 16 + 8 * cfg.lv
    def window(t):
        ops = []
        if cfg.cpf == 3 and t % 4 == 2 and t < 28: ops.append((f'global_load_dwordx4 {ar(A_DUMMY, 4)}, v[12:13], off', 'cpf'))
        if t + 3 < NT: ops += kv_dma('V', t + 3)
        if t + 4 < NT: ops += kv_dma('K', t + 4)
        return ops + tail_extra(t)
    def build():
        groups = []; gate = None; idx = 0; exps = []; posts = []
        e0, p0 = softmax_ops(0, -1000, 0, cfg); e1, p1 = softmax_ops(1, cfg.S0 + HW - NI, 32, cfg)
        exps += e0 + e1; posts += p0 + p1
        for t in range(NT):
            if t < NT - 1:
                gs = groups_A(2 * t + 2, cfg, gate=gate) + groups_A(2 * t + 3, cfg, gate=gate)
                cs = groups_C([2 * t, 2 * t + 1], cfg)
                x = cs[cfg.XG]
                x.barrier = dict(vm=[('dV', t + 1)] + ([('dK', t + 2)] if t + 2 < NT else []), units=[u for g in cs for u in g.units], then=window(t + 1))
                for g in cs[cfg.XG:8]:
                    for u in g.units: u.lead = max(u.lead, cfg.xlead + 8 * (cs.index(g) - cfg.XG) + (u.lead - cfg.lead) // 2)
                gs += cs; ngate = x
                for k in range(2):
                    ee, pp = softmax_ops(2 * t + 2 + k, idx + cfg.S0 + HW * k, 32 * (2 * t + 2 + k), cfg); exps += ee; posts += pp
            else:
                gs = groups_C([2 * t], cfg) + groups_C([2 * t + 1], cfg)
                for g in gs:
                    for u in g.units: u.gate = gate; u.lead = min(cfg.lead, 14)
                gs[9].on_start = lambda S: S['extra'].extend(last_extra)
            gs[0].mark = f'it{t}'
            groups += gs; gate = ngate; idx += NI
        return groups, exps, posts
    def check_fn():
        spend = {}; sready = {}; pdone = {};
        def check(kind, key, i):
            if kind == 'mfma' and key[0] == 'A':
                _, h, kb, qb, first, last = key
                if first: assert spend.get((h % 2, kb, qb), 0) == 0, ('S overwritten early', key, i)
                if last: spend[(h % 2, kb, qb)] = 6 if qb in LVQ[cfg.lv] else 2; sready[(h, kb, qb)] = i
            elif kind == 'mfma' and key[0] == 'C':
                if key[1] >= 2: assert pdone.get((key[1], key[2]), (0, 0))[0] == 4 and pdone[(key[1], key[2])][1] < i - 1, ('P not ready', key, i)
                check.lastC[(key[1] % 4, key[2])] = (key[1], i)
            elif kind == 'trans':
                if key[0] >= 2: assert i >= sready[key] + 8, ('S not ready', key, i)
            elif kind == 'post':
                h, kb, qb = key[:3]
                if h >= 2: spend[(h % 2, kb, qb)] -= 1
                if len(key) > 3: return
                c = pdone.get((h, qb), (0, 0)); pdone[(h, qb)] = (c[0] + 1, i)
                if h >= 4: assert check.cnt_c(h - 4, qb), ('P overwritten early', key, i)
        check.lastC = {}
        seen = {}
        def wrap(kind, key, i):
            if kind == 'mfma' and key[0] == 'C': seen[(key[1], key[2])] = seen.get((key[1], key[2]), 0) + 1
            check(kind, key, i)
        check.cnt_c = lambda h, qb: seen.get((h, qb), 0) == (8 if qb in LVQ[cfg.lv] else 9)
        return wrap
    def run(st, pre):
        groups, exps, posts = build()
        npre, lastoff, ntr0, npo0, primed, prev = pre
        def after_prime(st, trans, posts, S):
            emit_ops(st, S['pend'][:npre]); S['pend'] = S['pend'][npre:]
            k = 0
            for n in range(ntr0):
                st.e(trans.pop(0)[1])
                while k < npo0 and posts[0][0] <= n: st.e(posts.pop(0)[1]); k += 1
            st.e('s_nop 0')
            while k < npo0: st.e(posts.pop(0)[1]); k += 1
            S['ntr'] = ntr0
        S = dict(pend=window(0), lastdma=lastoff, after_prime=after_prime, prev=prev)
        nl = NI * (NT - 1)
        exps = [(min(a, nl), b, c) for a, b, c in exps]
        posts = [(a, b, min(c, nl), d) for a, b, c, d in posts]
        S = schedule(st, groups, RING, cfg.lead, exps, posts, side_gap=lambda i: cfg.dma_gap if i < NI * 28 else 6, state=S, primed=primed, check=check_fn(), dense_from=nl, max_wide=cfg.mw, P=Policy(cfg.pa))
        for x in S['extra']: st.e(x)
        st.mark('end')
        return S['log'], len(exps), len(posts)
    log, ne, npo = run(Stream(), (3, -1000, 32 + (NI - cfg.S0 - HW + 1) // 2, PP + (NI - cfg.S0 - HW + 1) // 4 - 1, 4, 'P'))
    def norm(t):
        c, ld, nt, npp, rq, pv = log[f'it{t}']
        return (c, ld, ne - nt - 64 * t, npo - npp - 2 * PP * t, rq - 32 * t, pv)
    n = norm(3)
    n = norm(4)
    assert all(norm(t) == n for t in range(4, NT - 4, 4)), [norm(t) for t in range(2, 12)]
    run(st, n)

def gemm(st, cfg, name, stages, ta, joff, vba, baddr, refill, extra, first_ops=(), late=(), keep=False, after_prime=None):
    groups = []; bcur = None; nb_sets = 0; seen = set()
    for s, (kp, half) in enumerate(stages):
        vb, ib = ta(s)
        newb = bcur is None or bcur[0] != kp or stages[s - 1][1] == half
        if newb:
            base = A_BF + 32 * (nb_sets % 2); nb_sets += 1
            bu = [Unit((name + 'B', s, k, qb), (lambda r, k=k, qb=qb, kp=kp: [f'ds_read_b128 {ar(r, 4)}, {vr(vba)} offset:{baddr(2 * kp + k, qb)}']), reg=base + 16 * k + 4 * qb, lead=cfg.blead - cfg.bspread * (2 * qb + k))
                  for qb in range(4) for k in range(2)]
            bcur = (kp, bu)
        bu = bcur[1]
        for n4 in range(4):
            nb = 4 * half + n4
            au = [Unit((name + 'A', s, n4, k), (lambda r, k=k, n4=n4, vb=vb, ib=ib: [f'ds_read_b64_tr_b16 {ar(r, 2)}, {vr(vb + n4)} offset:{ib + 16384 * k}',
                                                                                 f'ds_read_b64_tr_b16 {ar(r + 2, 2)}, {vr(vb + n4)} offset:{ib + 16384 * k + joff}']),
                       vm=(name, s) if n4 == 0 and k == 0 and not (cfg.nodma and s > 2) else None, lead=cfg.glead + cfg.gspread * (1 - k)) for k in range(2)]
            first = nb not in seen; seen.add(nb)
            def mfs(regs, nb=nb, first=first, au=au, bu=bu):
                r = []
                seq = [(qb, k ^ (qb & 1), k == 0) for qb in range(4) for k in range(2)] if cfg.chain else [(qb, k, k == 0) for k in range(2) for qb in range(4)]
                for qb, k, f in seq:
                    c = vr(ACC(nb, qb), 4)
                    r.append((f'{MF} {c}, {ar(au[k].reg or 0, 4)}, {ar(bu[2 * qb + k].reg, 4)}, {0 if first and f else c}', None))
                return r
            if newb and n4 == 0: g = Group(mfs, bu + au)
            else: g = Group(mfs, au, hold=bu)
            def rel(S, s=s, n4=n4):
                if n4 == 3: S['pend'] += refill(s)
                for ls, ln, ops in late:
                    if (ls, ln) == (s, n4): S['extra'] += ops
            g.on_start = rel
            groups.append(g)
    S = dict(pend=list(first_ops), extra=list(extra))
    if after_prime: S['after_prime'] = lambda st, trans, posts, S: after_prime()
    S = schedule(st, groups, [A_AF + 4 * i for i in range(8)], cfg.glead, side_gap=lambda i: cfg.ggap, state=S, primed=12, sort_reads=True, max_wide=cfg.gmw, P=Policy(cfg.pg))
    if not keep: emit_ops(st, S['pend'])
    for x in S['extra']:
        if isinstance(x, tuple): st.vm(*x)
        else: st.e(x)
    return S['pend']

def gen_k1(cfg, name='k1_attn_kernel'):
    F = cfg.fused == 1; FT = cfg.fused > 0
    for k_, b_ in (('wo', 1), ('kv', 2), ('wq', 4)):
        if cfg.ntm & b_: NTF[k_] = ' nt'
    if FT: import tail
    if F: name = 'adaLN_cond__gqa_block_cached__dense_activation_relu__prompt_kernel'
    st = Stream(); e = st.e
    cfg.sv = 253
    e('s_cmp_ge_u32 s2, 256'); e('s_cbranch_scc1 L_k1_end')
    e(f's_load_dwordx8 s[48:55], s[0:1], {KA_X}')
    e(f's_load_dwordx2 s[56:57], s[0:1], {KA_WO}'); e(f's_load_dwordx2 s[58:59], s[0:1], {KA_WS}'); e(f's_load_dwordx4 s[4:7], s[0:1], {KA_W1}')
    if cfg.cpf:
        e('v_lshlrev_b32 v6, 4, v0'); code_addr(e, 'a', 'L_k1_body', 'L_k1_end' if cfg.cpf == 1 else 'L_k1_post', 6, 4)
        st.vm(f'global_load_dwordx4 {ar(A_DUMMY, 4)}, v[4:5], off', 'cpf')
        e('L_k1_body:')
    if FT: e(f's_load_dwordx8 s[64:71], s[0:1], {KA_C}'); e('v_mov_b32 v15, v0'); e('s_and_b32 s84, s2, 7'); e('s_lshr_b32 s85, s2, 3')
    stamp(st, cfg, 0)
    if cfg.diagpad: e('s_memrealtime s[100:101]')
    lg = {1: 0, 2: 1, 4: 2, 8: 3}[cfg.G]
    e('s_and_b32 s60, s2, 7'); e('s_lshr_b32 s61, s2, 3')
    e(f's_lshl_b32 s{S_G}, s60, {lg}'); e(f's_and_b32 s{S_G}, s{S_G}, 7'); e(f's_and_b32 s62, s61, {cfg.G - 1}'); e(f's_add_u32 s{S_G}, s{S_G}, s62')
    e(f's_lshr_b32 s60, s60, {3 - lg}'); e(f's_lshl_b32 s60, s60, {5 - lg}'); e(f's_lshr_b32 s{S_PF}, s61, {lg}'); e(f's_add_u32 s{S_RB}, s60, s{S_PF}')
    e('v_lshrrev_b32 v4, 6, v0'); e('v_and_b32 v0, 63, v0'); e(f'v_readfirstlane_b32 s{S_W}, v4')
    e(f'v_and_b32 v{V_R}, 15, v0'); e(f'v_lshrrev_b32 v{V_G}, 4, v0')
    e(f'v_and_b32 v4, 1, v{V_G}'); e('v_lshlrev_b32 v4, 1, v4'); e(f'v_lshrrev_b32 v5, 1, v{V_G}'); e(f'v_or_b32 v{V_PI}, v4, v5')
    e(f's_lshl_b32 s{S_WB}, s{S_W}, 12')
    if not cfg.krot: e(f's_mov_b32 s{S_ROT}, 0')
    else: e(f's_and_b32 s{S_ROT}, s{S_PF}, {cfg.rotmask}'); e(f's_lshl_b32 s{S_ROT}, s{S_ROT}, {cfg.rotsh}')
    e('v_lshlrev_b32 v7, 4, v0'); e(f's_lshl_b32 s62, s{S_ROT}, 2')
    e(f's_lshl_b32 s60, s{S_RB}, 16'); e(f's_lshl_b32 s61, s{S_W}, 14'); e('s_add_u32 s60, s60, s61'); e(f's_add_u32 s61, s61, {R3}')
    def x_off():
        for i in range(16):
            e(f'v_xad_u32 v{V_ACC + i}, v0, {i}, s62'); e(f'v_and_b32 v{V_ACC + i}, 63, v{V_ACC + i}'); e(f'v_lshlrev_b32 v{V_ACC + i}, 4, v{V_ACC + i}')
    if not F: x_off()
    e('s_waitcnt lgkmcnt(0)')
    QREG = lambda s: [R0, R2, R1][(s - 13) % 3]
    MODL = QREG(2) + 16384
    if F:
        srd(e, S_WS, 58, 59, WS_PART); srd(e, 80, 70, 71, 256)
        tail.clear_counters(st, cfg); tail.mod_loads(st, cfg); x_off()
    srd(e, S_X, 48, 49, 2048 * 1024)
    def x_dma(st):
        st.e('s_mov_b32 s76, s77')
        for i in range(16):
            if i % 4 == 0:
                st.e(f's_add_u32 m0, s78, {1024 * i}')
                st.e('s_add_u32 s76, s76, 4096' if i else 's_nop 0')
            st.vm(f'buffer_load_dwordx4 v{V_ACC + i}, {sr(S_X, 4)}, s76 offen offset:{1024 * (i % 4)} lds', 'x')
    e('s_mov_b32 s77, s60'); e('s_mov_b32 s78, s61')
    def x_early():
        if F:
            e(f's_cmp_lt_u32 s87, {tail.NU}'); e('s_cbranch_scc1 L_f_xlate'); st.cond = 'xearly'
        x_dma(st)
        if F: st.cond = False; e('L_f_xlate:')
    if not (F and cfg.xdelay): x_early()
    if F and not cfg.mlate: tail.mod_urgent(st, cfg, MODL + 4096, x_dma)
    if not F:
        srd(e, S_WS, 58, 59, WS_PART if FT else 0x1000)
        e(f's_lshl_b32 s62, s{S_ROT}, 8'); e('v_add_u32 v6, s62, v7')
        for j in range(4):
            e(f's_add_u32 m0, s{S_WB}, {MODL + 1024 * j}'); e(f'v_add_u32 v5, {1024 * j}, v6'); e('v_and_b32 v5, 0xfff, v5')
            st.vm(f'buffer_load_dwordx4 v5, {sr(S_WS, 4)}, 0 offen lds', 'mod')
    e(f's_lshl_b32 s62, s{S_G}, 10'); e(f's_sub_u32 s63, {512 * 8192}, s62')
    srd(e, S_WQ, 54, 55, 's63', off='s62')
    e(f's_lshl_b32 s61, s{S_W}, 8'); e('v_lshrrev_b32 v8, 3, v0'); e(f'v_lshl_add_u32 v8, v8, 13, s61')
    e('v_and_b32 v5, 7, v0'); e(f'v_and_b32 v4, 1, v{V_G}'); e('v_lshlrev_b32 v4, 1, v4'); e('v_xor_b32 v4, v4, v5')
    e('v_lshl_add_u32 v9, v4, 4, v8'); e('v_xor_b32 v4, 4, v4'); e('v_lshl_add_u32 v10, v4, 4, v8')
    for j in range(8): e(f'v_add_u32 {vr(V_DWQ + j)}, {65536 * j - 1024 * (j % 4)}, v{9 + (j & 1)}')
    e(f's_lshl_b32 s{S_OFFW}, s{S_ROT}, 18')
    def wq_dma(s):
        if s % 2 == 0: return w_dma('wq', s, QREG(s), V_DWQ, S_WQ, S_OFFW, [f's_add_u32 s3, s{S_OFFW}, 128'])
        return w_dma('wq', s, QREG(s), V_DWQ, S_WQ, 3, [f's_add_u32 s{S_OFFW}, s{S_OFFW}, 524288', f's_and_b32 s{S_OFFW}, s{S_OFFW}, 0x3fffff'])
    def wo_dma(s):
        return w_dma('wo', s, OREG(s), V_DWO, S_WO, S_OFFW, [f's_add_u32 s{S_OFFW}, s{S_OFFW}, {65536 + (128 if s == 7 else 0)}', f's_and_b32 s{S_OFFW}, s{S_OFFW}, 0x7ffff'])
    OREG = lambda s: [R4, R0, R3][s % 3]
    wq_early = wq_dma(0) + wq_dma(1)
    wq2 = wq_dma(2)
    wq_early += wq2[:5]; wq_late = wq2[5:]
    emit_ops(st, wq_early[:cfg.npre]); wq_early = wq_early[cfg.npre:]
    ndum = [0]
    def pf(voff, srdr, soff, imm=0):
        r = A_DUMMY + 4 * (ndum[0] % 3); ndum[0] += 1
        return (f'buffer_load_dwordx4 {ar(r, 4)}, {voff}, {sr(srdr, 4)}, {soff} offen offset:{imm}', 'pf')
    pfo = []
    if cfg.pfq:
        pfo += [(f's_lshl_b32 s5, s{S_PF}, {17 + lg}', None), (f's_lshl_b32 s6, s{S_W}, {15 + lg}', None), ('s_add_u32 s5, s5, s6', None)]
        for i in range(4 * cfg.G): pfo += [pf('v7', S_WQ, 's5'), ('s_add_u32 s5, s5, 8192', None)]
    if cfg.prefetch:
        pfo += [(f's_lshl_b32 s5, s{S_PF}, {11 + lg}', None), (f's_lshl_b32 s6, s{S_W}, {9 + lg}', None), ('s_add_u32 s5, s5, s6', None)]
        for i in range(max(1, cfg.G // 2)): pfo += [pf('v7', S_K, 's5', 1024 * i), pf('v7', S_V, 's5', 1024 * i)]
    pfwo = [(f's_lshl_b32 s5, s{S_RB}, 14', None), (f's_add_u32 s5, s5, s{S_WB}', None)] + [pf('v252', S_WO, 's5', 1024 * i) for i in range(4)]
    if cfg.pfo2:
        pfwo = [(f's_lshl_b32 s5, s{S_ROT}, 15', None), ('s_add_u32 s5, s5, 128', None)] + [pf(f'v{V_DWO + j}', S_WO, 's5', 1024 * (j % 4)) for j in range(8)]
    e(f's_lshl_b32 s62, s{S_G}, 19')
    srd(e, S_K, 50, 51, 524288, off='s62'); srd(e, S_V, 52, 53, 524288, off='s62')
    srd(e, S_WO, 56, 57, 524288, off='s62')
    e(f's_lshl_b32 s62, s{S_G}, 21'); e(f's_add_u32 s62, s62, {WS_PART}')
    srd(e, S_PART, 58, 59, 1 << 21, off='s62')
    e('s_and_b32 s61, s2, 1'); e('s_mul_i32 s62, s61, 1792'); e(f's_sub_u32 s63, {512 * 3584}, s62'); srd(e, 92, 4, 5, 's63', off='s62')
    e('s_lshl_b32 s62, s61, 9'); e(f's_sub_u32 s63, {512 * 3584}, s62'); srd(e, 96, 6, 7, 's63', off='s62')
    e('s_lshr_b32 s4, s2, 3'); e('s_lshl_b32 s4, s4, 2'); e(f's_add_u32 s4, s4, s{S_W}'); e(f's_mul_i32 s7, s4, {14 * 1024}'); e(f's_mul_i32 s4, s4, {4 * 3584}')
    e('v_lshrrev_b32 v251, 5, v0'); e('v_lshlrev_b32 v251, 10, v251'); e('v_and_b32 v4, 31, v0'); e('v_lshl_add_u32 v251, v4, 4, v251')
    e('v_lshlrev_b32 v252, 4, v0')
    e(f's_mov_b32 s{S_OFFK}, 0'); e(f's_mov_b32 s{S_OFFV}, 0'); e(f's_add_u32 s{S_M0V}, s{S_WB}, {LDS_V}'); e(f's_mov_b32 s{S_FLAG}, 0')
    for ks in range(4):
        e(f'v_add_u32 v5, {4 * ks}, v{V_PI}'); e(f'v_xor_b32 v5, v5, v{V_R}'); e('v_lshlrev_b32 v5, 4, v5'); e(f'v_lshl_add_u32 {vr(V_KA + ks)}, v{V_R}, 8, v5')
    e(f'v_lshrrev_b32 v11, 2, v{V_R}'); e(f'v_and_b32 v12, 3, v{V_R}'); e('v_lshlrev_b32 v12, 3, v12')
    e(f'v_lshl_add_u32 v5, v{V_G}, 2, v11'); e('v_and_b32 v13, 7, v5'); e('v_lshl_add_u32 v14, v5, 8, v12'); e(f'v_add_u32 v14, {LDS_V}, v14')
    for db in range(8): e(f'v_xor_b32 v4, {db}, v13'); e(f'v_lshl_add_u32 {vr(V_VA + db)}, v4, 5, v14')
    e(f'v_lshl_add_u32 v9, v{V_G}, 8, s{S_WB}')
    for j in range(4): e(f'v_add_u32 v5, {4 * j}, v{V_G}'); e(f'v_xor_b32 v5, v5, v{V_R}'); e(f'v_lshl_add_u32 {vr(V_DK + j)}, v5, 4, v9')
    for j in range(2): e(f'v_add_u32 v5, {4 * j}, v{V_G}'); e('v_lshlrev_b32 v5, 1, v5'); e(f'v_xor_b32 v5, v5, v{V_R}'); e(f'v_lshl_add_u32 {vr(V_DV + j)}, v5, 4, v9')
    e(f's_lshl_b32 s61, s{S_W}, 8'); e('v_lshrrev_b32 v8, 3, v0'); e(f'v_lshl_add_u32 v8, v8, 10, s61')
    e('v_and_b32 v5, 7, v0'); e(f'v_lshlrev_b32 v4, 1, v{V_G}'); e('v_xor_b32 v4, v4, v5'); e(f'v_lshl_add_u32 {vr(V_DWO)}, v4, 4, v8')
    for j in range(1, 8): e(f'v_add_u32 {vr(V_DWO + j)}, {8192 * j - 1024 * (j % 4)}, {vr(V_DWO)}')
    e(f'v_and_b32 v4, 1, v{V_G}'); e(f'v_lshrrev_b32 v13, 3, v{V_R}'); e('v_lshl_add_u32 v13, v4, 1, v13')
    e(f'v_lshl_add_u32 v5, v{V_G}, 3, v11'); e('v_lshl_add_u32 v14, v5, 7, v12'); e(f'v_add_u32 v14, s{S_WB}, v14')
    for nb in range(4):
        e(f'v_xor_b32 v4, {nb}, v13'); e(f'v_lshl_add_u32 {vr(V_TA[0] + nb)}, v4, 5, v14'); e(f'v_add_u32 {vr(V_TA[1] + nb)}, {R2}, {vr(V_TA[0] + nb)}')
    e(f'v_add_u32 {vr(V_BA)}, {R3}, v7')
    e(f's_lshl_b32 s61, s{S_W}, 14'); e(f'v_add_u32 v8, s61, {vr(V_BA)}')
    e(f's_add_u32 s62, s{S_WB}, {MODL}' if not F else f's_mov_b32 s62, {MODL}'); e(f'v_lshl_add_u32 v9, v{V_G}, 5, s62')
    e(f's_add_u32 s61, s61, {R3}'); e(f'v_lshl_add_u32 v14, v{V_R}, 10, s61')
    for k in range(4): e(f'v_add_u32 v4, {4 * k}, v{V_G}'); e(f'v_xor_b32 v4, v4, v{V_R}'); e(f'v_lshl_add_u32 v{10 + k}, v4, 4, v14')
    zero = [f'v_accvgpr_write_b32 a{A_O + i}, 0' for i in range(128)] + [f'v_accvgpr_write_b32 a{A_L + i}, 0' for i in range(16)]
    zero += ['v_mov_b32 v5, 0x3f803f80'] + [f'v_accvgpr_write_b32 a{A_ONE + i}, v5' for i in range(4)]
    if F and cfg.xdelay == 1: x_early()
    if cfg.zearly:
        for z in zero: e(z)
    if F and cfg.xdelay == 2: x_early()
    if F and cfg.mlate: tail.mod_urgent(st, cfg, MODL + 4096, x_dma)
    main = st; st = Stream(); e = st.e
    if F: tail.x_wait(main, cfg)
    else: main.wait(vm=['x'])
    for ks in range(16): main.lds(f'ds_read_b128 {vr(V_ACC + 8 * ks + 4, 4)}, v{10 + ks % 4} offset:{(ks // 4) * 256}', ('x', ks))
    stamp(main, cfg, 1)
    if cfg.fused == 2 and cfg.stamps: main.e('v_writelane_b32 v253, s88, 2'); main.e('v_writelane_b32 v253, s88, 3'); main.e('v_writelane_b32 v254, s90, 2'); main.e('v_writelane_b32 v254, s90, 3')
    for ks in range(16):
        b = V_ACC + 8 * ks
        if ks % 2 == 0: st.wait(lds=[('x', ks + 1)])
        for j in range(4):
            e(f'v_lshlrev_b32 v{b + 2 * j}, 16, v{b + 4 + j}'); e(f'v_and_b32 v{b + 2 * j + 1}, 0xffff0000, v{b + 4 + j}')
        for j in range(4):
            if ks == 0: continue
            a = V_HO + 2 * j
            e(f'v_pk_add_f32 {vr(a, 2)}, {vr(b + 2 * j, 2)}, {vr(a, 2) if ks > 1 else vr(V_ACC + 2 * j, 2)}')
    a = V_HO
    e(f'v_pk_add_f32 {vr(a, 2)}, {vr(a, 2)}, {vr(a + 2, 2)}'); e(f'v_pk_add_f32 {vr(a + 4, 2)}, {vr(a + 4, 2)}, {vr(a + 6, 2)}')
    e(f'v_pk_add_f32 {vr(a, 2)}, {vr(a, 2)}, {vr(a + 4, 2)}'); e(f'v_add_f32 v4, v{a}, v{a + 1}')
    xlane_reduce(e, [4], [5], 'v_add_f32')
    e(f'v_mul_f32 v4, {f2h(-1.0 / 512)}, v4')
    if F and cfg.spec and cfg.specpos == 0: tail.mod_spec(st, cfg, S_ROT)
    for ks in range(16):
        b = V_ACC + 8 * ks
        for j in range(4): e(f'v_pk_add_f32 {vr(b + 2 * j, 2)}, {vr(b + 2 * j, 2)}, v[4:5] op_sel_hi:[1,0]')
        for j in range(4):
            if ks == 0: e(f'v_pk_mul_f32 {vr(a + 2 * j, 2)}, {vr(b + 2 * j, 2)}, {vr(b + 2 * j, 2)}')
            else: e(f'v_pk_fma_f32 {vr(a + 2 * j, 2)}, {vr(b + 2 * j, 2)}, {vr(b + 2 * j, 2)}, {vr(a + 2 * j, 2)}')
    def modrd(ks):
        m = V_MOD + 16 * (ks % 2)
        for j in range(4): st.lds(f'ds_read_b128 {vr(m + 4 * j, 4)}, v9 offset:{ks * 256 + (j // 2) * 128 + (j % 2) * 16}', ('mod', ks))
    if not F: st.wait(vm=['mod']); modrd(0); modrd(1)
    e(f'v_pk_add_f32 {vr(a, 2)}, {vr(a, 2)}, {vr(a + 2, 2)}'); e(f'v_pk_add_f32 {vr(a + 4, 2)}, {vr(a + 4, 2)}, {vr(a + 6, 2)}')
    e(f'v_pk_add_f32 {vr(a, 2)}, {vr(a, 2)}, {vr(a + 4, 2)}'); e(f'v_add_f32 v4, v{a}, v{a + 1}')
    xlane_reduce(e, [4], [5], 'v_add_f32')
    e(f'v_mov_b32 v5, {f2h(1e-5)}'); e(f'v_fmac_f32 v5, {f2h(1.0 / 512)}, v4'); e('v_rsq_f32 v4, v5'); e('s_nop 0')
    if F:
        if cfg.spec and cfg.specpos == 1: tail.mod_spec(st, cfg, S_ROT)
        for ks in range(16):
            b = V_ACC + 8 * ks
            for j in range(4): e(f'v_pk_mul_f32 {vr(b + 2 * j, 2)}, {vr(b + 2 * j, 2)}, v[4:5] op_sel_hi:[1,0]')
            if cfg.lnx:
                ho = V_HO + 4 * (ks % 2)
                for j in range(4): e(f'v_cvt_pk_bf16_f32 v{ho + j}, v{b + 2 * j}, v{b + 2 * j + 1}')
                st.lds(f'ds_write_b128 v8, {vr(ho, 4)} offset:{ks * 1024}', 'xw')
        if cfg.lnx:
            e(f'v_add_u32 v10, s{S_WB}, v{V_BA}'); e(f's_lshl_b32 s60, s{S_W}, 10'); e('v_add_u32 v9, s60, v9')
            if cfg.spec and cfg.specpos == 2: tail.mod_spec(st, cfg, S_ROT)
            st.wait(lds='all'); e('s_barrier')
            for n in range(16): st.lds(f'ds_read_b128 {vr(V_ACC + 8 * n + 4, 4)}, v10 offset:{(n % 4) * 16384 + (n // 4) * 1024}', ('xn', n))
            for n in range(16):
                b = V_ACC + 8 * n
                if n % 2 == 0: st.wait(lds=[('xn', n + 1)])
                if n == 4 and cfg.spec and cfg.specpos == 3: tail.mod_spec(st, cfg, S_ROT)
                for j in range(4): e(f'v_lshlrev_b32 v{b + 2 * j}, 16, v{b + 4 + j}'); e(f'v_and_b32 v{b + 2 * j + 1}, 0xffff0000, v{b + 4 + j}')
        left = interleave(main, st, (wq_early + pfo)[:len(wq_early + pfo) - cfg.wqlate], 0, cfg.lnev)
        st = main; e = st.e
        emit_ops(st, left)
        if cfg.wqlate: wq_late = (wq_early + pfo)[-cfg.wqlate:] + wq_late
        stamp(st, cfg, 9)
        tail.mod_fetch(st, cfg, MODL, S_ROT)
        stamp(st, cfg, 10)
        modrd(0); modrd(1)
        if cfg.tlb:
            e('v_lshlrev_b32 v4, 13, v0')
            for s_ in (S_K, S_V, S_WO): st.vm(f'buffer_load_dword a245, v4, {sr(s_, 4)}, 0 offen', 'tlb')
        emit_ops(st, tail.rest_loads())
    hw = []
    if F and cfg.lnx:
        for n in range(16):
            b = V_ACC + 8 * n; i = n // 4; m = V_MOD + 16 * (i % 2); ho = V_HO + 4 * (n % 2)
            if n % 4 == 0: st.wait(lds=[('mod', i)])
            for j in range(4): e(f'v_pk_fma_f32 {vr(b + 2 * j, 2)}, {vr(b + 2 * j, 2)}, {vr(m + 2 * j, 2)}, {vr(m + 8 + 2 * j, 2)}')
            if n % 4 == 3 and i + 2 < 4: modrd(i + 2)
            if hw: st.lds(hw.pop(), 'hw')
            for j in range(4): e(f'v_cvt_pk_bf16_f32 v{ho + j}, v{b + 2 * j}, v{b + 2 * j + 1}')
            hw.append(f'ds_write_b128 v10, {vr(ho, 4)} offset:{(n % 4) * 16384 + i * 1024}')
        st.lds(hw.pop(), 'hw')
    for ks in range(0 if F and cfg.lnx else 16):
        b = V_ACC + 8 * ks; m = V_MOD + 16 * (ks % 2); ho = V_HO + 4 * (ks % 2)
        if not F:
            for j in range(4): e(f'v_pk_mul_f32 {vr(b + 2 * j, 2)}, {vr(b + 2 * j, 2)}, v[4:5] op_sel_hi:[1,0]')
        st.wait(lds=[('mod', ks)])
        for j in range(4): e(f'v_pk_fma_f32 {vr(b + 2 * j, 2)}, {vr(b + 2 * j, 2)}, {vr(m + 2 * j, 2)}, {vr(m + 8 + 2 * j, 2)}')
        if ks + 2 < 16: modrd(ks + 2)
        if hw: st.lds(hw.pop(), 'hw')
        for j in range(4): e(f'v_cvt_pk_bf16_f32 v{ho + j}, v{b + 2 * j}, v{b + 2 * j + 1}')
        hw.append(f'ds_write_b128 v8, {vr(ho, 4)} offset:{ks * 1024}')
        if not cfg.dwl or ks == 15: st.lds(hw.pop(), 'hw')
    if not F:
        body = st; st = main; e = st.e
        left = interleave(st, body, wq_early + pfo, 0, cfg.lnev)
        emit_ops(st, left + wq_late); wq_late = []
    st.wait(lds='all'); e('s_barrier')
    stamp(st, cfg, 2)
    def q_conv(ks):
        o = []
        for qb in range(4):
            d = V_Q + (qb * 4 + ks) * 4; a0 = ACC(2 * ks, qb); a1 = ACC(2 * ks + 1, qb)
            o += [f'v_cvt_pk_bf16_f32 v{d}, v{a0}, v{a0 + 1}', f'v_cvt_pk_bf16_f32 v{d + 1}, v{a0 + 2}, v{a0 + 3}',
                  f'v_cvt_pk_bf16_f32 v{d + 2}, v{a1}, v{a1 + 1}', f'v_cvt_pk_bf16_f32 v{d + 3}, v{a1 + 2}, v{a1 + 3}']
        for qb in range(4):
            d = V_Q + (qb * 4 + ks) * 4
            o += [f'v_permlane16_swap_b32 v{d}, v{d + 2}', f'v_permlane16_swap_b32 v{d + 1}, v{d + 3}']
        return o
    def ta_q(s):
        r = QREG(s); return (V_TA[1], 0) if r == R2 else (V_TA[0], r)
    def refill_q(s):
        if s + 3 < 16: return wq_dma(s + 3)
        return {13: kv_dma('K', 0) + kv_dma('K', 1), 14: kv_dma('V', 0) + kv_dma('V', 1), 15: []}[s]
    gemm(st, cfg, 'wq', [(s // 2, s % 2) for s in range(16)], ta_q, 512, V_BA, lambda ks, qb: qb * 16384 + ks * 1024, refill_q, [] if cfg.zearly else zero, first_ops=wq_late, late=([(2, 3, tail.rest_math())] if F else []) + [(15, 0, q_conv(0) + q_conv(1))], keep=False)
    stamp(st, cfg, 3)
    def q_rest():
        if cfg.ovl: e(f's_cmp_lg_u32 s{S_FLAG}, 0'); e('s_cbranch_scc1 L_k1_haveq')
        e('s_nop 3')
        for x in q_conv(2) + q_conv(3): e(x)
        if cfg.ovl and F: st.cond = 'once'; tail.rest_share(st, R4); st.cond = False
        if cfg.cpf >= 2:
            e(f's_lshl_b32 s60, s{S_W}, 10'); e('v_lshl_add_u32 v6, v0, 4, s60'); code_addr(e, 'b', 'L_k1_post', 'L_k1_end', 6, 12)
        if cfg.ovl: e('L_k1_haveq:')
    if not cfg.ovl: q_rest()
    st.wait(vm=[('dK', 0)]); e('s_barrier')
    if F and not cfg.ovl: tail.rest_share(st, R4)
    st.mark('attn_start')
    def max_ops(b, kb, first):
        o = []
        for qb in range(4):
            r = Sreg(b, kb, qb); m = 4 + qb
            o.append(f'v_max3_f32 v{m}, v{r}, v{r + 1}, ' + (f'v{r + 2}' if first else f'v{m}'))
        for qb in range(4):
            r = Sreg(b, kb, qb); m = 4 + qb
            o.append(f'v_max_f32 v{m}, v{m}, v{r + 3}' if first else f'v_max3_f32 v{m}, v{r + 2}, v{r + 3}, v{m}')
        return o
    def rawA(st, side, first, after_prime=None):
        gs = groups_A(0, cfg, raw=True) + groups_A(1, cfg, raw=True)
        gs[2].on_start = lambda S: S['extra'].extend(max_ops(0, 0, first))
        gs[3].on_start = lambda S: S['extra'].extend(max_ops(0, 1, False) + max_ops(1, 0, False))
        S = schedule(st, gs, RING, 16, primed=8, side_gap=lambda i: 3, state=dict(pend=list(side), **({'after_prime': lambda *a: after_prime()} if after_prime else {})), P=Policy('order:1,dma_alone:1'))
        assert not S['pend'] and not S['extra']
    def make_negm(st):
        e = st.e
        xlane_reduce(e, [4, 5, 6, 7], [8, 9, 10, 11], 'v_max_f32')
        for qb in range(4):
            for i in range(4): e(f'v_sub_f32 {vr(V_NEGM + 4 * qb + i)}, {f2h(-cfg.B)}, v{4 + qb}')
    rawA(st, kv_dma('K', 2) + kv_dma('K', 3) + kv_dma('V', 2), True, q_rest if cfg.ovl else None)
    e(f's_cmp_lg_u32 s{S_FLAG}, 0'); e('s_cbranch_scc1 L_k1_havemax0')
    e('s_nop 2')
    for x in max_ops(1, 1, False): e(x)
    make_negm(st)
    e('L_k1_havemax0:'); e('s_nop 5')
    e('L_k1_havemax:')
    for b in range(2):
        for kb in range(2):
            for qb in range(4):
                s = Sreg(b, kb, qb)
                for i in (0, 2): e(f'v_pk_add_f32 {vr(s + i, 2)}, {vr(s + i, 2)}, {vr(V_NEGM + 4 * qb, 2)}')
    for i in range(2 * cfg.lv): e(f'v_mov_b32 v{V_LS + i}, 0')
    st.wait(lds='all', vm=[('dK', 1), ('dV', 0)]); e('s_barrier')
    if F:
        e(f's_cmp_lg_u32 s{S_FLAG}, 0'); e('s_cbranch_scc1 L_f_norest'); tail.rest_store(st, R4)
        if cfg.tlb:
            e('v_lshlrev_b32 v4, 18, v0'); e('v_lshlrev_b32 v5, 15, v0')
            srd(e, 72, 58, 59, 8 << 21, off=WS_PART); srd(e, 64, 68, 69, 2 << 20)
            for v_, s_ in ((4, S_WS), (4, 72), (5, 64), (5, 92), (5, 96)): e(f'buffer_load_dword a245, v{v_}, {sr(s_, 4)}, 0 offen')
    pfw1 = []; pfw2 = []
    for r in range(4):
        pfw1 += [(f's_add_u32 s5, s4, {r * 3584}', None), pf('v252', 92, 's5'), pf('v252', 92, 's5', 768)]
    for r in range(7):
        pfw2 += [(f's_add_u32 s5, s7, {r * 2048}', None), pf('v251', 96, 's5')]
    pfe1, pfe2 = pfw1, pfw2
    if cfg.pfw & 8:
        pfe1 = [('s_lshr_b32 s6, s84, 1', None), ('s_mul_i32 s5, s6, 3584', None), ('s_add_u32 s5, s5, s4', None), pf('v252', 92, 's5'), pf('v252', 92, 's5', 768)]
        pfe2 = [('s_lshl_b32 s5, s6, 11', None), ('s_add_u32 s5, s5, s7', None), pf('v251', 96, 's5'), ('s_add_u32 s5, s5, 8192', None), pf('v251', 96, 's5')]
    def tail_extra(t):
        cp = [(f'global_load_dwordx4 {ar(A_DUMMY, 4)}, v[12:13], off', 'cpf')]
        if cfg.cpf == 3 and t == 31: return cp
        if t == 28: return (cp if cfg.cpf == 2 else []) + pfwo + (pfe1[:6] if cfg.pfw else [])
        if t == 29: return [(f's_lshl_b32 s{S_OFFW}, s{S_ROT}, 15', None)] + wo_dma(0) + (pfe2 if cfg.pfw else [])
        if t == 30: return wo_dma(1) + (pfe1[6:] if cfg.pfw else [])
        return []
    z = Stream(); ze = z.e
    ze(f'v_lshrrev_b32 v5, 2, v{V_R}'); ze(f'v_lshl_add_u32 v5, v{V_G}, 2, v5'); ze('v_bfe_u32 v6, v5, 1, 2'); ze(f'v_and_b32 v7, 3, v{V_R}'); ze('v_lshlrev_b32 v7, 3, v7')
    ze('v_lshl_add_u32 v7, v5, 7, v7'); ze(f'v_add_u32 v7, s{S_WB}, v7')
    for nb in range(4): ze(f'v_xor_b32 v5, {nb}, v6'); ze(f'v_lshl_add_u32 {vr(V_TO[0] + nb)}, v5, 5, v7'); ze(f'v_add_u32 {vr(V_TO[1] + nb)}, {R3}, {vr(V_TO[0] + nb)}')
    ze('v_and_b32 v15, 3, v0'); ze('v_lshlrev_b32 v15, 12, v15'); ze(f's_lshl_b32 s62, s{S_W}, 2'); ze(f's_add_u32 s62, s62, {R3}'); ze('v_add_u32 v15, s62, v15')
    ze('v_lshlrev_b32 v14, 4, v0'); ze(f's_lshl_b32 s61, s{S_W}, 2'); ze(f's_sub_u32 s61, s61, s{S_ROT}')
    for m in range(4):
        ze(f's_add_u32 s62, s61, {m}'); ze('s_and_b32 s62, s62, 15'); ze('s_lshl_b32 s62, s62, 12'); ze(f's_add_u32 s62, s62, {R1}'); ze(f'v_add_u32 v{V_P + m}, s62, v14')
    attn_main(st, cfg, tail_extra, z.resolve())
    stamp(st, cfg, 5)
    e('s_setreg_imm32_b32 hwreg(HW_REG_MODE, 4, 2), 3'); e('s_nop 4')
    if cfg.lv:
        lr = [V_S[0] + k for k in range(cfg.lv)]
        for k in range(cfg.lv): e(f'v_add_f32 v{lr[k]}, v{V_LS + 2 * k}, v{V_LS + 2 * k + 1}')
        xlane_reduce(e, lr, [V_S[0] + 4 + k for k in range(cfg.lv)], 'v_add_f32')
    for qb in range(4): e(f'v_accvgpr_read_b32 v{4 + qb}, a{A_L + 4 * qb}' if qb not in LVQ[cfg.lv] else f'v_mov_b32 v{4 + qb}, v{V_S[0] + LVQ[cfg.lv].index(qb)}')
    e(f'v_mov_b32 v{V_S[0] + 8}, {f2h(cfg.thr)}')
    e('v_max3_f32 v8, v4, v5, v6'); e('v_max_f32 v8, v8, v7')
    for qb in range(4): e(f'v_add_f32 v{9}, v{4 + qb}, {"v9" if qb else "0"}')
    e(f'v_cmp_nlt_f32 vcc, v8, v{V_S[0] + 8}'); e('v_cmp_u_f32 s[62:63], v9, v9')
    for qb in range(4): e(f'v_rcp_f32 v{4 + qb}, v{4 + qb}')
    e('s_or_b64 vcc, vcc, s[62:63]'); e('s_cmp_lg_u64 vcc, 0'); e('s_cselect_b32 s61, 1, 0')
    e('v_mov_b32 v11, s61'); st.lds('ds_write_b32 v15, v11', 'flagw')
    k = 0; dw = []
    for qb in range(4):
        for m in range(4):
            t = V_S[0] + 16 * (k % 4); k += 1
            for hb in range(2):
                for i in range(4): e(f'v_accvgpr_read_b32 v{t + 4 * hb + i}, a{A_O + ((2 * m + hb) * 4 + qb) * 4 + i}')
                if hb == 0 and dw: st.lds(dw.pop(), 'ow')
            sel = f'v[{4 + qb}:{5 + qb}] op_sel_hi:[1,0]' if qb % 2 == 0 else f'v[{3 + qb}:{4 + qb}] op_sel:[0,1] op_sel_hi:[1,1]'
            for i in range(4): e(f'v_pk_mul_f32 {vr(t + 2 * i, 2)}, {vr(t + 2 * i, 2)}, {sel}')
            for i in range(4): e(f'v_cvt_pk_bf16_f32 v{t + 8 + i}, v{t + 2 * i}, v{t + 2 * i + 1}')
            dw.append(f'ds_write_b128 v{V_P + m}, {vr(t + 8, 4)} offset:{qb * 1024}')
            if not cfg.dwl: st.lds(dw.pop(), 'ow')
    if dw: st.lds(dw.pop(), 'ow')
    e(f'v_add_u32 v{V_BO}, {R1}, v14'); e(f's_add_u32 s61, s{S_WB}, {R3}'); e('v_mov_b32 v10, s61')
    st.wait(lds='all'); e('s_barrier')
    st.lds('ds_read_b128 v[4:7], v10', 'flagr')
    def flag_check():
        st.wait(lds=['flagr'])
        e('v_or3_b32 v4, v4, v5, v6'); e('v_or_b32 v4, v4, v7'); e('s_nop 0'); e('v_readfirstlane_b32 s61, v4'); e('s_nop 3')
        e(f's_andn2_b32 s61, s61, s{S_FLAG}'); e('s_cbranch_scc1 L_k1_slow')
        if F:
            e(f's_mov_b32 s61, {tail.CNT_MB}'); tail.signal(st, S_WS, 's61', 'L_f_sigb')
    if not cfg.ovl: flag_check()
    stamp(st, cfg, 6)
    def ta_o(s):
        r = OREG(s); return (V_TO[0], 0) if r == R0 else (V_TO[1], r - R3)
    def refill_o(s): return wo_dma(s + 3) if s + 3 < 16 else []
    sadr = [f'v_lshrrev_b32 v4, 1, v{V_R}', 'v_lshlrev_b32 v4, 11, v4', f'v_lshl_add_u32 v4, v{V_PI}, 5, v4', f'v_and_b32 v5, 1, v{V_R}', 'v_lshl_add_u32 v4, v5, 4, v4',
            f's_lshl_b32 s48, s{S_RB}, 16', f's_lshl_b32 s62, s{S_W}, 9', 's_add_u32 s48, s48, s62'] + [f's_add_u32 s{48 + qb}, s48, {16384 * qb}' for qb in range(1, 4)]
    mbchk = []
    if F:
        sadr += [f's_min_u32 s52, s{S_W}, 1', 's_mul_i32 s52, s52, 0x7fff0000', f's_add_u32 s52, s52, {tail.CNT_MB}', 'v_mov_b32 v6, 0']
        mbchk = [(f'buffer_load_dword v255, v6, {sr(S_WS, 4)}, s52 offen sc1', 'mb')]
    late_st = F and cfg.lst
    if late_st:
        sadr += ['s_lshr_b32 s63, s87, 5', 's_min_u32 s63, s63, 1', 's_sub_u32 s63, 1, s63', 's_mul_i32 s63, s63, 0x7fff0000'] + [f's_add_u32 s{53 + qb}, s{48 + qb}, s63' for qb in range(4)]
    def out_half(h):
        ops = []
        for qb in range(4):
            for m in (2 * h, 2 * h + 1):
                d = V_Q + (qb * 4 + m) * 4; a0 = ACC(2 * m, qb); a1 = ACC(2 * m + 1, qb)
                ops += [f'v_cvt_pk_bf16_f32 v{d}, v{a0}, v{a0 + 1}', f'v_cvt_pk_bf16_f32 v{d + 1}, v{a0 + 2}, v{a0 + 3}',
                        f'v_cvt_pk_bf16_f32 v{d + 2}, v{a1}, v{a1 + 1}', f'v_cvt_pk_bf16_f32 v{d + 3}, v{a1 + 2}, v{a1 + 3}']
            for m in (2 * h, 2 * h + 1):
                d = V_Q + (qb * 4 + m) * 4
                ops += [f'v_permlane16_swap_b32 v{d}, v{d + 2}', f'v_permlane16_swap_b32 v{d + 1}, v{d + 3}']
            for m in (2 * h, 2 * h + 1):
                ops.append((f'buffer_store_dwordx4 {vr(V_Q + (qb * 4 + m) * 4, 4)}, v4, {sr(S_PART, 4)}, s{(53 if late_st and h == 0 else 48) + qb} offen offset:{m * 128}{SC}', 'st'))
        return ops
    gemm(st, cfg, 'wo', [(s % 8, s // 8) for s in range(16)], ta_o, 2048, V_BO, lambda ks, qb: ks * 4096 + qb * 1024, refill_o, sadr,
         first_ops=wo_dma(2), after_prime=flag_check if cfg.ovl else None, late=[(cfg.ost, 3, mbchk + out_half(0))] + ([(cfg.pfs, 3, [x if x[1] else x[0] for x in (pfw1 if cfg.pfw & 2 else []) + (pfw2 if cfg.pfw & 4 else [])])] if cfg.pfw > 1 else []))
    stamp(st, cfg, 7)
    e('s_nop 7')
    if late_st:
        e('s_cmp_ge_u32 s87, 32'); e('s_cbranch_scc1 L_k1_h0done')
        for qb in range(4):
            for m in range(2): e(f'buffer_store_dwordx4 {vr(V_Q + (qb * 4 + m) * 4, 4)}, v4, {sr(S_PART, 4)}, s{48 + qb} offen offset:{m * 128}{SC}')
        e('L_k1_h0done:')
    for x in out_half(1):
        if isinstance(x, tuple): st.vm(*x)
        else: e(x)
    if FT: tail.tail(st, cfg)
    else: stamp_out(st, cfg, 1, 8, 58, S_W)
    if cfg.diagpad:
        e('s_waitcnt vmcnt(0)'); e('L_pad:'); e('s_memrealtime s[88:89]'); e('s_waitcnt lgkmcnt(0)'); e('s_sub_u32 s88, s88, s100'); e(f's_cmp_lt_u32 s88, {cfg.diagpad * 100}'); e('s_cbranch_scc1 L_pad')
    e('s_endpgm')
    segs, order = split_marks(st.resolve())
    NL = 28
    for t in range(4, NL):
        if segs[f'it{t}'] != segs[f'it{t - 4}']:
            import difflib, sys
            sys.stderr.write('\n'.join(list(difflib.unified_diff(segs[f'it{t - 4}'], segs[f'it{t}'], lineterm='', n=2))[:60]) + '\n')
            raise SystemExit(f'iteration {t} differs')
    if cfg.strip:
        import re
        pat = re.compile(cfg.strip.replace('+', '|'))
        for t in range(NL): segs[f'it{t}'] = [x for x in segs[f'it{t}'] if not pat.match(x)]
    out = header(name) + segs['_start'] + ['L_k1_attn_start:'] + segs['attn_start']
    tmp = Stream(); stamp(tmp, cfg, 4); out += tmp.resolve()
    out += [f's_mov_b32 s{S_CNT}, {NL // 4}', '.p2align 6', 'L_k1_loop:']
    for t in range(4): out += segs[f'it{t}']
    if cfg.stamps == 4:
        out += ['s_memrealtime s[88:89]', 's_memtime s[90:91]', 's_waitcnt lgkmcnt(0)', f's_sub_u32 s89, 39, s{S_CNT}', 's_lshl_b64 exec, 1, s89', 'v_mov_b32 v253, s88', 'v_mov_b32 v254, s90', 's_mov_b64 exec, -1']
    out += [f's_sub_u32 s{S_CNT}, s{S_CNT}, 1', f's_cmp_lg_u32 s{S_CNT}, 0', 's_cbranch_scc1 L_k1_loop']
    for t in range(NL, NT): out += (['L_k1_post:'] if t == NL + (2 if cfg.cpf != 3 else 0) else []) + segs[f'it{t}']
    out += segs['end']
    st = Stream(); e = st.e
    e('L_k1_slow:')
    e(f's_mov_b32 s{S_FLAG}, 1'); e('s_setreg_imm32_b32 hwreg(HW_REG_MODE, 4, 2), 0')
    e('s_waitcnt vmcnt(0) lgkmcnt(0)'); e('s_barrier')
    e(f's_mov_b32 s{S_OFFK}, 0'); e(f's_mov_b32 s{S_CNT}, {NT}')
    for qb in range(4): e(f'v_mov_b32 v{4 + qb}, 0xff800000')
    e('L_k1_slow_loop:')
    emit_ops(st, kv_dma('K', 0)); st.wait(vm='all'); e('s_barrier')
    rawA(st, [], False)
    e('s_nop 7')
    for x in max_ops(1, 1, False): e(x)
    e('s_barrier')
    e(f's_sub_u32 s{S_CNT}, s{S_CNT}, 1'); e(f's_cmp_lg_u32 s{S_CNT}, 0'); e('s_cbranch_scc1 L_k1_slow_loop')
    make_negm(st)
    for z in zero: e(z)
    e(f's_mov_b32 s{S_OFFK}, 0'); e(f's_mov_b32 s{S_OFFV}, 0')
    for w_, t_ in [('K', 0), ('K', 1), ('V', 0), ('V', 1)]: emit_ops(st, kv_dma(w_, t_))
    st.wait(vm='all'); e('s_barrier'); e('s_branch L_k1_attn_start')
    out += st.resolve() + ['L_k1_end:', 's_endpgm']
    return out, kd(name, 512, 256, 102), f'; @launch {"" if F else "kernel=" + name + " "}grid=(256,1,1) block=(256,1,1) lds=163840'
```

```python
import sys
from gen_common import *
import k0, k1
cfg = k1.Cfg(); kernels = '01234'
for a in sys.argv[1:]:
    k, v = a.split('=')
    if k == 'kernels': kernels = v
    else: setattr(cfg, k, int(v) if v.lstrip('-').isdigit() else v)
parts = []
if cfg.fused: kernels = '1' if cfg.fused == 1 else '01'
if '0' in kernels: parts.append(k0.gen_k0(cfg))
if '1' in kernels: parts.append(k1.gen_k1(cfg))
if '2' in kernels:
    import k2; parts.append(k2.gen_k2(cfg))
if '3' in kernels:
    import k3; parts.append(k3.gen_k3(cfg))
if '4' in kernels:
    import k4; parts.append(k4.gen_k4(cfg))
pre = int(getattr(cfg, 'epre', 0)); post = int(getattr(cfg, 'epost', 0))
lines = [p[2] for p in parts]
order = str(getattr(cfg, 'order', ''))
if order: lines = [lines[int(c)] for c in order.lstrip('x')]
if pre or post:
    parts.append((header('empty_kernel') + ['s_endpgm'], kd('empty_kernel', 8, 8), ''))
    el = '; @launch kernel=empty_kernel grid=(256,1,1) block=(256,1,1) lds=0'
    lines = [el] * pre + lines + [el] * post
NOTES = '''; adaLN + GQA attention + ReLU FFN block in one launch: 256 workgroups of 4 waves, one per CU (160 KiB LDS, 512 registers per wave).
; Kernarg: x, k, v, wq, wo, (B_x unused), w1, w2, c, w_mod, out, debug, ws at byte offsets 0, 8, ... 96.
; Generated text (own Python generator: MFMA stream scheduler with counted waits); all MFMAs are 16x16x32 bf16 with short accumulate chains.
; Workgroup = 64 query rows x the 4 heads of one kv group, wave = one head.
;  1. mod = silu(c) @ w_mod: 64 workgroups produce partial sums of sa / ca (self-validating words in 8 replicas), every workgroup 8 columns of the rest.
;  2. LN1 + modulation -> h (LDS), Q^T = wq^T h^T with wave-private LDS weight rings (LDS-DMA + transposing reads), log2(e)/sqrt(128) folded in.
;  3. attention on S^T = K Q^T - m - 102 (m = true row maximum of the first 64 keys, entered as the MFMA C operand), P = exp2(S^T),
;     O^T += V^T P^T, row sums by MFMA / vector adds. After the loop the row sums are checked; if one is not below 2^64 (or is NaN)
;     the workgroup takes the true maximum over all keys and runs the attention again (L_k1_slow).
;  4. output projection partial (own kv group) -> ws; hand-off by counters; sum of 8 partials + residual + LN2 (8 rows per workgroup);
;     hand-off; FFN1 tile 128 x 112; hand-off; FFN2 tile 64 x 64 (K split over the waves) + residual -> out.
; Hand-off words live in ws; workgroups 243..247 zero them at the start and count themselves in d_debug[0]. Every wait is bounded.
; Workgroup id % 8 is used only to pick work that shares cache lines (speed); correctness does not depend on placement.'''.split('\n')
if cfg.fused == 1: lines = lines + NOTES
out = lines + ['.amdgcn_target "amdgcn-amd-amdhsa--gfx950"', '.text']
import align
for p in parts: out += align.align(p[0], run={1: 5, 2: 12, 3: 8, 4: 12}[cfg.al], promo=cfg.al in (1, 4), want={n: int(c) for n, c in zip('lnf qp raw loop post op f1 f2'.split(), str(cfg.par).lstrip('p')) if c != 'x'}) if cfg.al else [l for l in p[0] if not l.startswith(';PAR')]
out += ['.section .rodata,"a"']
for p in parts: out += ['.p2align 6', p[1]]
print('\n'.join(out))
```
